```python
import torch

def _softmax(x, axis=-1):
    return torch.softmax(x, dim=axis)

def _gelu(x):
    return torch.nn.functional.gelu(x, approximate='tanh')

def _silu(x):
    return torch.nn.functional.silu(x)

def _sigmoid(x):
    return torch.sigmoid(x)

def _layernorm(x, axis=-1, eps=1e-05):
    m = x.mean(dim=axis, keepdim=True)
    v = x.var(dim=axis, keepdim=True, unbiased=False)
    return (x - m) / torch.sqrt(v + eps)

def _scatter_add(tgt, idx, src, axis=0):
    return tgt.clone().index_add_(axis, idx, src)

def _segment_sum(src, seg, n):
    out = torch.zeros((n,) + src.shape[1:], dtype=src.dtype)
    return out.index_add_(0, seg, src)

def _pad(x, pw):
    flat = tuple((v for pair in reversed(pw) for v in pair))
    return torch.nn.functional.pad(x, flat)
kernel_name = 'adaLN_cond__ssm_conv_h3__glu_gated_reglu__prompt'

def setup_inputs():

    _w = lambda a: (lambda t: t.to(torch.bfloat16) if t.is_floating_point() else t)(torch.as_tensor(a))

    def _A_setup():
        B, S, D = (1, 2048, 512)
        ks = 4
        return {'q': _w((lambda *s: torch.randn(*s, dtype=torch.bfloat16) * 0.05)(B, S, D)), 'k': _w((lambda *s: torch.randn(*s, dtype=torch.bfloat16) * 0.8)(B, S, D)), 'v': _w((lambda *s: torch.randn(*s, dtype=torch.bfloat16) * 0.8)(B, S, D)), 'shift_k': _w((lambda *s: torch.randn(*s, dtype=torch.bfloat16) * 0.8)(D, ks) * 0.5), 'ssm_k': _w((lambda *s: torch.randn(*s, dtype=torch.bfloat16) * 0.8)(D, S) * (1.0 / S ** 0.5)), 'ssm_D': _w((lambda *s: torch.randn(*s, dtype=torch.bfloat16) * 0.8)(D))}
    _A_in = _A_setup()

    def _B_setup():
        B, S, D, F = (1, 2048, 512, 1792)
        return {'x': _w((lambda *s: torch.randn(*s, dtype=torch.bfloat16) * 0.05)(B, S, D)), 'W_gate': _w((lambda *s: torch.randn(*s, dtype=torch.bfloat16) * 0.8)(D, F) * (2.0 / D) ** 0.5), 'W_up': _w((lambda *s: torch.randn(*s, dtype=torch.bfloat16) * 0.8)(D, F) * (2.0 / D) ** 0.5), 'W_down': _w((lambda *s: torch.randn(*s, dtype=torch.bfloat16) * 0.8)(F, D) * (1.0 / F) ** 0.5)}
    _B_in = _B_setup()
    return {'A_q': _A_in['q'], 'A_k': _A_in['k'], 'A_v': _A_in['v'], 'A_shift_k': _A_in['shift_k'], 'A_ssm_k': _A_in['ssm_k'], 'A_ssm_D': _A_in['ssm_D'], 'B_x': _B_in['x'], 'B_W_gate': _B_in['W_gate'], 'B_W_up': _B_in['W_up'], 'B_W_down': _B_in['W_down'], 'c': _w((lambda *s: torch.randn(*s, dtype=torch.bfloat16) * 0.2)(1, 512) * 8.0), 'w_mod': _w((lambda *s: torch.randn(*s, dtype=torch.bfloat16) * 0.2)(512, 6 * 512) * 512 ** (-0.5) * 8.0)}

def reference(A_q, A_k, A_v, A_shift_k, A_ssm_k, A_ssm_D, B_x, B_W_gate, B_W_up, B_W_down, c, w_mod):

    def _A_ref(q, k, v, shift_k, ssm_k, ssm_D):
        B, S, D = q.shape
        ks = shift_k.shape[-1]
        k_pad = _pad(k, ((0, 0), (ks - 1, 0), (0, 0)))
        k_shift = torch.zeros_like(k)
        for t in range(ks):
            k_shift = k_shift + k_pad[:, t:t + S, :] * shift_k[:, ks - 1 - t][None, None, :]
        kv = k_shift * v
        L = 2 * S
        kv_pad = _pad(kv, ((0, 0), (0, S), (0, 0)))
        kf_pad = _pad(ssm_k, ((0, 0), (0, S)))
        kv_f = (lambda x, axes=(-2, -1): torch.fft.rfft2(x.float(), dim=axes))(kv_pad[:, None, :, :], axes=(1, 2))
        kf_f = (lambda x, axes=(-2, -1): torch.fft.rfft2(x.float(), dim=axes))(kf_pad[:, None, :], axes=(1, 2))
        kf_f = (lambda x, *d: x.permute(*d))(kf_f, 1, 2, 0)
        y_f = kv_f * kf_f[None, :, :, :]
        y = (lambda x, s, axes=(-2, -1): torch.fft.irfft2(x, s=s, dim=axes).to(torch.bfloat16))(y_f, (1, L), axes=(1, 2))[:, 0, :S, :]
        y = y + kv * ssm_D[None, None, :]
        return q * y

    def _B_ref(x, W_gate, W_up, W_down):
        gate = torch.einsum('bsd,df->bsf', x, W_gate)
        up = torch.einsum('bsd,df->bsf', x, W_up)
        gate = gate * (lambda x, dt: x.to(dt))(gate > 0, gate.dtype)
        h = gate * up
        return torch.einsum('bsf,fd->bsd', h, W_down)
    x = A_q
    mod = (_silu(c) @ w_mod).reshape(c.shape[0], 6, 1, -1)
    sa, ca, ga, sb, cb, gb = (mod[:, 0].clone(), mod[:, 1].clone(), mod[:, 2].clone(), mod[:, 3].clone(), mod[:, 4].clone(), mod[:, 5].clone())
    h = _layernorm(x, axis=-1) * (1 + ca) + sa
    x = x + ga * _A_ref(h, A_k, A_v, A_shift_k, A_ssm_k, A_ssm_D)
    h = _layernorm(x, axis=-1) * (1 + cb) + sb
    x = x + gb * _B_ref(h, B_W_gate, B_W_up, B_W_down)
    return x
```

```python
import sys, re

NAME = 'adaLN_cond__ssm_conv_h3__glu_gated_reglu__prompt'

MB = 1 << 20
WS_KVT = 0 * MB
WS_QT = 2 * MB
WS_X1T = 4 * MB
WS_X1R = 6 * MB
WS_WF = 8 * MB
WS_WDF = 12 * MB
WS_HF = 16 * MB
WS_NM = 24 * MB
WS_RS = 24 * MB + 8192
WS_MOD = 24 * MB + 65536
WS_UT = 24 * MB + 131072
WS_SIZE = 0x10000000

KA_Q, KA_K, KA_V, KA_SHIFT, KA_SSMK, KA_SSMD, KA_BX, KA_WG, KA_WU, KA_WD, KA_C, KA_WMOD, KA_OUT, KA_DBG, KA_WS = [8 * i for i in range(15)]


def _regs(tok):
    tok = tok.strip()
    m = re.match(r'^-?\|?([vas])\[(\d+):(\d+)\]\|?$', tok)
    if m:
        return [f'{m.group(1)}{i}' for i in range(int(m.group(2)), int(m.group(3)) + 1)]
    m = re.match(r'^-?\|?([vas])(\d+)\|?$', tok)
    if m:
        return [f'{m.group(1)}{m.group(2)}']
    if tok in ('vcc', 'exec', 'm0'):
        return [tok]
    return []


TRANS = ('v_exp_f32', 'v_log_f32', 'v_rcp_f32', 'v_rsq_f32', 'v_sqrt_f32', 'v_sin_f32', 'v_cos_f32')


class Hazards:
    def __init__(self):
        self.pos = 0
        self.wr = {}
        self.crd = {}
        self.st = {}

    def flush(self, a):
        need = 0
        for r, (p, k, op) in self.wr.items():
            lim = {'mfma': 8, 'dot': 3, 'trans': 2, 'valu': 5 if r[0] in 's' or r in ('vcc', 'exec') else 2, 'salu_m0': 1}.get(k, 0)
            need = max(need, lim - (self.pos - p - 1))
        for r, p in self.crd.items():
            need = max(need, 3 - (self.pos - p - 1))
        for r, p in self.st.items():
            need = max(need, 2 - (self.pos - p - 1))
        self.nop(a, need)
        self.wr, self.crd, self.st = {}, {}, {}

    def nop(self, a, n):
        while n > 0:
            k = min(n, 16)
            a.lines.append(f'    s_nop {k - 1}')
            self.pos += k
            n -= k

    def emit(self, a, l):
        code = l.split(';')[0].strip()
        parts = code.split(None, 1)
        op = parts[0]
        ops = []
        if len(parts) > 1:
            for t in parts[1].split(','):
                ops.append(t.strip().split(' ')[0])
        if op.startswith(('s_cbranch', 's_branch')):
            self.flush(a)
        is_mfma = op.startswith('v_mfma')
        is_valu = op.startswith('v_') and not is_mfma
        is_ds = op.startswith('ds_')
        is_vmem = op.startswith('buffer_') or op.startswith('global_')
        is_dpp = is_valu and ('_dpp' in op or 'quad_perm' in code or 'row_' in code)
        dst, src, srcC, data = [], [], [], []
        if is_mfma:
            dst = _regs(ops[0]); src = _regs(ops[1]) + _regs(ops[2]); srcC = _regs(ops[3])
        elif is_valu:
            if op.startswith('v_permlane') and 'swap' in op:
                dst = _regs(ops[0]) + _regs(ops[1]); src = list(dst)
            elif op.startswith('v_swap'):
                dst = _regs(ops[0]) + _regs(ops[1]); src = list(dst)
            elif op.startswith('v_cmpx'):
                dst = ['exec']; src = sum((_regs(o) for o in ops), [])
            elif op in ('v_add_co_u32', 'v_sub_co_u32', 'v_addc_co_u32', 'v_subb_co_u32'):
                dst = _regs(ops[0]) + _regs(ops[1]); src = sum((_regs(o) for o in ops[2:]), [])
            else:
                dst = _regs(ops[0]); src = sum((_regs(o) for o in ops[1:]), [])
                if op.startswith(('v_fmac', 'v_dot2c', 'v_pk_fmac', 'v_mac')) or is_dpp or op.startswith('v_writelane'):
                    src += dst
                if op.startswith('v_cndmask') and len(ops) == 3:
                    src += ['vcc']
            if op.startswith('v_dot'):
                srcC = _regs(ops[3]) if len(ops) > 3 else list(dst)
        elif is_ds:
            if op.startswith('ds_read') or op.startswith('ds_bpermute') or op.startswith('ds_permute'):
                dst = _regs(ops[0]); src = sum((_regs(o) for o in ops[1:]), [])
            else:
                src = sum((_regs(o) for o in ops), [])
        elif is_vmem:
            if '_load' in op and ' lds' not in code:
                dst = _regs(ops[0]); src = sum((_regs(o) for o in ops[1:]), [])
            elif '_load' in op:
                src = sum((_regs(o) for o in ops), []) + ['m0']
            else:
                src = sum((_regs(o) for o in ops), [])
                if 'x3' in op or 'x4' in op:
                    data = _regs(ops[0] if op.startswith('buffer_') else ops[1])
        elif op.startswith('s_') and ops:
            if not op.startswith(('s_cmp', 's_cbranch', 's_branch', 's_waitcnt', 's_nop', 's_barrier', 's_setprio', 's_endpgm')):
                dst = _regs(ops[0]); src = sum((_regs(o) for o in ops[1:]), [])
                if 'saveexec' in op:
                    dst = dst + ['exec']
        need = 0

        def req(p, n):
            nonlocal need
            need = max(need, n - (self.pos - p - 1))
        for r in set(src + srcC):
            if r not in self.wr:
                continue
            p, k, pop = self.wr[r]
            if k == 'mfma':
                if is_mfma:
                    if r in src:
                        req(p, 8)
                    elif ops[3] != pop:
                        req(p, 6)
                elif is_valu or is_ds or is_vmem:
                    req(p, 8)
            elif k == 'dot':
                if op == pop and r in srcC and r not in _regs(ops[1]) + _regs(ops[2]):
                    pass
                elif is_valu or is_mfma or is_ds or is_vmem:
                    req(p, 3)
            elif k in ('valu', 'trans'):
                if r[0] == 'v' and r != 'vcc' or r[0] == 'a':
                    if is_mfma:
                        req(p, 2)
                    if is_dpp or op.startswith('v_permlane'):
                        req(p, 2)
                    if op.startswith(('v_readlane', 'v_readfirstlane')):
                        req(p, 1)
                    if k == 'trans' and is_valu and op not in TRANS:
                        req(p, 1)
                else:
                    if is_vmem:
                        req(p, 5)
                    if is_valu:
                        req(p, 4 if op.startswith(('v_readlane', 'v_writelane')) else 2)
            elif k == 'salu_m0':
                req(p, 1)
        if 'exec' in self.wr and self.wr['exec'][1] == 'valu':
            p = self.wr['exec'][0]
            if is_mfma or op.startswith(('v_readlane', 'v_readfirstlane', 'v_writelane', 'v_permlane')):
                req(p, 4)
            if is_dpp:
                req(p, 5)
        for r in dst:
            if r in self.wr:
                p, k, pop = self.wr[r]
                if k == 'mfma' and not is_mfma:
                    req(p, 8)
                if k == 'mfma' and is_mfma and ops[0] != pop:
                    req(p, 8)
                if k == 'dot' and op != pop:
                    req(p, 3)
            if is_valu and r in self.crd:
                req(self.crd[r], 3)
            if r in self.st:
                req(self.st[r], 2 if is_valu else 1)
        self.nop(a, need)
        a.lines.append('    ' + l)
        here = self.pos
        if op == 's_nop':
            self.pos += int(ops[0]) + 1
        else:
            self.pos += 1
        for r in dst:
            if is_mfma:
                self.wr[r] = (here, 'mfma', ops[0])
            elif op.startswith('v_dot'):
                self.wr[r] = (here, 'dot', op)
            elif op in TRANS:
                self.wr[r] = (here, 'trans', op)
            elif is_valu:
                self.wr[r] = (here, 'valu', op)
            elif r == 'm0':
                self.wr[r] = (here, 'salu_m0', op)
            else:
                self.wr.pop(r, None)
        if is_mfma:
            for r in srcC:
                self.crd[r] = here
        for r in data:
            self.st[r] = here
        if op.startswith(('s_cbranch', 's_branch')):
            pass


class Asm:
    def __init__(self):
        self.lines = []
        self.vm = []
        self.lg = []
        self.hz = Hazards()

    def e(self, s):
        for l in s.strip('\n').split('\n'):
            l = l.strip()
            if not l:
                continue
            self.hz.emit(self, l)

    def label(self, s):
        self.hz.flush(self)
        self.lines.append(s + ':')

    def raw(self, s):
        self.lines.append(s)

    def vmem(self, s, tag=None):
        self.e(s)
        self.vm.append(tag)

    def lds(self, s, tag=None):
        self.e(s)
        self.lg.append(tag)

    def wait_vm(self, tag):
        idx = max(i for i, t in enumerate(self.vm) if t == tag)
        n = len(self.vm) - 1 - idx
        assert n <= 63
        self.e(f's_waitcnt vmcnt({n})')
        self.vm = self.vm[idx + 1:]

    def wait_lg(self, tag):
        idx = max(i for i, t in enumerate(self.lg) if t == tag)
        n = len(self.lg) - 1 - idx
        if n > 15:
            n = 15
            idx = len(self.lg) - 1 - 15
            self.e(f's_waitcnt lgkmcnt({n})')
            self.lg = self.lg[idx + 1:]
            return self.wait_lg(tag) if tag in self.lg else None
        self.e(f's_waitcnt lgkmcnt({n})')
        self.lg = self.lg[idx + 1:]

    def wait_all(self):
        self.e('s_waitcnt vmcnt(0) lgkmcnt(0)')
        self.vm = []
        self.lg = []

    def wait_vm0(self):
        self.e('s_waitcnt vmcnt(0)')
        self.vm = []

    def wait_lg0(self):
        self.e('s_waitcnt lgkmcnt(0)')
        self.lg = []

    def srd(self, d, base, nbytes):
        self.e(f's_mov_b32 s{d}, s{base}')
        self.e(f's_and_b32 s{d+1}, s{base+1}, 0xffff')
        self.e(f's_mov_b32 s{d+2}, {nbytes}')
        self.e(f's_mov_b32 s{d+3}, 0x00020000')

    def rnd2(self, lo, hi, a, b, tmp):
        self.e(f'v_cvt_pk_bf16_f32 v{tmp}, v{a}, v{b}')
        self.e(f'v_lshlrev_b32 v{lo}, 16, v{tmp}')
        self.e(f'v_and_b32 v{hi}, 0xffff0000, v{tmp}')

    def unpack(self, lo, hi, src):
        self.e(f'v_lshlrev_b32 v{lo}, 16, v{src}')
        self.e(f'v_and_b32 v{hi}, 0xffff0000, v{src}')

    def begin_kernel(self, name):
        self.raw('.text')
        self.raw(f'.globl {name}')
        self.raw('.p2align 8')
        self.raw(f'.type {name},@function')
        self.label(name)
        self.vm = []
        self.lg = []

    def end_kernel(self, name, vgpr, sgpr, accum):
        self.raw('.section .rodata,"a"')
        self.raw('.p2align 6')
        self.raw(f'.amdhsa_kernel {name}')
        self.raw(f'  .amdhsa_next_free_vgpr {vgpr}')
        self.raw(f'  .amdhsa_next_free_sgpr {sgpr}')
        self.raw(f'  .amdhsa_accum_offset {accum}')
        self.raw('  .amdhsa_group_segment_fixed_size 0')
        self.raw('  .amdhsa_kernarg_size 120')
        self.raw('  .amdhsa_user_sgpr_count 2')
        self.raw('  .amdhsa_user_sgpr_kernarg_segment_ptr 1')
        self.raw('  .amdhsa_system_sgpr_workgroup_id_x 1')
        self.raw('  .amdhsa_float_denorm_mode_32 3')
        self.raw('.end_amdhsa_kernel')

    def text(self):
        return '\n'.join(self.lines) + '\n'


def row_reduce_add(a, regs):
    for mod in ('quad_perm:[1,0,3,2]', 'quad_perm:[2,3,0,1]', 'row_half_mirror', 'row_mirror'):
        for r in regs:
            a.e(f'v_add_f32_dpp v{r}, v{r}, v{r} {mod} row_mask:0xf bank_mask:0xf')
        if len(regs) < 3:
            a.e(f's_nop {2 - len(regs)}' if len(regs) < 2 else 's_nop 0')


def wave_total(a, regs, sbase):
    a.e('s_nop 0')
    for i, r in enumerate(regs):
        for k in range(4):
            a.e(f'v_readlane_b32 s{sbase + 4 * i + k}, v{r}, {16 * k}')
    a.e('s_nop 1')
    for i, r in enumerate(regs):
        a.e(f'v_mov_b32 v{r}, s{sbase + 4 * i}')
    for k in range(1, 4):
        for i, r in enumerate(regs):
            a.e(f'v_add_f32 v{r}, s{sbase + 4 * i + k}, v{r}')


K0_TILES = 256
K0_MODWG = 96


def gen_k0(a):
    name = 'k0_prep_kernel'
    a.begin_kernel(name)
    a.e(f's_cmp_ge_u32 s2, {K0_TILES + K0_MODWG}')
    a.e('s_cbranch_scc1 K0_END')
    a.e(f's_cmp_ge_u32 s2, {K0_TILES}')
    a.e('s_cbranch_scc1 K0_MOD')
    a.e(f's_load_dwordx4 s[4:7], s[0:1], {KA_Q}')
    a.e(f's_load_dwordx4 s[8:11], s[0:1], {KA_V}')
    a.e(f's_load_dwordx2 s[12:13], s[0:1], {KA_WS}')
    a.e('s_lshr_b32 s14, s2, 3')
    a.e('s_and_b32 s15, s2, 7')
    a.e('v_and_b32 v1, 31, v0')
    a.e('v_lshrrev_b32 v2, 5, v0')
    a.e('s_lshl_b32 s16, s14, 6')
    a.e('v_lshlrev_b32 v3, 3, v2')
    a.e('v_add_u32 v3, s16, v3')
    a.e('s_lshl_b32 s17, s15, 7')
    a.e('v_lshlrev_b32 v4, 2, v1')
    a.e('v_add_u32 v4, s17, v4')
    a.e('v_lshl_add_u32 v5, v3, 10, v4')
    a.e('v_subrev_u32 v6, 3072, v5')
    a.e('v_subrev_u32 v7, 2048, v5')
    a.e('v_subrev_u32 v8, 1024, v5')
    a.e('v_add_u32 v9, 4096, v5')
    a.e('v_lshlrev_b32 v44, 2, v4')
    a.e('v_lshrrev_b32 v45, 6, v0')
    a.e('v_and_b32 v46, 63, v0')
    a.e('s_lshl_b32 s18, s2, 3')
    a.e('v_lshlrev_b32 v47, 1, v45')
    a.e('v_add_u32 v47, s18, v47')
    a.e('v_lshlrev_b32 v48, 4, v46')
    a.e('v_lshl_add_u32 v48, v47, 10, v48')
    a.e('s_waitcnt lgkmcnt(0)')
    a.srd(20, 4, 2097152)
    a.srd(24, 6, 2097152)
    a.srd(28, 8, 2097152)
    a.srd(32, 10, 4096)
    a.srd(36, 12, WS_SIZE)
    a.vmem('buffer_load_dwordx4 v[40:43], v44, s[32:35], 0 offen', 'sh')
    for i, r in enumerate((6, 7, 8)):
        a.vmem(f'buffer_load_dword v{10 + i}, v{r}, s[24:27], 0 offen', 'k')
    for i in range(8):
        a.vmem(f'buffer_load_dword v{13 + i}, v{5 if i < 4 else 9}, s[24:27], 0 offen offset:{1024 * (i & 3)}', 'k')
    for i in range(8):
        a.vmem(f'buffer_load_dword v{21 + i}, v{5 if i < 4 else 9}, s[28:31], 0 offen offset:{1024 * (i & 3)}', 'v')
    for i in range(8):
        a.vmem(f'buffer_load_dword v{29 + i}, v{5 if i < 4 else 9}, s[20:23], 0 offen offset:{1024 * (i & 3)}', 'q')
    a.vmem('buffer_load_dwordx4 v[52:55], v48, s[20:23], 0 offen', 'st')
    a.vmem('buffer_load_dwordx4 v[56:59], v48, s[20:23], 0 offen offset:1024', 'st')
    a.e('v_lshlrev_b32 v49, 11, v4')
    a.e('v_lshlrev_b32 v50, 1, v3')
    a.e('v_add_u32 v51, v49, v50')
    a.e(f'v_add_u32 v51, {WS_QT}, v51')
    a.e('v_sub_u32 v50, 4080, v50')
    a.e('v_add_u32 v49, v49, v50')
    a.wait_vm('sh')
    W0, W1 = 60, 64
    a.unpack(W0 + 0, W0 + 1, 40)
    a.unpack(W0 + 2, W0 + 3, 41)
    a.unpack(W1 + 0, W1 + 1, 42)
    a.unpack(W1 + 2, W1 + 3, 43)
    a.wait_vm('k')
    KL, KH = 70, 82
    for i in range(11):
        a.unpack(KL + i, KH + i, 10 + i)
    a.wait_vm('v')
    R = 100
    for i in range(8):
        A0, A1, P0, P1, T = 94, 95, 96, 97, 98
        a.e(f'v_mul_f32 v{P0}, v{KL + i}, v{W0 + 3}')
        a.e(f'v_mul_f32 v{P1}, v{KH + i}, v{W1 + 3}')
        a.rnd2(A0, A1, P0, P1, T)
        for t in range(1, 4):
            a.e(f'v_mul_f32 v{P0}, v{KL + i + t}, v{W0 + 3 - t}')
            a.e(f'v_mul_f32 v{P1}, v{KH + i + t}, v{W1 + 3 - t}')
            a.rnd2(P0, P1, P0, P1, T)
            a.e(f'v_add_f32 v{A0}, v{A0}, v{P0}')
            a.e(f'v_add_f32 v{A1}, v{A1}, v{P1}')
            a.rnd2(A0, A1, A0, A1, T)
        a.unpack(P0, P1, 21 + i)
        a.e(f'v_mul_f32 v{P0}, v{A0}, v{P0}')
        a.e(f'v_mul_f32 v{P1}, v{A1}, v{P1}')
        a.e(f'v_cvt_pk_bf16_f32 v{R + i}, v{P0}, v{P1}')
    a.e('s_mov_b32 s40, 0x05040100')
    a.e('s_mov_b32 s41, 0x07060302')
    O = 108
    for j in range(4):
        a.e(f'v_perm_b32 v{O + j}, v{R + 6 - 2 * j}, v{R + 7 - 2 * j}, s40')
        a.e(f'v_perm_b32 v{O + 4 + j}, v{R + 6 - 2 * j}, v{R + 7 - 2 * j}, s41')
    a.vmem(f'buffer_store_dwordx4 v[{O}:{O + 3}], v49, s[36:39], 0 offen', 'o')
    a.e('v_add_u32 v50, 4096, v49')
    a.vmem(f'buffer_store_dwordx4 v[{O + 4}:{O + 7}], v50, s[36:39], 0 offen', 'o')
    a.wait_vm('q')
    O2 = 116
    for j in range(4):
        a.e(f'v_perm_b32 v{O2 + j}, v{29 + 2 * j + 1}, v{29 + 2 * j}, s40')
        a.e(f'v_perm_b32 v{O2 + 4 + j}, v{29 + 2 * j + 1}, v{29 + 2 * j}, s41')
    a.vmem(f'buffer_store_dwordx4 v[{O2}:{O2 + 3}], v51, s[36:39], 0 offen', 'o')
    a.e('v_add_u32 v50, 4096, v51')
    a.vmem(f'buffer_store_dwordx4 v[{O2 + 4}:{O2 + 7}], v50, s[36:39], 0 offen', 'o')
    a.wait_vm('st')
    X = 70
    for r in range(2):
        for j in range(4):
            a.unpack(X + 8 * r + 2 * j, X + 8 * r + 2 * j + 1, 52 + 4 * r + j)
    S0, S1 = 90, 91
    for r, S in ((0, S0), (1, S1)):
        a.e(f'v_add_f32 v{S}, v{X + 8 * r}, v{X + 8 * r + 1}')
        for j in range(2, 8):
            a.e(f'v_add_f32 v{S}, v{S}, v{X + 8 * r + j}')
    a.e('s_nop 1')
    row_reduce_add(a, [S0, S1])
    wave_total(a, [S0, S1], 44)
    a.e(f'v_mul_f32 v{S0}, 0x3b000000, v{S0}')
    a.e(f'v_mul_f32 v{S1}, 0x3b000000, v{S1}')
    Q0, Q1 = 92, 93
    for r, S, Q in ((0, S0, Q0), (1, S1, Q1)):
        for j in range(8):
            a.e(f'v_sub_f32 v{X + 8 * r + j}, v{X + 8 * r + j}, v{S}')
        a.e(f'v_mul_f32 v{Q}, v{X + 8 * r}, v{X + 8 * r}')
        for j in range(1, 8):
            a.e(f'v_fmac_f32 v{Q}, v{X + 8 * r + j}, v{X + 8 * r + j}')
    a.e('s_nop 1')
    row_reduce_add(a, [Q0, Q1])
    wave_total(a, [Q0, Q1], 44)
    a.e(f'v_mul_f32 v{Q0}, 0x3b000000, v{Q0}')
    a.e(f'v_mul_f32 v{Q1}, 0x3b000000, v{Q1}')
    a.rnd2(Q0, Q1, Q0, Q1, 94)
    a.e(f'v_add_f32 v{Q0}, 0x3727c5ac, v{Q0}')
    a.e(f'v_add_f32 v{Q1}, 0x3727c5ac, v{Q1}')
    a.rnd2(Q0, Q1, Q0, Q1, 94)
    a.e(f'v_sqrt_f32 v{Q0}, v{Q0}')
    a.e(f'v_sqrt_f32 v{Q1}, v{Q1}')
    a.rnd2(Q0, Q1, Q0, Q1, 94)
    a.rnd2(S0, S1, S0, S1, 94)
    a.e(f'v_rcp_f32 v94, v{Q0}')
    a.e(f'v_rcp_f32 v95, v{Q1}')
    a.e(f'v_xor_b32 v{S0}, 0x80000000, v{S0}')
    a.e(f'v_xor_b32 v{S1}, 0x80000000, v{S1}')
    a.e(f'v_fma_f32 v{Q0}, -v{Q0}, v94, 1.0')
    a.e(f'v_fma_f32 v{Q1}, -v{Q1}, v95, 1.0')
    a.e(f'v_fmac_f32 v94, v{Q0}, v94')
    a.e(f'v_fmac_f32 v95, v{Q1}, v95')
    a.e('v_lshlrev_b32 v96, 2, v47')
    a.e(f'v_add_u32 v96, {WS_NM}, v96')
    a.e(f'v_add_u32 v97, {WS_RS - WS_NM}, v96')
    a.e('v_cmp_eq_u32 vcc, 0, v46')
    a.e('s_and_saveexec_b64 s[42:43], vcc')
    a.vmem(f'buffer_store_dwordx2 v[{S0}:{S1}], v96, s[36:39], 0 offen', 'o')
    a.vmem('buffer_store_dwordx2 v[94:95], v97, s[36:39], 0 offen', 'o')
    a.e('s_endpgm')
    a.label('K0_MOD')
    a.vm = []
    a.e(f's_load_dwordx4 s[4:7], s[0:1], {KA_C}')
    a.e(f's_load_dwordx2 s[12:13], s[0:1], {KA_WS}')
    a.e(f's_sub_u32 s14, s2, {K0_TILES}')
    a.e('s_and_b32 s15, s14, 7')
    a.e('s_lshr_b32 s16, s14, 3')
    a.e('s_mul_i32 s15, s15, 12')
    a.e('s_add_u32 s15, s15, s16')
    a.e('s_lshl_b32 s17, s15, 6')
    a.e('v_and_b32 v1, 63, v0')
    a.e('v_lshrrev_b32 v2, 6, v0')
    a.e('v_lshrrev_b32 v3, 2, v1')
    a.e('v_and_b32 v4, 3, v1')
    a.e('v_lshl_add_u32 v5, v2, 7, v3')
    a.e('s_movk_i32 s18, 6144')
    a.e('v_mul_lo_u32 v6, v5, s18')
    a.e('v_lshl_add_u32 v6, v4, 4, v6')
    a.e('v_add_u32 v6, s17, v6')
    a.e('v_lshlrev_b32 v7, 1, v5')
    a.e('s_waitcnt lgkmcnt(0)')
    a.srd(20, 4, 1024)
    a.srd(24, 6, 3145728)
    a.srd(36, 12, WS_SIZE)
    for i in range(8):
        a.vmem(f'buffer_load_ushort v{10 + i}, v7, s[20:23], 0 offen offset:{32 * i}', 'c')
    for i in range(8):
        a.e(f's_mov_b32 s{44 + i}, {98304 * i}')
    for i in range(8):
        a.vmem(f'buffer_load_dwordx4 v[{20 + 4 * i}:{23 + 4 * i}], v6, s[24:27], s{44 + i} offen', f'w{i}')
    a.wait_vm('c')
    for i in range(8):
        a.e(f'v_lshlrev_b32 v{10 + i}, 16, v{10 + i}')
        a.e(f'v_mul_f32 v{60 + i}, 0xbfb8aa3b, v{10 + i}')
    for i in range(8):
        a.e(f'v_exp_f32 v{60 + i}, v{60 + i}')
    a.e('s_nop 0')
    for i in range(8):
        a.e(f'v_add_f32 v{60 + i}, 1.0, v{60 + i}')
    for i in range(8):
        a.e(f'v_rcp_f32 v{60 + i}, v{60 + i}')
    a.e('s_nop 0')
    for i in range(8):
        a.e(f'v_mul_f32 v{60 + i}, v{10 + i}, v{60 + i}')
    for i in range(0, 8, 2):
        a.rnd2(60 + i, 61 + i, 60 + i, 61 + i, 68)
    ACC = 72
    for i in range(8):
        a.wait_vm(f'w{i}')
        for j in range(4):
            a.unpack(80, 81, 20 + 4 * i + j)
            if i == 0:
                a.e(f'v_mul_f32 v{ACC + 2 * j}, v80, v60')
                a.e(f'v_mul_f32 v{ACC + 2 * j + 1}, v81, v60')
            else:
                a.e(f'v_fmac_f32 v{ACC + 2 * j}, v80, v{60 + i}')
                a.e(f'v_fmac_f32 v{ACC + 2 * j + 1}, v81, v{60 + i}')
    a.e('s_nop 1')
    for mod in ('row_ror:4', 'row_ror:8'):
        for j in range(8):
            a.e(f'v_add_f32_dpp v{ACC + j}, v{ACC + j}, v{ACC + j} {mod} row_mask:0xf bank_mask:0xf')
    a.e('v_lshrrev_b32 v8, 4, v1')
    a.e('v_lshl_add_u32 v8, v2, 2, v8')
    a.e('v_lshl_add_u32 v8, v8, 2, v4')
    a.e('v_lshlrev_b32 v8, 5, v8')
    a.e('v_and_b32 v9, 12, v1')
    a.e('v_cmp_eq_u32 vcc, 0, v9')
    a.e('s_and_saveexec_b64 s[42:43], vcc')
    a.e(f'ds_write_b128 v8, v[{ACC}:{ACC + 3}]')
    a.e(f'ds_write_b128 v8, v[{ACC + 4}:{ACC + 7}] offset:16')
    a.e('s_mov_b64 exec, s[42:43]')
    a.e('s_waitcnt lgkmcnt(0)')
    a.e('s_barrier')
    a.e('v_cmp_gt_u32 vcc, 32, v0')
    a.e('s_and_saveexec_b64 s[42:43], vcc')
    a.e('s_cbranch_execz K0_END')
    a.e('v_lshlrev_b32 v8, 2, v0')
    for i in range(16):
        a.e(f'ds_read_b32 v{20 + i}, v8 offset:{128 * i}')
    a.e('s_waitcnt lgkmcnt(0)')
    for i in range(1, 16):
        a.e(f'v_add_f32 v20, v20, v{20 + i}')
    a.rnd2(20, 21, 20, 20, 22)
    a.e('s_lshl_b32 s17, s15, 7')
    a.e(f's_add_u32 s17, s17, {WS_MOD}')
    a.e('buffer_store_dword v20, v8, s[36:39], s17 offen')
    a.label('K0_END')
    a.e('s_endpgm')
    a.end_kernel(name, 128, 64, 128)
    return f'; @launch kernel={name} grid=({K0_TILES + K0_MODWG},1,1) block=(256,1,1) lds=2048'


HEADER = open('cdna_kernels/' + NAME + '.s.ref').read().split('; Override launch')[0]


def build(kernels):
    a = Asm()
    launches = [k(a) for k in kernels]
    return HEADER + '\n'.join(launches) + '\n.amdgcn_target "amdgcn-amd-amdhsa--gfx950"\n' + a.text()


if __name__ == '__main__':
    ks = [gen_k0]
    out = sys.argv[1] if len(sys.argv) > 1 else 'cur.s'
    open(out, 'w').write(build(ks))
```

```python
from gen import *

K1_CONV = 256
K1_PREP = 112
K1_CH = 39424
KC_STRIDE = 4352
KC_OFFS = [0, 5, 4, 10, 14, 2, 12, 8]
KC_NIB = 0x8C2EA450
R_OFF = 34816
K1_LDS = 2 * K1_CH


def interleave(a, mf, fill, start=0, per=1):
    fi = 0
    for k, m in enumerate(mf):
        m()
        if k >= start:
            for _ in range(per):
                if fi < len(fill):
                    fill[fi]()
                    fi += 1
    while fi < len(fill):
        fill[fi]()
        fi += 1


def gen_k1(a):
    name = 'k1_conv_kernel'
    a.begin_kernel(name)
    a.e(f's_cmp_ge_u32 s2, {K1_CONV + K1_PREP}')
    a.e('s_cbranch_scc1 K1_END')
    a.e(f's_cmp_ge_u32 s2, {K1_CONV}')
    a.e('s_cbranch_scc1 K1_PREP')
    a.e(f's_load_dwordx4 s[4:7], s[0:1], {KA_SSMK}')
    a.e(f's_load_dwordx2 s[8:9], s[0:1], {KA_WS}')
    a.e('v_lshrrev_b32 v2, 6, v0')
    a.e('v_and_b32 v1, 63, v0')
    a.e('v_readfirstlane_b32 s10, v2')
    a.e('v_and_b32 v3, 127, v0')
    a.e('v_lshlrev_b32 v4, 4, v3')
    a.e('v_subrev_u32 v5, 16, v4')
    a.e('s_lshr_b32 s11, s10, 1')
    a.e('s_and_b32 s12, s10, 1')
    a.e('s_lshl_b32 s13, s2, 1')
    a.e('s_add_u32 s13, s13, s11')
    a.e(f's_mul_i32 s14, s11, {K1_CH}')
    a.e('s_lshl_b32 s15, s13, 12')
    a.e('s_lshl_b32 s16, s12, 11')
    a.e('s_add_u32 s17, s15, s16')
    a.e('v_lshlrev_b32 v6, 4, v1')
    a.e('v_and_b32 v7, 15, v1')
    a.e('v_lshrrev_b32 v8, 4, v1')
    a.e('v_lshlrev_b32 v9, 5, v7')
    a.e('v_lshl_add_u32 v9, v8, 3, v9')
    a.e('v_lshlrev_b32 v18, 1, v9')
    a.e(f's_add_u32 s18, s14, {R_OFF}')
    a.e('s_add_u32 s18, s18, s16')
    a.e('s_lshl_b32 s19, s13, 2')
    a.e(f's_add_u32 s19, s19, {WS_MOD}')
    a.e('s_add_u32 s40, s19, 2048')
    a.e('s_add_u32 s41, s19, 4096')
    a.e('s_lshl_b32 s42, s13, 1')
    a.e('s_and_b32 s42, s42, 0xfffffffc')
    a.e('s_waitcnt lgkmcnt(0)')
    a.e('s_add_u32 s4, s4, s15')
    a.e('s_addc_u32 s5, s5, 0')
    a.srd(20, 4, 4096)
    a.srd(24, 8, WS_SIZE)
    a.e('s_load_dword s44, s[8:9], s19')
    a.e('s_load_dword s45, s[8:9], s40')
    a.e('s_load_dword s46, s[8:9], s41')
    a.e('s_load_dword s47, s[6:7], s42')
    L = 32
    a.vmem(f'buffer_load_dwordx4 v[{L}:{L+3}], v5, s[20:23], 0 offen', 'k0')
    a.vmem(f'buffer_load_dwordx4 v[{L+4}:{L+7}], v4, s[20:23], 0 offen', 'k0')
    a.vmem(f'buffer_load_dwordx4 v[{L+8}:{L+11}], v4, s[20:23], 0 offen offset:2032', 'k1')
    a.vmem(f'buffer_load_dwordx4 v[{L+12}:{L+15}], v4, s[20:23], 0 offen offset:2048', 'k1')
    a.e('s_mov_b32 m0, s18')
    a.vmem('buffer_load_dwordx4 v6, s[24:27], s17 offen lds', 'r')
    a.vmem('buffer_load_dwordx4 v6, s[24:27], s17 offen offset:1024 lds', 'r')
    NM, RS, Q, KV = 64, 80, 96, 104
    a.e(f's_add_u32 s28, s17, {WS_QT}')
    a.e('s_lshl_b32 s29, s12, 12')
    a.e(f's_add_u32 s30, s29, {WS_NM}')
    a.e(f's_add_u32 s31, s29, {WS_RS}')
    a.e(f's_add_u32 s32, s17, {WS_X1T}')
    for n in range(4):
        a.vmem(f'buffer_load_dwordx2 v[{Q+2*n}:{Q+2*n+1}], v9, s[24:27], s28 offen offset:{512*n}', 'ep')
        a.vmem(f'buffer_load_dwordx4 v[{NM+4*n}:{NM+4*n+3}], v18, s[24:27], s30 offen offset:{1024*n}', 'ep')
        a.vmem(f'buffer_load_dwordx4 v[{RS+4*n}:{RS+4*n+3}], v18, s[24:27], s31 offen offset:{1024*n}', 'ep')
    Z = 28
    for i in range(4):
        a.e(f'v_mov_b32 v{Z+i}, 0')
    a.e('v_and_b32 v19, 7, v3')
    a.e('v_lshlrev_b32 v20, 2, v19')
    a.e(f's_mov_b32 s33, 0x{KC_NIB:08x}')
    a.e('v_lshrrev_b32 v20, v20, s33')
    a.e('v_and_b32 v20, 15, v20')
    a.e(f's_movk_i32 s34, {KC_STRIDE}')
    a.e('v_mul_lo_u32 v19, v19, s34')
    a.e('v_lshl_add_u32 v19, v20, 4, v19')
    a.e('v_lshrrev_b32 v20, 3, v3')
    a.e('v_lshl_add_u32 v19, v20, 4, v19')
    a.e('v_add_u32 v19, s14, v19')
    a.e('v_cmp_gt_u32 vcc, 9, v3')
    a.e('s_and_saveexec_b64 s[36:37], vcc')
    a.lds(f'ds_write_b128 v19, v[{Z}:{Z+3}]')
    a.e('s_mov_b64 exec, s[36:37]')
    a.e('v_add_u32 v21, s14, v4')
    a.e('v_subrev_u32 v20, 64, v3')
    a.e('v_cmp_gt_u32 vcc, 30, v20')
    a.e('s_and_saveexec_b64 s[36:37], vcc')
    a.lds(f'ds_write_b128 v21, v[{Z}:{Z+3}] offset:{R_OFF + 4096 - 1024}')
    a.e('s_mov_b64 exec, s[36:37]')
    a.e('v_add_u32 v19, 1, v7')
    a.e('v_and_b32 v20, 7, v19')
    a.e('v_lshlrev_b32 v22, 2, v20')
    a.e('v_lshrrev_b32 v22, v22, s33')
    a.e('v_and_b32 v22, 15, v22')
    a.e('v_mul_lo_u32 v20, v20, s34')
    a.e('v_lshl_add_u32 v20, v22, 4, v20')
    a.e('v_and_b32 v19, 0x18, v19')
    a.e('v_lshl_add_u32 v19, v8, 3, v19')
    a.e('v_lshl_add_u32 v20, v19, 1, v20')
    a.e('s_lshl_b32 s35, s12, 8')
    a.e('s_add_u32 s38, s14, s35')
    a.e('v_add_u32 v2, s38, v20')
    a.e('v_lshlrev_b32 v19, 5, v7')
    a.e('v_lshlrev_b32 v20, 4, v8')
    a.e('v_sub_u32 v19, v20, v19')
    a.e(f's_add_u32 s38, s38, {R_OFF + 480}')
    a.e('v_add_u32 v3, s38, v19')
    a.e(f's_add_u32 s38, s14, {R_OFF + 4088 - 1536}')
    a.e('s_sub_u32 s38, s38, s16')
    a.e('v_sub_u32 v5, s38, v9')
    a.e('s_lshl_b32 s38, s12, 12')
    a.e('s_add_u32 s39, s14, s38')
    a.e('v_add_u32 v4, s39, v6')
    a.e('s_xor_b32 s38, s38, 4096')
    a.e('s_add_u32 s39, s14, s38')
    a.e('v_add_u32 v6, s39, v6')
    for pos, (X, O, O2) in enumerate(((48, 54, 112), (118, 22, 60))):
        W = L + 8 * pos
        a.wait_vm(f'k{pos}')

        def wr(e, r, extra=0):
            a.lds(f'ds_write_b128 v21, v[{r}:{r+3}] offset:{e * KC_STRIDE + KC_OFFS[e] * 16 + 16 + extra + 2048 * pos}')
        wr(0, W + 4, 16)
        wr(4, W + 2)
        if pos == 1:
            pass
        regsX = [X + k for k in range(6)]
        regsO = [O + k for k in range(6)]
        regsP = [O2 + k for k in range(6)] if pos == 0 else [124, 125, 126, 127, 60, 61]
        for k in range(6):
            a.e(f'v_mov_b32 v{regsX[k]}, v{W + k + 1}')
        wr(2, X)
        wr(6, X + 2)
        for k in range(6):
            a.e(f'v_alignbit_b32 v{regsO[k]}, v{W + k + 1}, v{W + k}, 16')
        wr(1, O)
        wr(5, O + 2)
        if pos == 0:
            for k in range(6):
                a.e(f'v_alignbit_b32 v{O2 + k}, v{W + k + 2}, v{W + k + 1}, 16')
            wr(3, O2)
            wr(7, O2 + 2)
        else:
            for k in range(6):
                a.e(f'v_alignbit_b32 v{48 + k}, v{W + k + 2}, v{W + k + 1}, 16')
            wr(3, 48)
            wr(7, 50)
    GL, GH, AL, AH, DL, DH, SA = 10, 11, 12, 13, 14, 15, 16
    a.wait_lg0()
    a.e(f'v_mov_b32 v{SA}, s44')
    a.e('v_mov_b32 v19, s45')
    a.e('v_add_f32 v19, 1.0, v19')
    a.e(f'v_cvt_pk_bf16_f32 v{GL}, v19, 0')
    a.e(f'v_lshlrev_b32 v{GH}, 16, v{GL}')
    a.e(f'v_mov_b32 v{AH}, s46')
    a.e(f'v_lshrrev_b32 v{AL}, 16, v{AH}')
    a.e('s_lshr_b32 s48, s47, 16')
    a.e('s_and_b32 s49, s47, 0xffff')
    a.e('s_bitcmp1_b32 s13, 0')
    a.e('s_cselect_b32 s48, s48, s49')
    a.e(f'v_mov_b32 v{DL}, s48')
    a.e(f'v_lshlrev_b32 v{DH}, 16, v{DL}')
    a.e('s_mov_b32 s50, 0x3f803f80')
    a.e('s_mov_b32 s51, 0x00003f80')
    a.e('s_mov_b32 s52, 0x3f800000')
    a.wait_vm('r')
    a.e('s_barrier')
    ACC = 32

    def afr(buf, i):
        return f'a[{64 * buf + 4 * i}:{64 * buf + 4 * i + 3}]'

    def bfr(buf, j):
        return f'a[{64 * buf + 32 + 4 * j}:{64 * buf + 32 + 4 * j + 3}]'

    def rd_a(r, i):
        return lambda: a.lds(f'ds_read_b128 {afr(r & 1, i)}, v2 offset:{64 * (r + 8 * i)}', f'a{r}_{i}')

    def rd_b(r, j):
        return lambda: a.lds(f'ds_read_b128 {bfr(r & 1, j)}, v3 offset:{64 * (r + 56 - 8 * j)}', f'b{r}_{j}')

    def reads(r):
        return [rd_a(r, 0)] + [rd_b(r, j) for j in range(8)] + [rd_a(r, i) for i in range(1, 8)]

    order = [(i, j) for i in range(8) for j in range(8 - i)]
    order.remove((7, 0))
    order.insert(order.index((5, 0)), (7, 0))

    def mfma(r, i, j, first, waits):
        def f():
            for t in waits:
                if t in a.lg:
                    a.wait_lg(t)
            nb = i + j
            c = '0' if first else f'v[{ACC + 4 * nb}:{ACC + 4 * nb + 3}]'
            a.e(f'v_mfma_f32_16x16x32_bf16 v[{ACC + 4 * nb}:{ACC + 4 * nb + 3}], {afr(r & 1, i)}, {bfr(r & 1, j)}, {c}')
        return f

    H = Q
    QF, KVD = NM, RS
    T = [112, 116, 120, 124]

    def pre_ops(group):
        ops = []

        def each(fn):
            for s, (n, k) in enumerate(group):
                ops.append((lambda s=s, n=n, k=k: fn(T[s], n, k)))
        each(lambda t, n, k: a.e(f'v_dot2_f32_bf16 v{t}, v{Q+2*n+k}, s51, v{NM+4*n+2*k}'))
        each(lambda t, n, k: a.e(f'v_dot2_f32_bf16 v{t+1}, v{Q+2*n+k}, s52, v{NM+4*n+2*k+1}'))
        each(lambda t, n, k: a.e(f'v_lshlrev_b32 v{QF+4*n+2*k}, 16, v{Q+2*n+k}'))
        each(lambda t, n, k: a.e(f'v_and_b32 v{QF+4*n+2*k+1}, 0xffff0000, v{Q+2*n+k}'))
        each(lambda t, n, k: a.e(f'v_cvt_pk_bf16_f32 v{t+2}, v{t}, v{t+1}'))
        each(lambda t, n, k: a.e(f'v_lshlrev_b32 v{t}, 16, v{t+2}'))
        each(lambda t, n, k: a.e(f'v_and_b32 v{t+1}, 0xffff0000, v{t+2}'))
        each(lambda t, n, k: a.e(f'v_pk_mul_f32 v[{t}:{t+1}], v[{t}:{t+1}], v[{RS+4*n+2*k}:{RS+4*n+2*k+1}]'))
        each(lambda t, n, k: a.e(f'v_cvt_pk_bf16_f32 v{t+2}, v{t}, v{t+1}'))
        each(lambda t, n, k: a.e(f'v_dot2_f32_bf16 v{t}, v{t+2}, v{GL}, 0'))
        each(lambda t, n, k: a.e(f'v_dot2_f32_bf16 v{t+1}, v{t+2}, v{GH}, 0'))
        each(lambda t, n, k: a.e(f'v_dot2_f32_bf16 v{KVD+4*n+2*k}, v{KV+2*n+1-k}, v{DH}, 0'))
        each(lambda t, n, k: a.e(f'v_cvt_pk_bf16_f32 v{t+2}, v{t}, v{t+1}'))
        each(lambda t, n, k: a.e(f'v_dot2_f32_bf16 v{t}, v{t+2}, s51, v{SA}'))
        each(lambda t, n, k: a.e(f'v_dot2_f32_bf16 v{t+1}, v{t+2}, s52, v{SA}'))
        each(lambda t, n, k: a.e(f'v_dot2_f32_bf16 v{KVD+4*n+2*k+1}, v{KV+2*n+1-k}, v{DL}, 0'))
        each(lambda t, n, k: a.e(f'v_cvt_pk_bf16_f32 v{H+2*n+k}, v{t}, v{t+1}'))
        return ops

    for f in reads(0):
        f()
    pre = pre_ops([(0, 0), (0, 1), (1, 0), (1, 1)]) + pre_ops([(2, 0), (2, 1), (3, 0), (3, 1)])
    npre = len(pre)
    for r in range(4):
        mf = [mfma(r, i, j, r == 0 and i == 0, [f'a{r}_{i}', f'b{r}_{j}']) for (i, j) in order]
        fill = []
        if r < 3:
            nxt = reads(r + 1)
        else:
            nxt = []
        if r == 0:
            kvr = [(lambda n=n: a.lds(f'ds_read_b64 v[{KV+2*n}:{KV+2*n+1}], v5 offset:{512*(3-n)}', 'kv')) for n in range(4)]
            interleave(a, mf, kvr + nxt, start=14, per=1)
        else:
            if r == 1:
                a.wait_vm('ep')
            part = pre[(r - 1) * npre // 3: r * npre // 3]
            merged = []
            x, y = list(nxt), list(part)
            while x or y:
                if x:
                    merged.append(x.pop(0))
                for _ in range(3):
                    if y:
                        merged.append(y.pop(0))
            if r == 1:
                a.wait_lg('kv')
            interleave(a, mf, merged, start=0, per=2)
    a.e('s_barrier')
    a.e('s_cmp_eq_u32 s12, 0')
    a.e('s_cbranch_scc0 K1_W1')
    for n in range(4):
        a.lds(f'ds_write_b128 v4, v[{ACC+16+4*n}:{ACC+16+4*n+3}] offset:{1024*n}')
    a.e('s_branch K1_W2')
    a.label('K1_W1')
    for n in range(4):
        a.e(f'ds_write_b128 v4, v[{ACC+4*n}:{ACC+4*n+3}] offset:{1024*n}')
    for n in range(8):
        a.e(f'v_mov_b32 v{ACC+2*n}, v{ACC+16+2*n}') if False else None
    a.label('K1_W2')
    a.wait_lg0()
    a.e('s_barrier')
    RD = 112
    for n in range(4):
        a.lds(f'ds_read_b128 v[{RD+4*n}:{RD+4*n+3}], v6 offset:{1024*n}', f'rd{n}')
    a.e('s_cmp_eq_u32 s12, 0')
    a.e('s_cbranch_scc0 K1_A1')
    lg_save = list(a.lg)
    for n in range(4):
        a.wait_lg(f'rd{n}')
        for k in range(2):
            a.e(f'v_pk_add_f32 v[{RD+4*n+2*k}:{RD+4*n+2*k+1}], v[{RD+4*n+2*k}:{RD+4*n+2*k+1}], v[{ACC+4*n+2*k}:{ACC+4*n+2*k+1}]')
    a.e('s_branch K1_A2')
    a.label('K1_A1')
    a.lg = lg_save
    for n in range(4):
        a.wait_lg(f'rd{n}')
        for k in range(2):
            a.e(f'v_pk_add_f32 v[{RD+4*n+2*k}:{RD+4*n+2*k+1}], v[{RD+4*n+2*k}:{RD+4*n+2*k+1}], v[{ACC+16+4*n+2*k}:{ACC+16+4*n+2*k+1}]')
    a.label('K1_A2')
    items = [(n, k) for n in range(4) for k in range(2)]
    TP = 32

    def allp(fn):
        for s, (n, k) in enumerate(items):
            fn(TP + 4 * s, n, k, RD + 4 * n + 2 * k)
    allp(lambda t, n, k, y: a.e(f'v_cvt_pk_bf16_f32 v{t}, v{y}, v{KVD+4*n+2*k}'))
    allp(lambda t, n, k, y: a.e(f'v_cvt_pk_bf16_f32 v{t+1}, v{y+1}, v{KVD+4*n+2*k+1}'))
    allp(lambda t, n, k, y: a.e(f'v_dot2_f32_bf16 v{t+2}, v{t}, s50, 0'))
    allp(lambda t, n, k, y: a.e(f'v_dot2_f32_bf16 v{t+3}, v{t+1}, s50, 0'))
    allp(lambda t, n, k, y: a.e(f'v_cvt_pk_bf16_f32 v{t}, v{t+2}, 0'))
    allp(lambda t, n, k, y: a.e(f'v_cvt_pk_bf16_f32 v{t+1}, 0, v{t+3}'))
    allp(lambda t, n, k, y: a.e(f'v_dot2_f32_bf16 v{t+2}, v{H+2*n+k}, v{t}, 0'))
    allp(lambda t, n, k, y: a.e(f'v_dot2_f32_bf16 v{t+3}, v{H+2*n+k}, v{t+1}, 0'))
    allp(lambda t, n, k, y: a.e(f'v_cvt_pk_bf16_f32 v{t}, v{t+2}, v{t+3}'))
    allp(lambda t, n, k, y: a.e(f'v_dot2_f32_bf16 v{t+2}, v{t}, v{AL}, 0'))
    allp(lambda t, n, k, y: a.e(f'v_dot2_f32_bf16 v{t+3}, v{t}, v{AH}, 0'))
    allp(lambda t, n, k, y: a.e(f'v_cvt_pk_bf16_f32 v{t}, v{t+2}, v{t+3}'))
    allp(lambda t, n, k, y: a.e(f'v_dot2_f32_bf16 v{t+2}, v{t}, s51, v{QF+4*n+2*k}'))
    allp(lambda t, n, k, y: a.e(f'v_dot2_f32_bf16 v{t+3}, v{t}, s52, v{QF+4*n+2*k+1}'))
    allp(lambda t, n, k, y: a.e(f'v_cvt_pk_bf16_f32 v{RD+2*n+k}, v{t+2}, v{t+3}'))
    for n in range(4):
        a.vmem(f'buffer_store_dwordx2 v[{RD+2*n}:{RD+2*n+1}], v9, s[24:27], s32 offen offset:{512*n}', 'o')
    a.e('s_endpgm')

    a.label('K1_PREP')
    a.vm, a.lg = [], []
    a.e(f's_load_dwordx4 s[4:7], s[0:1], {KA_WG}')
    a.e(f's_load_dwordx2 s[8:9], s[0:1], {KA_WS}')
    a.e(f's_sub_u32 s10, s2, {K1_CONV}')
    a.e('s_and_b32 s11, s10, 1')
    a.e('s_lshr_b32 s12, s10, 1')
    a.e('v_lshrrev_b32 v2, 6, v0')
    a.e('v_and_b32 v1, 63, v0')
    a.e('v_readfirstlane_b32 s13, v2')
    a.e('v_lshrrev_b32 v3, 2, v1')
    a.e('v_and_b32 v4, 3, v1')
    a.e('v_lshl_add_u32 v3, v2, 7, v3')
    a.e('s_movk_i32 s14, 3584')
    a.e('v_mul_lo_u32 v3, v3, s14')
    a.e('v_lshl_add_u32 v3, v4, 4, v3')
    a.e('s_lshl_b32 s15, s12, 6')
    a.e('v_add_u32 v3, s15, v3')
    a.e('v_lshlrev_b32 v5, 3, v0')
    a.e('s_lshl_b32 s16, s13, 13')
    a.e('s_waitcnt lgkmcnt(0)')
    a.e('s_cmp_eq_u32 s11, 0')
    a.e('s_cselect_b32 s4, s4, s6')
    a.e('s_cselect_b32 s5, s5, s7')
    a.srd(20, 4, 512 * 1792 * 2)
    a.srd(24, 8, WS_SIZE)
    a.e(f's_mov_b32 s17, {WS_MOD + 3 * 2048}')
    a.e(f's_mov_b32 s18, {WS_MOD + 4 * 2048}')
    a.vmem('buffer_load_dwordx2 v[10:11], v5, s[24:27], s17 offen', 'sb')
    a.vmem('buffer_load_dwordx2 v[12:13], v5, s[24:27], s18 offen', 'cb')
    for i in range(8):
        a.e(f's_add_u32 s19, s16, {1024 * i}')
        a.e('s_mov_b32 m0, s19')
        a.e(f's_mov_b32 s28, {57344 * i}')
        a.vmem('buffer_load_dwordx4 v3, s[20:23], s28 offen lds', 'w')
    GA = 32768
    a.e('v_lshlrev_b32 v6, 2, v0')
    a.wait_vm('cb')
    a.e('v_add_f32 v12, 1.0, v12')
    a.e('v_add_f32 v13, 1.0, v13')
    a.e('v_cvt_pk_bf16_f32 v14, v12, 0')
    a.e('v_cvt_pk_bf16_f32 v15, 0, v13')
    a.e('v_cvt_pk_bf16_f32 v16, v10, v11')
    a.lds(f'ds_write_b32 v6, v14 offset:{GA}')
    a.lds(f'ds_write_b32 v6, v15 offset:{GA + 1024}')
    a.lds(f'ds_write_b32 v6, v16 offset:{GA + 2048}')
    a.e('v_lshrrev_b32 v7, 4, v1')
    a.e('v_bfe_u32 v8, v1, 2, 2')
    a.e('v_lshl_add_u32 v8, v7, 3, v8')
    a.e('v_lshlrev_b32 v8, 6, v8')
    a.e('v_lshl_add_u32 v8, v4, 3, v8')
    a.e('v_add_u32 v8, s16, v8')
    a.e('v_lshlrev_b32 v9, 4, v7')
    a.e('s_lshl_b32 s19, s13, 8')
    a.e('v_add_u32 v9, s19, v9')
    a.e('v_lshlrev_b32 v17, 4, v1')
    a.e('s_lshl_b32 s29, s12, 16')
    a.e('s_lshl_b32 s30, s13, 14')
    a.e('s_add_u32 s29, s29, s30')
    a.e('s_lshl_b32 s30, s11, 11')
    a.e('s_add_u32 s29, s29, s30')
    a.e(f's_add_u32 s29, s29, {WS_WF}')
    a.e('s_mov_b32 s50, 0x3f803f80')
    a.wait_all()
    a.e('s_barrier')
    U = 20
    for kk in range(4):
        G = 32 + 12 * (kk & 1)
        a.lds(f'ds_read_b128 v[{G}:{G+3}], v9 offset:{GA + 64 * kk}', f'g{kk}')
        a.lds(f'ds_read_b128 v[{G+4}:{G+7}], v9 offset:{GA + 1024 + 64 * kk}', f'g{kk}')
        a.lds(f'ds_read_b128 v[{G+8}:{G+11}], v9 offset:{GA + 2048 + 64 * kk}', f'g{kk}')
        for ft in range(2):
            Wr = 64 + 8 * (kk & 1) + 4 * ft
            for half in range(2):
                a.lds(f'ds_read_b64_tr_b16 v[{Wr+2*half}:{Wr+2*half+1}], v8 offset:{2048 * kk + 256 * half + 32 * ft}', f'g{kk}')
        a.wait_lg(f'g{kk}')
        P = 80
        for ft in range(2):
            Wr = 64 + 8 * (kk & 1) + 4 * ft
            for k in range(4):
                a.e(f'v_dot2_f32_bf16 v{P+16*ft+2*k}, v{Wr+k}, v{G+k}, 0')
                a.e(f'v_dot2_f32_bf16 v{P+16*ft+2*k+1}, v{Wr+k}, v{G+4+k}, 0')
        for ft in range(2):
            Wr = 64 + 8 * (kk & 1) + 4 * ft
            for k in range(4):
                c = '0' if (kk == 0 and k == 0) else f'v{U+2*ft+1}'
                a.e(f'v_dot2_f32_bf16 v{U+2*ft+1}, v{Wr+k}, v{G+8+k}, {c}')
        for ft in range(2):
            O = P + 16 * ft + 8 + 4 * (kk & 1)
            for k in range(4):
                a.e(f'v_cvt_pk_bf16_f32 v{O+k}, v{P+16*ft+2*k}, v{P+16*ft+2*k+1}')
            a.vmem(f'buffer_store_dwordx4 v[{O}:{O+3}], v17, s[24:27], s29 offen offset:{1024 * ft}', 'o')
        for ft in range(2):
            O = P + 16 * ft + 8 + 4 * (kk & 1)
            for k in range(4):
                c = '0' if (kk == 0 and k == 0) else f'v{U+2*ft}'
                a.e(f'v_dot2_f32_bf16 v{U+2*ft}, v{O+k}, s50, {c}')
        a.e('s_add_u32 s29, s29, 4096')
    a.e('s_barrier')
    a.e('v_lshlrev_b32 v6, 4, v0')
    a.lds(f'ds_write_b128 v6, v[{U}:{U+3}]')
    a.wait_lg0()
    a.e('s_barrier')
    a.e('s_cmp_lg_u32 s13, 0')
    a.e('s_cbranch_scc1 K1_END')
    a.e('v_and_b32 v6, 15, v1')
    a.e('v_lshlrev_b32 v6, 4, v6')
    a.e('v_lshl_add_u32 v6, v7, 2, v6')
    for i in range(16):
        a.lds(f'ds_read_b32 v{32+i}, v6 offset:{256 * i}', 'z')
    a.wait_lg0()
    for i in range(1, 16):
        a.e(f'v_add_f32 v32, v32, v{32+i}')
    a.e('v_and_b32 v8, 1, v7')
    a.e('s_movk_i32 s14, 7168')
    a.e('v_mul_lo_u32 v8, v8, s14')
    a.e('v_lshrrev_b32 v9, 1, v7')
    a.e('v_lshl_add_u32 v8, v9, 6, v8')
    a.e('v_and_b32 v9, 15, v1')
    a.e('v_lshl_add_u32 v8, v9, 2, v8')
    a.e('s_mul_i32 s15, s11, 14336')
    a.e('s_lshl_b32 s16, s12, 7')
    a.e('s_add_u32 s15, s15, s16')
    a.e(f's_add_u32 s15, s15, {WS_UT}')
    a.e('buffer_store_dword v32, v8, s[24:27], s15 offen')
    a.label('K1_END')
    a.e('s_endpgm')
    a.end_kernel(name, 256, 64, 128)
    return f'; @launch kernel={name} grid=({K1_CONV + K1_PREP},1,1) block=(256,1,1) lds={K1_LDS}'
```

```python
from gen import *

K2_MAIN = 224
K2_PREP = 28
K2_ST = 131072
K2_LDS = K2_ST + 1024
ADEPTH = 6


def gen_k2(a):
    name = 'k2_gateup_kernel'
    a.begin_kernel(name)
    a.e(f's_cmp_ge_u32 s2, {K2_MAIN + K2_PREP}')
    a.e('s_cbranch_scc1 K2_END')
    a.e(f's_cmp_ge_u32 s2, {K2_MAIN}')
    a.e('s_cbranch_scc1 K2_PREP')
    a.e(f's_load_dwordx2 s[8:9], s[0:1], {KA_WS}')
    a.e('v_lshrrev_b32 v2, 6, v0')
    a.e('v_and_b32 v1, 63, v0')
    a.e('v_readfirstlane_b32 s10, v2')
    a.e('s_and_b32 s11, s2, 7')
    a.e('s_lshr_b32 s12, s2, 3')
    a.e('s_lshr_b32 s13, s11, 1')
    a.e('s_lshl_b32 s13, s13, 2')
    a.e('s_and_b32 s14, s12, 3')
    a.e('s_add_u32 s13, s13, s14')
    a.e('s_and_b32 s14, s11, 1')
    a.e('s_mul_i32 s14, s14, 7')
    a.e('s_lshr_b32 s15, s12, 2')
    a.e('s_add_u32 s14, s14, s15')
    a.e('s_lshl_b32 s15, s14, 2')
    a.e('s_add_u32 s15, s15, s10')
    a.e('v_lshrrev_b32 v3, 4, v1')
    a.e('v_and_b32 v4, 15, v1')
    a.e('v_lshlrev_b32 v5, 1, v3')
    a.e('v_xor_b32 v5, v5, v4')
    a.e('v_lshlrev_b32 v5, 4, v5')
    a.e('v_lshl_add_u32 v16, v3, 12, v5')
    a.e('v_xor_b32 v17, 0x80, v16')
    a.e('v_lshlrev_b32 v18, 4, v1')
    a.e('s_lshl_b32 s16, s13, 8')
    a.e('s_lshl_b32 s17, s10, 17')
    a.e('s_add_u32 s16, s16, s17')
    a.e(f's_add_u32 s16, s16, {WS_X1T}')
    a.e('s_lshl_b32 s17, s10, 13')
    a.e('s_lshl_b32 s18, s15, 16')
    a.e(f's_add_u32 s18, s18, {WS_WF}')
    a.e('s_waitcnt lgkmcnt(0)')
    a.srd(24, 8, WS_SIZE)

    def dma(c):
        for i in range(8):
            a.e(f's_add_u32 s19, s17, {c * 32768 + i * 1024}')
            a.e('s_mov_b32 m0, s19')
            a.e(f's_add_u32 s20, s16, {(128 * c + 4 * i) * 4096}')
            a.vmem(f'buffer_load_dwordx4 v{16 + ((i >> 1) & 1)}, s[24:27], s20 offen lds', f'd{c}')

    def aload(ks):
        fs = []
        for m in range(4):
            def f(m=m):
                if m == 0:
                    a.e(f's_add_u32 s21, s18, {4096 * ks}')
                r = 16 * (ks % ADEPTH) + 4 * m
                a.vmem(f'buffer_load_dwordx4 a[{r}:{r+3}], v18, s[24:27], s21 offen offset:{1024 * m}', f'A{ks}')
            fs.append(f)
        return fs
    dma(0)
    for ks in (0, 1):
        for f in aload(ks):
            f()
    dma(1)
    for ks in (2, 3):
        for f in aload(ks):
            f()
    dma(2)
    for ks in (4, 5):
        for f in aload(ks):
            f()
    dma(3)
    a.e('v_bfe_u32 v5, v1, 2, 2')
    a.e('v_and_b32 v6, 3, v1')
    a.e('v_and_b32 v7, 1, v3')
    a.e('v_lshl_add_u32 v7, v7, 2, v5')
    a.e('v_lshl_add_u32 v5, v3, 3, v5')
    a.e('v_lshlrev_b32 v5, 8, v5')
    a.e('v_lshl_add_u32 v5, v6, 3, v5')
    a.e('s_lshl_b32 s22, s10, 1')
    VB = 8
    for i in range(8):
        a.e(f's_add_u32 s23, s22, {i}')
        a.e('s_and_b32 s23, s23, 7')
        a.e('v_xor_b32 v6, s23, v7')
        a.e(f'v_lshl_add_u32 v{VB+i}, v6, 5, v5')
    BF, ACC = 64, 128
    S = 20
    UT = 24
    a.e('s_mov_b32 s50, 0x3f803f80')
    a.e('v_lshlrev_b32 v19, 4, v3')
    a.e('s_lshl_b32 s28, s15, 7')
    a.e(f's_add_u32 s28, s28, {WS_UT}')

    def bread(ks):
        fs = []
        for i in range(8):
            for half in range(2):
                def f(i=i, half=half):
                    r = BF + 32 * (ks & 1) + 4 * i + 2 * half
                    a.lds(f'ds_read_b64_tr_b16 v[{r}:{r+1}], v{VB+i} offset:{(ks & 7) * 8192 + half * 1024}', f'B{ks}_{i}')
                fs.append(f)
        return fs

    def stats(ks):
        fs = []
        for k in range(4):
            for i in range(2):
                r = BF + 32 * (ks & 1) + 4 * i + k
                c0 = '0' if (ks == 0 and k == 0) else f'v{S+2*i}'
                c1 = '0' if (ks == 0 and k == 0) else f'v{S+2*i+1}'
                fs.append(lambda r=r, i=i, c0=c0: a.e(f'v_dot2_f32_bf16 v{S+2*i}, v{r}, s50, {c0}'))
                fs.append(lambda r=r, i=i, c1=c1: a.e(f'v_dot2_f32_bf16 v{S+2*i+1}, v{r}, v{r}, {c1}'))
        return fs

    def utload():
        fs = []
        for m in range(4):
            for ut in range(2):
                def f(m=m, ut=ut):
                    a.e(f's_add_u32 s29, s28, {(m >> 1) * 14336 + ut * 7168}')
                    r = UT + 8 * m + 4 * ut
                    a.vmem(f'buffer_load_dwordx4 v[{r}:{r+3}], v19, s[24:27], s29 offen offset:{64 * (m & 1)}', 'ut')
                fs.append(f)
        return fs

    a.wait_vm('d0')
    a.e('s_barrier')
    for f in bread(0):
        f()
    for ks in range(16):
        fill = []
        if ks + 1 < 16:
            if (ks + 1) % 4 == 0:
                a.wait_vm(f'd{(ks + 1) // 4}') if f'd{(ks + 1) // 4}' in a.vm else None
                a.e('s_barrier')
            if ks + 1 == 8:
                for i in range(8):
                    a.e(f'v_add_u32 v{VB+i}, 0x10000, v{VB+i}')
            fill += bread(ks + 1)
        if f'A{ks}' in a.vm:
            a.wait_vm(f'A{ks}')
        st = stats(ks)
        k = 0
        late = []
        for i in range(8):
            for m in range(4):
                if m == 0 and f'B{ks}_{i}' in a.lg:
                    a.wait_lg(f'B{ks}_{i}')
                ar = 16 * (ks % ADEPTH) + 4 * m
                br = BF + 32 * (ks & 1) + 4 * i
                d = ACC + 16 * i + 4 * m
                c = '0' if ks == 0 else f'v[{d}:{d+3}]'
                a.e(f'v_mfma_f32_16x16x32_bf16 v[{d}:{d+3}], a[{ar}:{ar+3}], v[{br}:{br+3}], {c}')
                k += 1
                if fill and k >= 1:
                    fill.pop(0)()
                elif k >= 8 and st:
                    st.pop(0)()
                    if st:
                        st.pop(0)()
        if ks + ADEPTH < 16:
            for f in aload(ks + ADEPTH):
                f()
        if ks == 9:
            for f in utload():
                f()
        while st:
            st.pop(0)()
    XR = 64
    a.wait_vm('ut')
    a.e('s_lshl_b32 s23, s14, 13')
    a.e('s_sub_u32 s23, s23, 0x10000')
    for i in range(2):
        a.e(f'v_add_u32 v{5+i}, s23, v{VB+i}')
    for i in range(2):
        for half in range(2):
            a.lds(f'ds_read_b64_tr_b16 v[{XR+4*i+2*half}:{XR+4*i+2*half+1}], v{5+i} offset:{half*1024}', 'x')
    for i in range(2):
        a.e(f'v_add_u32 v{5+i}, 0x10000, v{5+i}')
    a.e('s_cmp_lt_u32 s14, 2')
    a.e('s_cselect_b32 s30, 49152, 0')
    for i in range(2):
        a.e(f'v_add_u32 v{5+i}, s30, v{5+i}')
    a.e('s_cselect_b32 s31, 0, 0x10000')
    for i in range(2):
        a.e(f'v_subrev_u32 v{5+i}, s31, v{5+i}')
    for i in range(2):
        for half in range(2):
            a.lds(f'ds_read_b64_tr_b16 v[{XR+8+4*i+2*half}:{XR+8+4*i+2*half+1}], v{5+i} offset:{half*1024}', 'x2')
    for step in ('v_permlane32_swap_b32', 'v_permlane16_swap_b32'):
        for k in range(4):
            a.e(f'v_mov_b32 v{56+k}, v{S+k}')
        for k in range(4):
            a.e(f'{step} v{S+k}, v{56+k}')
        for k in range(4):
            a.e(f'v_add_f32 v{S+k}, v{S+k}, v{56+k}')
    for i in range(2):
        a.e(f'v_mul_f32 v{S+2*i}, 0x3b000000, v{S+2*i}')
        a.e(f'v_mul_f32 v{S+2*i+1}, 0x3b000000, v{S+2*i+1}')
    for i in range(2):
        a.e(f'v_fma_f32 v{S+2*i+1}, -v{S+2*i}, v{S+2*i}, v{S+2*i+1}')
    for i in range(2):
        a.e(f'v_max_f32 v{S+2*i+1}, 0, v{S+2*i+1}')
    a.rnd2(S + 1, S + 3, S + 1, S + 3, 56)
    a.rnd2(S + 0, S + 2, S + 0, S + 2, 57)
    for i in range(2):
        a.e(f'v_add_f32 v{S+2*i+1}, 0x3727c5ac, v{S+2*i+1}')
    a.rnd2(S + 1, S + 3, S + 1, S + 3, 56)
    for i in range(2):
        a.e(f'v_sqrt_f32 v{S+2*i+1}, v{S+2*i+1}')
    a.rnd2(S + 1, S + 3, S + 1, S + 3, 56)
    for i in range(2):
        a.e(f'v_rcp_f32 v{56+i}, v{S+2*i+1}')
    for i in range(2):
        a.e(f'v_fma_f32 v{S+2*i+1}, -v{S+2*i+1}, v{56+i}, 1.0')
    for i in range(2):
        a.e(f'v_fma_f32 v{S+2*i+1}, v{S+2*i+1}, v{56+i}, v{56+i}')
    for i in range(2):
        a.e(f'v_mul_f32 v{S+2*i}, -v{S+2*i}, v{S+2*i+1}')
    a.e('v_lshlrev_b32 v7, 3, v4')
    a.e('s_lshl_b32 s23, s10, 8')
    a.e('v_add_u32 v5, s23, v7')
    a.e(f'v_add_u32 v5, {K2_ST}, v5')
    a.lds(f'ds_write_b64 v5, v[{S}:{S+1}]', 'sw')
    a.lds(f'ds_write_b64 v5, v[{S+2}:{S+3}] offset:128', 'sw')
    a.e('v_lshlrev_b32 v6, 10, v4')
    a.e('v_lshl_add_u32 v6, v3, 4, v6')
    a.e('s_lshl_b32 s30, s13, 17')
    a.e('s_lshl_b32 s31, s10, 15')
    a.e('s_add_u32 s30, s30, s31')
    a.e('s_lshl_b32 s31, s14, 6')
    a.e('s_add_u32 s30, s30, s31')
    a.e(f's_add_u32 s30, s30, {WS_X1R}')
    a.e('s_add_u32 s31, s30, 16384')
    a.wait_lg('x')
    a.vmem(f'buffer_store_dwordx4 v[{XR}:{XR+3}], v6, s[24:27], s30 offen', 'o')
    a.vmem(f'buffer_store_dwordx4 v[{XR+4}:{XR+7}], v6, s[24:27], s31 offen', 'o')
    a.wait_lg0()
    a.e('s_cmp_lt_u32 s14, 2')
    a.e('s_cbranch_scc0 K2_NOX2')
    a.e(f'buffer_store_dwordx4 v[{XR+8}:{XR+11}], v6, s[24:27], s30 offen offset:896')
    a.e(f'buffer_store_dwordx4 v[{XR+12}:{XR+15}], v6, s[24:27], s31 offen offset:896')
    a.label('K2_NOX2')
    a.e('s_barrier')
    MR = 96
    for i in range(8):
        a.e(f's_add_u32 s23, s22, {i}')
        a.e('s_and_b32 s23, s23, 7')
        a.e('s_lshl_b32 s23, s23, 7')
        a.e(f'v_add_u32 v{VB+i}, s23, v7')
    for i in range(8):
        a.e(f'v_add_u32 v{VB+i}, {K2_ST}, v{VB+i}')
    for i in range(8):
        a.lds(f'ds_read_b64 v[{MR+2*i}:{MR+2*i+1}], v{VB+i}', f'mr{i}')
    a.vm = []
    a.e('s_lshl_b32 s30, s13, 3')
    T0 = 64
    for i in range(8):
        a.wait_lg(f'mr{i}')
        mu, rs = MR + 2 * i, MR + 2 * i + 1
        T = T0 + 16 * (i & 1)
        for m in range(4):
            for p in range(2):
                u = UT + 8 * m + 2 * p
                t = UT + 8 * m + 4 + 2 * p
                d = T + 4 * m + 2 * p
                a.e(f'v_pk_fma_f32 v[{d}:{d+1}], v[{mu}:{mu+1}], v[{u}:{u+1}], v[{t}:{t+1}] op_sel_hi:[0,1,1]')
        for m in range(4):
            for p in range(2):
                d = T + 4 * m + 2 * p
                ac = ACC + 16 * i + 4 * m + 2 * p
                a.e(f'v_pk_fma_f32 v[{ac}:{ac+1}], v[{mu}:{mu+1}], v[{ac}:{ac+1}], v[{d}:{d+1}] op_sel:[1,0,0] op_sel_hi:[1,1,1]')
        for q in range(4):
            g = ACC + 16 * i + 2 * q
            a.e(f'v_cvt_pk_bf16_f32 v{T+q}, v{g}, v{g+1}')
        for q in range(4):
            u = ACC + 16 * i + 8 + 2 * q
            a.e(f'v_cvt_pk_bf16_f32 v{T+4+q}, v{u}, 0')
            a.e(f'v_cvt_pk_bf16_f32 v{T+8+q}, 0, v{u+1}')
        for q in range(4):
            a.e(f'v_pk_max_i16 v{T+q}, v{T+q}, 0')
        for q in range(4):
            g = ACC + 16 * i + 2 * q
            a.e(f'v_dot2_f32_bf16 v{g}, v{T+q}, v{T+4+q}, 0')
            a.e(f'v_dot2_f32_bf16 v{g+1}, v{T+q}, v{T+8+q}, 0')
        a.e(f's_add_u32 s23, s22, {i}')
        a.e('s_and_b32 s23, s23, 7')
        a.e('s_add_u32 s23, s23, s30')
        a.e('s_mul_i32 s23, s23, 56')
        a.e('s_add_u32 s23, s23, s15')
        a.e('s_lshl_b32 s23, s23, 10')
        a.e(f's_add_u32 s23, s23, {WS_HF}')
        for q in range(4):
            g = ACC + 16 * i + 2 * q
            a.e(f'v_cvt_pk_bf16_f32 v{T+12+q}, v{g}, v{g+1}')
        a.vmem(f'buffer_store_dwordx4 v[{T+12}:{T+15}], v18, s[24:27], s23 offen', 'o')
    a.e('s_endpgm')

    a.label('K2_PREP')
    a.vm, a.lg = [], []
    a.e(f's_load_dwordx2 s[4:5], s[0:1], {KA_WD}')
    a.e(f's_load_dwordx2 s[8:9], s[0:1], {KA_WS}')
    a.e(f's_sub_u32 s10, s2, {K2_MAIN}')
    a.e('v_lshrrev_b32 v2, 6, v0')
    a.e('v_and_b32 v1, 63, v0')
    a.e('v_readfirstlane_b32 s13, v2')
    a.e('v_lshlrev_b32 v18, 4, v1')
    a.e('s_lshl_b32 s14, s13, 14')
    a.e('s_lshl_b32 s15, s10, 16')
    a.e('s_add_u32 s15, s15, s14')
    a.e('s_waitcnt lgkmcnt(0)')
    a.srd(20, 4, 1792 * 512 * 2)
    a.srd(24, 8, WS_SIZE)
    for i in range(4):
        a.e(f's_add_u32 s16, s14, {4096 * i}')
        a.e('s_mov_b32 m0, s16')
        a.e(f's_add_u32 s17, s15, {4096 * i}')
        for k in range(4):
            a.vmem(f'buffer_load_dwordx4 v18, s[20:23], s17 offen offset:{1024 * k} lds', 'w')
    a.e('v_lshrrev_b32 v3, 4, v1')
    a.e('v_bfe_u32 v5, v1, 2, 2')
    a.e('v_and_b32 v6, 3, v1')
    a.e('v_lshl_add_u32 v5, v3, 2, v5')
    a.e('v_lshlrev_b32 v5, 10, v5')
    a.e('v_lshl_add_u32 v5, v6, 4, v5')
    a.e('s_lshl_b32 s16, s13, 8')
    a.e('v_add_u32 v5, s16, v5')
    a.e('s_mul_i32 s16, s13, 112')
    a.e('s_lshl_b32 s17, s10, 1')
    a.e('s_add_u32 s16, s16, s17')
    a.e('s_lshl_b32 s16, s16, 12')
    a.e(f's_add_u32 s16, s16, {WS_WDF}')
    a.wait_vm0()
    a.e('s_barrier')
    for dbl in range(2):
        for kbl in range(2):
            R = 32 + 16 * ((2 * dbl + kbl) & 1)
            for tau in range(4):
                for half in range(2):
                    off = kbl * 32768 + half * 16384 + dbl * 128 + (tau >> 1) * 64 + (tau & 1) * 8
                    a.lds(f'ds_read_b64_tr_b16 v[{R+4*tau+2*half}:{R+4*tau+2*half+1}], v5 offset:{off}', f't{tau}')
            a.e(f's_add_u32 s17, s16, {(dbl * 56 + kbl) * 4096}')
            for tau in range(4):
                a.wait_lg(f't{tau}')
                a.vmem(f'buffer_store_dwordx4 v[{R+4*tau}:{R+4*tau+3}], v18, s[24:27], s17 offen offset:{1024 * tau}', 'o')
    a.label('K2_END')
    a.e('s_endpgm')
    a.end_kernel(name, 256 + 16 * ADEPTH, 64, 256)
    return f'; @launch kernel={name} grid=({K2_MAIN + K2_PREP},1,1) block=(256,1,1) lds={K2_LDS}'
```

```python
from gen import *

K3_WG = 256
K3_LDS = 49152
KDEPTH = 7


def gen_k3(a):
    name = 'k3_down_kernel'
    a.begin_kernel(name)
    a.e(f's_cmp_ge_u32 s2, {K3_WG}')
    a.e('s_cbranch_scc1 K3_END')
    a.e(f's_load_dwordx2 s[8:9], s[0:1], {KA_WS}')
    a.e(f's_load_dwordx2 s[4:5], s[0:1], {KA_OUT}')
    a.e('v_lshrrev_b32 v2, 6, v0')
    a.e('v_and_b32 v1, 63, v0')
    a.e('v_readfirstlane_b32 s10, v2')
    a.e('s_and_b32 s11, s2, 7')
    a.e('s_lshl_b32 s11, s11, 2')
    a.e('s_bfe_u32 s12, s2, 0x20003')
    a.e('s_add_u32 s11, s11, s12')
    a.e('s_lshr_b32 s12, s2, 5')
    a.e('v_lshlrev_b32 v18, 4, v1')
    a.e('s_mul_i32 s13, s10, 14')
    a.e('s_mul_i32 s14, s12, 56')
    a.e('s_add_u32 s14, s14, s13')
    a.e('s_lshl_b32 s14, s14, 12')
    a.e(f's_add_u32 s14, s14, {WS_WDF}')
    a.e('s_mul_i32 s15, s11, 224')
    a.e('s_add_u32 s15, s15, s13')
    a.e('s_lshl_b32 s15, s15, 10')
    a.e(f's_add_u32 s15, s15, {WS_HF}')
    for t in range(1, 4):
        a.e(f's_add_u32 s{15+t}, s15, {57344 * t}')
    a.e('s_waitcnt lgkmcnt(0)')
    a.srd(24, 8, WS_SIZE)
    a.srd(28, 4, 2048 * 512 * 2)
    ACC = 64

    def slot(k):
        return 32 * (k % KDEPTH)

    def load(k):
        a.e(f's_add_u32 s20, s14, {4096 * k}')
        if k % 4 == 0 and k > 0:
            for t in range(4):
                a.e(f's_add_u32 s{15+t}, s{15+t}, 4096')
        for t in range(4):
            r = slot(k) + 16 + 4 * t
            a.vmem(f'buffer_load_dwordx4 a[{r}:{r+3}], v18, s[24:27], s{15+t} offen offset:{1024 * (k % 4)}', f'L{k}')
        for tau in range(4):
            r = slot(k) + 4 * tau
            a.vmem(f'buffer_load_dwordx4 a[{r}:{r+3}], v18, s[24:27], s20 offen offset:{1024 * tau}', f'L{k}')
    for k in range(KDEPTH):
        load(k)
    a.e('v_lshrrev_b32 v3, 4, v1')
    a.e('v_and_b32 v4, 15, v1')
    a.e('v_lshlrev_b32 v5, 10, v4')
    a.e('v_lshl_add_u32 v5, v3, 4, v5')
    a.e('s_lshl_b32 s21, s11, 16')
    a.e('s_lshl_b32 s22, s10, 14')
    a.e('s_add_u32 s21, s21, s22')
    a.e('s_lshl_b32 s22, s12, 7')
    a.e('s_add_u32 s21, s21, s22')
    a.e(f's_add_u32 s22, s21, {WS_X1R}')
    a.e('v_lshlrev_b32 v6, 5, v3')
    a.e('s_lshl_b32 s23, s12, 8')
    a.e(f's_add_u32 s23, s23, {WS_MOD + 5 * 2048}')
    for k in range(14):
        a.wait_vm(f'L{k}')
        for tau in range(4):
            for t in range(4):
                d = ACC + 16 * t + 4 * tau
                c = '0' if k == 0 else f'v[{d}:{d+3}]'
                ar, br = slot(k) + 4 * tau, slot(k) + 16 + 4 * t
                a.e(f'v_mfma_f32_16x16x32_bf16 v[{d}:{d+3}], a[{ar}:{ar+3}], a[{br}:{br+3}], {c}')
        if k + KDEPTH < 14:
            load(k + KDEPTH)
        if k == 6:
            X, GB = 8, 40
            for p in range(2):
                a.vmem(f'buffer_load_dwordx4 v[{X+4*p}:{X+4*p+3}], v5, s[24:27], s22 offen offset:{64*p}', 'x')
            for p in range(2):
                for hh in range(2):
                    a.vmem(f'buffer_load_dwordx4 v[{GB+8*p+4*hh}:{GB+8*p+4*hh+3}], v6, s[24:27], s23 offen offset:{128*p+16*hh}', 'x')
    a.e('s_lshl_b32 s32, s10, 12')
    for w in range(4):
        a.e(f's_cmp_eq_u32 s10, {w}')
        a.e(f's_cbranch_scc0 K3_W{w}')
        for t in range(4):
            if t == w:
                continue
            idx = w if w < t else w - 1
            for tau in range(4):
                d = ACC + 16 * t + 4 * tau
                a.e(f'ds_write_b128 v18, v[{d}:{d+3}] offset:{(t * 3 + idx) * 4096 + tau * 1024}')
        if w != 0:
            for r in range(16):
                a.e(f'v_mov_b32 v{ACC+r}, v{ACC+16*w+r}')
        a.label(f'K3_W{w}')
    a.e('s_mul_i32 s32, s10, 12288')
    a.e('v_add_u32 v7, s32, v18')
    a.wait_lg0()
    a.e('s_barrier')
    RD = 80
    for j in range(3):
        for tau in range(4):
            a.lds(f'ds_read_b128 v[{RD+16*j+4*tau}:{RD+16*j+4*tau+3}], v7 offset:{j * 4096 + tau * 1024}', f'r{j}')
    for j in range(3):
        a.wait_lg(f'r{j}')
        for r in range(0, 16, 2):
            a.e(f'v_pk_add_f32 v[{ACC+r}:{ACC+r+1}], v[{ACC+r}:{ACC+r+1}], v[{RD+16*j+r}:{RD+16*j+r+1}]')
    a.wait_vm('x')
    T = 32
    for r in range(0, 16, 2):
        a.rnd2(ACC + r, ACC + r + 1, ACC + r, ACC + r + 1, T + r // 2)
    for r in range(0, 16, 2):
        a.e(f'v_pk_mul_f32 v[{ACC+r}:{ACC+r+1}], v[{ACC+r}:{ACC+r+1}], v[{GB+r}:{GB+r+1}]')
    for r in range(0, 16, 2):
        a.rnd2(ACC + r, ACC + r + 1, ACC + r, ACC + r + 1, T + r // 2)
    for r in range(0, 16, 2):
        a.unpack(RD + r, RD + r + 1, X + r // 2)
    for r in range(0, 16, 2):
        a.e(f'v_pk_add_f32 v[{ACC+r}:{ACC+r+1}], v[{ACC+r}:{ACC+r+1}], v[{RD+r}:{RD+r+1}]')
    for r in range(0, 16, 2):
        a.e(f'v_cvt_pk_bf16_f32 v{T + r // 2}, v{ACC+r}, v{ACC+r+1}')
    for p in range(2):
        a.vmem(f'buffer_store_dwordx4 v[{T+4*p}:{T+4*p+3}], v5, s[28:31], s21 offen offset:{64*p}', 'o')
    a.label('K3_END')
    a.e('s_endpgm')
    a.end_kernel(name, 128 + 32 * KDEPTH, 64, 128)
    return f'; @launch kernel={name} grid=({K3_WG},1,1) block=(256,1,1) lds={K3_LDS}'
```

```python
import sys
import gen
from k1 import gen_k1
ks = [gen.gen_k0, gen_k1]
try:
    from k2 import gen_k2
    ks.append(gen_k2)
    from k3 import gen_k3
    ks.append(gen_k3)
except ImportError:
    pass
out = sys.argv[1] if len(sys.argv) > 1 else 'cur.s'
open(out, 'w').write(gen.build(ks))
```

```python
import sys, re

NAME = 'adaLN_cond__ssm_conv_h3__glu_gated_reglu__prompt'

MB = 1 << 20
WS_KVT = 0 * MB
WS_QT = 2 * MB
WS_X1T = 4 * MB
WS_X1R = 6 * MB
WS_WF = 8 * MB
WS_WDF = 12 * MB
WS_HF = 16 * MB
WS_NM = 24 * MB
WS_RS = 24 * MB + 8192
WS_MOD = 24 * MB + 65536
WS_UT = 24 * MB + 131072
WS_CNT = 24 * MB + 196608
WS_SIZE = 0x10000000
WS_DBG = 32 * MB
import os
STAMPS = bool(os.environ.get('STAMPS'))

KA_Q, KA_K, KA_V, KA_SHIFT, KA_SSMK, KA_SSMD, KA_BX, KA_WG, KA_WU, KA_WD, KA_C, KA_WMOD, KA_OUT, KA_DBG, KA_WS = [8 * i for i in range(15)]


def _regs(tok):
    tok = tok.strip()
    m = re.match(r'^-?\|?([vas])\[(\d+):(\d+)\]\|?$', tok)
    if m:
        return [f'{m.group(1)}{i}' for i in range(int(m.group(2)), int(m.group(3)) + 1)]
    m = re.match(r'^-?\|?([vas])(\d+)\|?$', tok)
    if m:
        return [f'{m.group(1)}{m.group(2)}']
    if tok in ('vcc', 'exec', 'm0'):
        return [tok]
    return []


TRANS = ('v_exp_f32', 'v_log_f32', 'v_rcp_f32', 'v_rsq_f32', 'v_sqrt_f32', 'v_sin_f32', 'v_cos_f32')


class Hazards:
    def __init__(self):
        self.pos = 0
        self.wr = {}
        self.crd = {}
        self.st = {}

    def flush(self, a):
        need = 0
        for r, (p, k, op) in self.wr.items():
            lim = {'mfma': 8, 'dot': 3, 'trans': 2, 'valu': 5 if r[0] in 's' or r in ('vcc', 'exec') else 2, 'salu_m0': 1}.get(k, 0)
            need = max(need, lim - (self.pos - p - 1))
        for r, p in self.crd.items():
            need = max(need, 3 - (self.pos - p - 1))
        for r, p in self.st.items():
            need = max(need, 2 - (self.pos - p - 1))
        self.nop(a, need)
        self.wr, self.crd, self.st = {}, {}, {}

    def nop(self, a, n):
        while n > 0:
            k = min(n, 16)
            a.lines.append(f'    s_nop {k - 1}')
            self.pos += k
            n -= k

    def emit(self, a, l):
        code = l.split(';')[0].strip()
        parts = code.split(None, 1)
        op = parts[0]
        ops = []
        if len(parts) > 1:
            for t in parts[1].split(','):
                ops.append(t.strip().split(' ')[0])
        if op.startswith(('s_cbranch', 's_branch')):
            self.flush(a)
        is_mfma = op.startswith('v_mfma')
        is_valu = op.startswith('v_') and not is_mfma
        is_ds = op.startswith('ds_')
        is_vmem = op.startswith('buffer_') or op.startswith('global_')
        is_dpp = is_valu and ('_dpp' in op or 'quad_perm' in code or 'row_' in code)
        dst, src, srcC, data = [], [], [], []
        if is_mfma:
            dst = _regs(ops[0]); src = _regs(ops[1]) + _regs(ops[2]); srcC = _regs(ops[3])
        elif is_valu:
            if op.startswith('v_permlane') and 'swap' in op:
                dst = _regs(ops[0]) + _regs(ops[1]); src = list(dst)
            elif op.startswith('v_swap'):
                dst = _regs(ops[0]) + _regs(ops[1]); src = list(dst)
            elif op.startswith('v_cmpx'):
                dst = ['exec']; src = sum((_regs(o) for o in ops), [])
            elif op in ('v_add_co_u32', 'v_sub_co_u32', 'v_addc_co_u32', 'v_subb_co_u32'):
                dst = _regs(ops[0]) + _regs(ops[1]); src = sum((_regs(o) for o in ops[2:]), [])
            else:
                dst = _regs(ops[0]); src = sum((_regs(o) for o in ops[1:]), [])
                if op.startswith(('v_fmac', 'v_dot2c', 'v_pk_fmac', 'v_mac')) or is_dpp or op.startswith('v_writelane'):
                    src += dst
                if op.startswith('v_cndmask') and len(ops) == 3:
                    src += ['vcc']
            if op.startswith('v_dot'):
                srcC = _regs(ops[3]) if len(ops) > 3 else list(dst)
        elif is_ds:
            if op.startswith('ds_read') or op.startswith('ds_bpermute') or op.startswith('ds_permute'):
                dst = _regs(ops[0]); src = sum((_regs(o) for o in ops[1:]), [])
            else:
                src = sum((_regs(o) for o in ops), [])
        elif is_vmem:
            if '_load' in op and ' lds' not in code:
                dst = _regs(ops[0]); src = sum((_regs(o) for o in ops[1:]), [])
            elif '_load' in op:
                src = sum((_regs(o) for o in ops), []) + ['m0']
            else:
                src = sum((_regs(o) for o in ops), [])
                if 'x3' in op or 'x4' in op:
                    data = _regs(ops[0] if op.startswith('buffer_') else ops[1])
        elif op.startswith('s_') and ops:
            if not op.startswith(('s_cmp', 's_cbranch', 's_branch', 's_waitcnt', 's_nop', 's_barrier', 's_setprio', 's_endpgm')):
                dst = _regs(ops[0]); src = sum((_regs(o) for o in ops[1:]), [])
                if 'saveexec' in op:
                    dst = dst + ['exec']
        need = 0

        def req(p, n):
            nonlocal need
            need = max(need, n - (self.pos - p - 1))
        for r in set(src + srcC):
            if r not in self.wr:
                continue
            p, k, pop = self.wr[r]
            if k == 'mfma':
                if is_mfma:
                    if r in src:
                        req(p, 8)
                    elif ops[3] != pop:
                        req(p, 6)
                elif is_valu or is_ds or is_vmem:
                    req(p, 8)
            elif k == 'dot':
                if op == pop and r in srcC and r not in _regs(ops[1]) + _regs(ops[2]):
                    pass
                elif is_valu or is_mfma or is_ds or is_vmem:
                    req(p, 3)
            elif k in ('valu', 'trans'):
                if r[0] == 'v' and r != 'vcc' or r[0] == 'a':
                    if is_mfma:
                        req(p, 2)
                    if is_dpp or op.startswith('v_permlane'):
                        req(p, 2)
                    if op.startswith(('v_readlane', 'v_readfirstlane')):
                        req(p, 1)
                    if k == 'trans' and is_valu and op not in TRANS:
                        req(p, 1)
                else:
                    if is_vmem:
                        req(p, 5)
                    if is_valu:
                        req(p, 4 if op.startswith(('v_readlane', 'v_writelane')) else 2)
            elif k == 'salu_m0':
                req(p, 1)
        if 'exec' in self.wr and self.wr['exec'][1] == 'valu':
            p = self.wr['exec'][0]
            if is_mfma or op.startswith(('v_readlane', 'v_readfirstlane', 'v_writelane', 'v_permlane')):
                req(p, 4)
            if is_dpp:
                req(p, 5)
        for r in dst:
            if r in self.wr:
                p, k, pop = self.wr[r]
                if k == 'mfma' and not is_mfma:
                    req(p, 8)
                if k == 'mfma' and is_mfma and ops[0] != pop:
                    req(p, 8)
                if k == 'dot' and op != pop:
                    req(p, 3)
            if is_valu and r in self.crd:
                req(self.crd[r], 3)
            if r in self.st:
                req(self.st[r], 2 if is_valu else 1)
        self.nop(a, need)
        a.lines.append('    ' + l)
        here = self.pos
        if op == 's_nop':
            self.pos += int(ops[0]) + 1
        else:
            self.pos += 1
        for r in dst:
            if is_mfma:
                self.wr[r] = (here, 'mfma', ops[0])
            elif op.startswith('v_dot'):
                self.wr[r] = (here, 'dot', op)
            elif op in TRANS:
                self.wr[r] = (here, 'trans', op)
            elif is_valu:
                self.wr[r] = (here, 'valu', op)
            elif r == 'm0':
                self.wr[r] = (here, 'salu_m0', op)
            else:
                self.wr.pop(r, None)
        if is_mfma:
            for r in srcC:
                self.crd[r] = here
        for r in data:
            self.st[r] = here
        if op.startswith(('s_cbranch', 's_branch')):
            pass


class Asm:
    def __init__(self):
        self.lines = []
        self.vm = []
        self.lg = []
        self.hz = Hazards()

    def e(self, s):
        for l in s.strip('\n').split('\n'):
            l = l.strip()
            if not l:
                continue
            self.hz.emit(self, l)

    def label(self, s):
        self.hz.flush(self)
        self.lines.append(s + ':')

    def raw(self, s):
        self.lines.append(s)

    def vmem(self, s, tag=None):
        self.e(s)
        self.vm.append(tag)

    def lds(self, s, tag=None):
        self.e(s)
        self.lg.append(tag)

    def wait_vm(self, tag):
        idx = max(i for i, t in enumerate(self.vm) if t == tag)
        n = len(self.vm) - 1 - idx
        assert n <= 63
        self.e(f's_waitcnt vmcnt({n})')
        self.vm = self.vm[idx + 1:]

    def wait_lg(self, tag):
        idx = max(i for i, t in enumerate(self.lg) if t == tag)
        n = len(self.lg) - 1 - idx
        if n > 15:
            n = 15
            idx = len(self.lg) - 1 - 15
            self.e(f's_waitcnt lgkmcnt({n})')
            self.lg = self.lg[idx + 1:]
            return self.wait_lg(tag) if tag in self.lg else None
        self.e(f's_waitcnt lgkmcnt({n})')
        self.lg = self.lg[idx + 1:]

    def wait_all(self):
        self.e('s_waitcnt vmcnt(0) lgkmcnt(0)')
        self.vm = []
        self.lg = []

    def wait_vm0(self):
        self.e('s_waitcnt vmcnt(0)')
        self.vm = []

    def wait_lg0(self):
        self.e('s_waitcnt lgkmcnt(0)')
        self.lg = []

    def srd(self, d, base, nbytes):
        self.e(f's_mov_b32 s{d}, s{base}')
        self.e(f's_and_b32 s{d+1}, s{base+1}, 0xffff')
        self.e(f's_mov_b32 s{d+2}, {nbytes}')
        self.e(f's_mov_b32 s{d+3}, 0x00020000')

    def rnd2(self, lo, hi, a, b, tmp):
        self.e(f'v_cvt_pk_bf16_f32 v{tmp}, v{a}, v{b}')
        self.e(f'v_lshlrev_b32 v{lo}, 16, v{tmp}')
        self.e(f'v_and_b32 v{hi}, 0xffff0000, v{tmp}')

    def unpack(self, lo, hi, src):
        self.e(f'v_lshlrev_b32 v{lo}, 16, v{src}')
        self.e(f'v_and_b32 v{hi}, 0xffff0000, v{src}')

    def stamp(self, k):
        if STAMPS:
            self.e(f's_memrealtime s[{70+2*k}:{71+2*k}]')

    def stamp_out(self, kern, srd, n, tid='v0', wshift=8):
        if not STAMPS:
            return
        self.stamp(n)
        self.e('s_mov_b64 exec, -1')
        self.e('s_waitcnt lgkmcnt(0)')
        self.e(f'v_lshrrev_b32 v1, 6, {tid}')
        self.e(f'v_and_b32 v2, 63, {tid}')
        self.e('v_lshlrev_b32 v1, 6, v1')
        self.e('v_lshl_add_u32 v1, v2, 2, v1')
        self.e('v_mov_b32 v3, 0')
        for k in range(n + 1):
            self.e(f'v_writelane_b32 v3, s{70+2*k}, {k}')
        self.e(f's_lshl_b32 s68, s2, {wshift}')
        self.e(f's_add_u32 s68, s68, {WS_DBG + kern * MB}')
        self.e('v_cmp_gt_u32 vcc, 16, v2')
        self.e('s_and_saveexec_b64 s[66:67], vcc')
        self.e(f'buffer_store_dword v3, v1, s[{srd}:{srd+3}], s68 offen')

    def begin_kernel(self, name):
        self.raw('.text')
        self.raw(f'.globl {name}')
        self.raw('.p2align 8')
        self.raw(f'.type {name},@function')
        self.label(name)
        self.vm = []
        self.lg = []

    def end_kernel(self, name, vgpr, sgpr, accum):
        self.raw('.section .rodata,"a"')
        self.raw('.p2align 6')
        self.raw(f'.amdhsa_kernel {name}')
        self.raw(f'  .amdhsa_next_free_vgpr {vgpr}')
        self.raw(f'  .amdhsa_next_free_sgpr {102 if STAMPS else sgpr}')
        self.raw(f'  .amdhsa_accum_offset {accum}')
        self.raw('  .amdhsa_group_segment_fixed_size 0')
        self.raw('  .amdhsa_kernarg_size 120')
        self.raw('  .amdhsa_user_sgpr_count 2')
        self.raw('  .amdhsa_user_sgpr_kernarg_segment_ptr 1')
        self.raw('  .amdhsa_system_sgpr_workgroup_id_x 1')
        self.raw('  .amdhsa_float_denorm_mode_32 3')
        self.raw('.end_amdhsa_kernel')

    def text(self):
        return '\n'.join(self.lines) + '\n'


def row_reduce_add(a, regs):
    for mod in ('quad_perm:[1,0,3,2]', 'quad_perm:[2,3,0,1]', 'row_half_mirror', 'row_mirror'):
        for r in regs:
            a.e(f'v_add_f32_dpp v{r}, v{r}, v{r} {mod} row_mask:0xf bank_mask:0xf')
        if len(regs) < 3:
            a.e(f's_nop {2 - len(regs)}' if len(regs) < 2 else 's_nop 0')


def wave_total(a, regs, sbase):
    a.e('s_nop 0')
    for i, r in enumerate(regs):
        for k in range(4):
            a.e(f'v_readlane_b32 s{sbase + 4 * i + k}, v{r}, {16 * k}')
    a.e('s_nop 1')
    for i, r in enumerate(regs):
        a.e(f'v_mov_b32 v{r}, s{sbase + 4 * i}')
    for k in range(1, 4):
        for i, r in enumerate(regs):
            a.e(f'v_add_f32 v{r}, s{sbase + 4 * i + k}, v{r}')


K0_TILES = 256
K0_MODWG = 96
K0_WDWG = 64
K0_LDS = 28672


def gen_k0(a):
    name = 'k0_prep_kernel'
    a.begin_kernel(name)
    a.e(f's_cmp_ge_u32 s2, {K0_TILES + K0_MODWG + K0_WDWG}')
    a.e('s_cbranch_scc1 K0_END')
    a.e(f's_cmp_ge_u32 s2, {K0_TILES + K0_MODWG}')
    a.e('s_cbranch_scc1 K0_WD')
    a.e(f's_cmp_ge_u32 s2, {K0_TILES}')
    a.e('s_cbranch_scc1 K0_MOD')
    a.stamp(0)
    a.e(f's_load_dwordx4 s[4:7], s[0:1], {KA_Q}')
    a.e(f's_load_dwordx4 s[8:11], s[0:1], {KA_V}')
    a.e(f's_load_dwordx2 s[12:13], s[0:1], {KA_WS}')
    a.e('s_lshr_b32 s14, s2, 3')
    a.e('s_and_b32 s15, s2, 7')
    a.e('v_and_b32 v1, 31, v0')
    a.e('v_lshrrev_b32 v2, 5, v0')
    a.e('s_lshl_b32 s16, s14, 6')
    a.e('v_lshlrev_b32 v3, 3, v2')
    a.e('v_add_u32 v3, s16, v3')
    a.e('s_lshl_b32 s17, s15, 7')
    a.e('v_lshlrev_b32 v4, 2, v1')
    a.e('v_add_u32 v4, s17, v4')
    a.e('v_lshl_add_u32 v5, v3, 10, v4')
    a.e('v_subrev_u32 v6, 3072, v5')
    a.e('v_subrev_u32 v7, 2048, v5')
    a.e('v_subrev_u32 v8, 1024, v5')
    a.e('v_add_u32 v9, 4096, v5')
    a.e('v_lshlrev_b32 v44, 2, v4')
    a.e('v_lshrrev_b32 v45, 6, v0')
    a.e('v_and_b32 v46, 63, v0')
    a.e('s_lshl_b32 s18, s2, 3')
    a.e('v_lshlrev_b32 v47, 1, v45')
    a.e('v_add_u32 v47, s18, v47')
    a.e('v_lshlrev_b32 v48, 4, v46')
    a.e('v_lshl_add_u32 v48, v47, 10, v48')
    a.e('s_waitcnt lgkmcnt(0)')
    a.srd(20, 4, 2097152)
    a.srd(24, 6, 2097152)
    a.srd(28, 8, 2097152)
    a.srd(32, 10, 4096)
    a.srd(36, 12, WS_SIZE)
    a.vmem('buffer_load_dwordx4 v[40:43], v44, s[32:35], 0 offen', 'sh')
    for i, r in enumerate((6, 7, 8)):
        a.vmem(f'buffer_load_dword v{10 + i}, v{r}, s[24:27], 0 offen', 'k')
    for i in range(8):
        a.vmem(f'buffer_load_dword v{13 + i}, v{5 if i < 4 else 9}, s[24:27], 0 offen offset:{1024 * (i & 3)}', 'k')
    for i in range(8):
        a.vmem(f'buffer_load_dword v{21 + i}, v{5 if i < 4 else 9}, s[28:31], 0 offen offset:{1024 * (i & 3)}', 'v')
    for i in range(8):
        a.vmem(f'buffer_load_dword v{29 + i}, v{5 if i < 4 else 9}, s[20:23], 0 offen offset:{1024 * (i & 3)}', 'q')
    a.vmem('buffer_load_dwordx4 v[52:55], v48, s[20:23], 0 offen', 'st')
    a.vmem('buffer_load_dwordx4 v[56:59], v48, s[20:23], 0 offen offset:1024', 'st')
    a.e('v_lshlrev_b32 v49, 11, v4')
    a.e('v_lshlrev_b32 v50, 1, v3')
    a.e('v_add_u32 v51, v49, v50')
    a.e(f'v_add_u32 v51, {WS_QT}, v51')
    a.e('v_sub_u32 v50, 4080, v50')
    a.e('v_add_u32 v49, v49, v50')
    a.wait_vm('sh')
    W0, W1 = 60, 64
    a.unpack(W0 + 0, W0 + 1, 40)
    a.unpack(W0 + 2, W0 + 3, 41)
    a.unpack(W1 + 0, W1 + 1, 42)
    a.unpack(W1 + 2, W1 + 3, 43)
    a.wait_vm('k')
    a.stamp(1)
    KL, KH = 70, 82
    for i in range(11):
        a.unpack(KL + i, KH + i, 10 + i)
    a.wait_vm('v')
    R = 100
    for i in range(8):
        A0, A1, P0, P1, T = 94, 95, 96, 97, 98
        a.e(f'v_mul_f32 v{P0}, v{KL + i}, v{W0 + 3}')
        a.e(f'v_mul_f32 v{P1}, v{KH + i}, v{W1 + 3}')
        a.rnd2(A0, A1, P0, P1, T)
        for t in range(1, 4):
            a.e(f'v_mul_f32 v{P0}, v{KL + i + t}, v{W0 + 3 - t}')
            a.e(f'v_mul_f32 v{P1}, v{KH + i + t}, v{W1 + 3 - t}')
            a.rnd2(P0, P1, P0, P1, T)
            a.e(f'v_add_f32 v{A0}, v{A0}, v{P0}')
            a.e(f'v_add_f32 v{A1}, v{A1}, v{P1}')
            a.rnd2(A0, A1, A0, A1, T)
        a.unpack(P0, P1, 21 + i)
        a.e(f'v_mul_f32 v{P0}, v{A0}, v{P0}')
        a.e(f'v_mul_f32 v{P1}, v{A1}, v{P1}')
        a.e(f'v_cvt_pk_bf16_f32 v{R + i}, v{P0}, v{P1}')
    a.e('s_mov_b32 s40, 0x05040100')
    a.e('s_mov_b32 s41, 0x07060302')
    O = 108
    for j in range(4):
        a.e(f'v_perm_b32 v{O + j}, v{R + 6 - 2 * j}, v{R + 7 - 2 * j}, s40')
        a.e(f'v_perm_b32 v{O + 4 + j}, v{R + 6 - 2 * j}, v{R + 7 - 2 * j}, s41')
    a.vmem(f'buffer_store_dwordx4 v[{O}:{O + 3}], v49, s[36:39], 0 offen', 'o')
    a.e('v_add_u32 v50, 4096, v49')
    a.vmem(f'buffer_store_dwordx4 v[{O + 4}:{O + 7}], v50, s[36:39], 0 offen', 'o')
    a.wait_vm('q')
    O2 = 116
    for j in range(4):
        a.e(f'v_perm_b32 v{O2 + j}, v{29 + 2 * j + 1}, v{29 + 2 * j}, s40')
        a.e(f'v_perm_b32 v{O2 + 4 + j}, v{29 + 2 * j + 1}, v{29 + 2 * j}, s41')
    a.vmem(f'buffer_store_dwordx4 v[{O2}:{O2 + 3}], v51, s[36:39], 0 offen', 'o')
    a.e('v_add_u32 v50, 4096, v51')
    a.vmem(f'buffer_store_dwordx4 v[{O2 + 4}:{O2 + 7}], v50, s[36:39], 0 offen', 'o')
    a.wait_vm('st')
    X = 70
    for r in range(2):
        for j in range(4):
            a.unpack(X + 8 * r + 2 * j, X + 8 * r + 2 * j + 1, 52 + 4 * r + j)
    S0, S1 = 90, 91
    for r, S in ((0, S0), (1, S1)):
        a.e(f'v_add_f32 v{S}, v{X + 8 * r}, v{X + 8 * r + 1}')
        for j in range(2, 8):
            a.e(f'v_add_f32 v{S}, v{S}, v{X + 8 * r + j}')
    a.e('s_nop 1')
    row_reduce_add(a, [S0, S1])
    wave_total(a, [S0, S1], 44)
    a.e(f'v_mul_f32 v{S0}, 0x3b000000, v{S0}')
    a.e(f'v_mul_f32 v{S1}, 0x3b000000, v{S1}')
    Q0, Q1 = 92, 93
    for r, S, Q in ((0, S0, Q0), (1, S1, Q1)):
        for j in range(8):
            a.e(f'v_sub_f32 v{X + 8 * r + j}, v{X + 8 * r + j}, v{S}')
        a.e(f'v_mul_f32 v{Q}, v{X + 8 * r}, v{X + 8 * r}')
        for j in range(1, 8):
            a.e(f'v_fmac_f32 v{Q}, v{X + 8 * r + j}, v{X + 8 * r + j}')
    a.e('s_nop 1')
    row_reduce_add(a, [Q0, Q1])
    wave_total(a, [Q0, Q1], 44)
    a.e(f'v_mul_f32 v{Q0}, 0x3b000000, v{Q0}')
    a.e(f'v_mul_f32 v{Q1}, 0x3b000000, v{Q1}')
    a.rnd2(Q0, Q1, Q0, Q1, 94)
    a.e(f'v_add_f32 v{Q0}, 0x3727c5ac, v{Q0}')
    a.e(f'v_add_f32 v{Q1}, 0x3727c5ac, v{Q1}')
    a.rnd2(Q0, Q1, Q0, Q1, 94)
    a.e(f'v_sqrt_f32 v{Q0}, v{Q0}')
    a.e(f'v_sqrt_f32 v{Q1}, v{Q1}')
    a.rnd2(Q0, Q1, Q0, Q1, 94)
    a.rnd2(S0, S1, S0, S1, 94)
    a.e(f'v_rcp_f32 v94, v{Q0}')
    a.e(f'v_rcp_f32 v95, v{Q1}')
    a.e(f'v_xor_b32 v{S0}, 0x80000000, v{S0}')
    a.e(f'v_xor_b32 v{S1}, 0x80000000, v{S1}')
    a.e(f'v_fma_f32 v{Q0}, -v{Q0}, v94, 1.0')
    a.e(f'v_fma_f32 v{Q1}, -v{Q1}, v95, 1.0')
    a.e(f'v_fmac_f32 v94, v{Q0}, v94')
    a.e(f'v_fmac_f32 v95, v{Q1}, v95')
    a.e('v_lshlrev_b32 v96, 2, v47')
    a.e(f'v_add_u32 v96, {WS_NM}, v96')
    a.e(f'v_add_u32 v97, {WS_RS - WS_NM}, v96')
    a.e('v_cmp_eq_u32 vcc, 0, v46')
    a.e('s_and_saveexec_b64 s[42:43], vcc')
    a.vmem(f'buffer_store_dwordx2 v[{S0}:{S1}], v96, s[36:39], 0 offen', 'o')
    a.vmem('buffer_store_dwordx2 v[94:95], v97, s[36:39], 0 offen', 'o')
    a.stamp(2)
    if STAMPS:
        a.e('s_waitcnt vmcnt(0)')
    a.stamp_out(0, 36, 3)
    a.e('s_endpgm')
    a.label('K0_MOD')
    a.vm = []
    a.e(f's_load_dwordx4 s[4:7], s[0:1], {KA_C}')
    a.e(f's_load_dwordx2 s[12:13], s[0:1], {KA_WS}')
    a.e(f's_sub_u32 s14, s2, {K0_TILES}')
    a.e('s_and_b32 s15, s14, 7')
    a.e('s_lshr_b32 s16, s14, 3')
    a.e('s_mul_i32 s15, s15, 12')
    a.e('s_add_u32 s15, s15, s16')
    a.e('s_lshl_b32 s17, s15, 6')
    a.e('v_and_b32 v1, 63, v0')
    a.e('v_lshrrev_b32 v2, 6, v0')
    a.e('v_lshrrev_b32 v3, 2, v1')
    a.e('v_and_b32 v4, 3, v1')
    a.e('v_lshl_add_u32 v5, v2, 7, v3')
    a.e('s_movk_i32 s18, 6144')
    a.e('v_mul_lo_u32 v6, v5, s18')
    a.e('v_lshl_add_u32 v6, v4, 4, v6')
    a.e('v_add_u32 v6, s17, v6')
    a.e('v_lshlrev_b32 v7, 1, v5')
    a.e('s_waitcnt lgkmcnt(0)')
    a.srd(20, 4, 1024)
    a.srd(24, 6, 3145728)
    a.srd(36, 12, WS_SIZE)
    for i in range(8):
        a.vmem(f'buffer_load_ushort v{10 + i}, v7, s[20:23], 0 offen offset:{32 * i}', 'c')
    for i in range(8):
        a.e(f's_mov_b32 s{44 + i}, {98304 * i}')
    for i in range(8):
        a.vmem(f'buffer_load_dwordx4 v[{20 + 4 * i}:{23 + 4 * i}], v6, s[24:27], s{44 + i} offen', f'w{i}')
    a.wait_vm('c')
    for i in range(8):
        a.e(f'v_lshlrev_b32 v{10 + i}, 16, v{10 + i}')
        a.e(f'v_mul_f32 v{60 + i}, 0xbfb8aa3b, v{10 + i}')
    for i in range(8):
        a.e(f'v_exp_f32 v{60 + i}, v{60 + i}')
    a.e('s_nop 0')
    for i in range(8):
        a.e(f'v_add_f32 v{60 + i}, 1.0, v{60 + i}')
    for i in range(8):
        a.e(f'v_rcp_f32 v{60 + i}, v{60 + i}')
    a.e('s_nop 0')
    for i in range(8):
        a.e(f'v_mul_f32 v{60 + i}, v{10 + i}, v{60 + i}')
    for i in range(0, 8, 2):
        a.rnd2(60 + i, 61 + i, 60 + i, 61 + i, 68)
    ACC = 72
    for i in range(8):
        a.wait_vm(f'w{i}')
        for j in range(4):
            a.unpack(80, 81, 20 + 4 * i + j)
            if i == 0:
                a.e(f'v_mul_f32 v{ACC + 2 * j}, v80, v60')
                a.e(f'v_mul_f32 v{ACC + 2 * j + 1}, v81, v60')
            else:
                a.e(f'v_fmac_f32 v{ACC + 2 * j}, v80, v{60 + i}')
                a.e(f'v_fmac_f32 v{ACC + 2 * j + 1}, v81, v{60 + i}')
    a.e('s_nop 1')
    for mod in ('row_ror:4', 'row_ror:8'):
        for j in range(8):
            a.e(f'v_add_f32_dpp v{ACC + j}, v{ACC + j}, v{ACC + j} {mod} row_mask:0xf bank_mask:0xf')
    a.e('v_lshrrev_b32 v8, 4, v1')
    a.e('v_lshl_add_u32 v8, v2, 2, v8')
    a.e('v_lshl_add_u32 v8, v8, 2, v4')
    a.e('v_lshlrev_b32 v8, 5, v8')
    a.e('v_and_b32 v9, 12, v1')
    a.e('v_cmp_eq_u32 vcc, 0, v9')
    a.e('s_and_saveexec_b64 s[42:43], vcc')
    a.e(f'ds_write_b128 v8, v[{ACC}:{ACC + 3}]')
    a.e(f'ds_write_b128 v8, v[{ACC + 4}:{ACC + 7}] offset:16')
    a.e('s_mov_b64 exec, s[42:43]')
    a.e('s_waitcnt lgkmcnt(0)')
    a.e('s_barrier')
    a.e('v_cmp_gt_u32 vcc, 32, v0')
    a.e('s_and_saveexec_b64 s[42:43], vcc')
    a.e('s_cbranch_execz K0_END')
    a.e('v_lshlrev_b32 v8, 2, v0')
    for i in range(16):
        a.e(f'ds_read_b32 v{20 + i}, v8 offset:{128 * i}')
    a.e('s_waitcnt lgkmcnt(0)')
    for i in range(1, 16):
        a.e(f'v_add_f32 v20, v20, v{20 + i}')
    a.rnd2(20, 21, 20, 20, 22)
    a.e('s_lshl_b32 s17, s15, 7')
    a.e(f's_add_u32 s17, s17, {WS_MOD}')
    a.e('buffer_store_dword v20, v8, s[36:39], s17 offen')
    a.e('s_endpgm')
    a.label('K0_WD')
    a.vm, a.lg = [], []
    a.e(f's_load_dwordx2 s[4:5], s[0:1], {KA_WD}')
    a.e(f's_load_dwordx2 s[8:9], s[0:1], {KA_WS}')
    a.e(f's_sub_u32 s10, s2, {K0_TILES + K0_MODWG}')
    a.e('s_lshr_b32 s11, s10, 2')
    a.e('s_and_b32 s12, s10, 3')
    a.e('v_lshrrev_b32 v2, 6, v0')
    a.e('v_and_b32 v1, 63, v0')
    a.e('v_readfirstlane_b32 s13, v2')
    a.e('v_lshrrev_b32 v3, 4, v1')
    a.e('v_and_b32 v4, 15, v1')
    a.e('v_lshlrev_b32 v5, 4, v4')
    a.e('v_lshl_add_u32 v5, v3, 10, v5')
    a.e('v_lshlrev_b32 v18, 4, v1')
    a.e('s_mul_i32 s14, s11, 114688')
    a.e('s_lshl_b32 s15, s12, 8')
    a.e('s_add_u32 s14, s14, s15')
    a.e('s_mul_i32 s15, s13, 28672')
    a.e('s_add_u32 s14, s14, s15')
    a.e('s_mul_i32 s16, s13, 7168')
    a.e('s_waitcnt lgkmcnt(0)')
    a.srd(20, 4, 1792 * 512 * 2)
    a.srd(24, 8, WS_SIZE)
    for i in range(7):
        a.e(f's_add_u32 m0, s16, {1024 * i}')
        a.e(f's_add_u32 s17, s14, {4096 * i}')
        a.vmem('buffer_load_dwordx4 v5, s[20:23], s17 offen lds', 'w')
    a.e('s_cmp_lg_u32 s10, 0')
    a.e('s_cbranch_scc1 K0_WD1')
    a.e('v_lshlrev_b32 v6, 7, v0')
    a.e('v_mov_b32 v7, 0')
    a.e(f's_mov_b32 s17, {WS_CNT}')
    a.e('v_cmp_gt_u32 vcc, 16, v0')
    a.e('s_and_saveexec_b64 s[42:43], vcc')
    a.e('s_cbranch_execz K0_WD0')
    a.e('buffer_store_dword v7, v6, s[24:27], s17 offen')
    a.label('K0_WD0')
    a.e('s_mov_b64 exec, s[42:43]')
    a.label('K0_WD1')
    a.e('v_bfe_u32 v6, v1, 2, 2')
    a.e('v_and_b32 v7, 3, v1')
    a.e('v_lshl_add_u32 v6, v3, 2, v6')
    a.e('v_lshlrev_b32 v6, 8, v6')
    a.e('v_lshl_add_u32 v6, v7, 4, v6')
    a.e('s_lshr_b32 s15, s13, 1')
    a.e('s_and_b32 s16, s13, 1')
    a.e('s_lshl_b32 s17, s15, 6')
    a.e('s_lshl_b32 s18, s16, 3')
    a.e('s_add_u32 s17, s17, s18')
    a.e('v_add_u32 v8, s17, v6')
    a.e('s_lshl_b32 s17, s15, 7')
    a.e('s_lshl_b32 s18, s16, 6')
    a.e('s_add_u32 s17, s17, s18')
    a.e('v_add_u32 v9, s17, v6')
    a.e('s_lshl_b32 s17, s12, 5')
    a.e('s_add_u32 s17, s17, s11')
    a.e('s_mul_i32 s17, s17, 14336')
    a.e(f's_add_u32 s17, s17, {WS_WDF}')
    a.e('s_lshl_b32 s18, s13, 10')
    a.e('s_add_u32 s18, s18, s17')
    a.e('s_mul_i32 s19, s15, 229376')
    a.e('s_add_u32 s19, s19, s17')
    a.e('s_lshl_b32 s28, s16, 10')
    a.e('s_add_u32 s19, s19, s28')
    a.e('s_add_u32 s19, s19, 12288')
    a.wait_vm0()
    a.e('s_barrier')
    n = 0
    for dbl in range(2):
        for kb in range(3):
            for half in range(2):
                a.lds(f'ds_read_b64_tr_b16 v[{32+4*n+2*half}:{33+4*n+2*half}], v8 offset:{(32*kb+16*half)*256 + 128*dbl}', f't{n}')
            n += 1
    for half in range(2):
        a.lds(f'ds_read_b64_tr_b16 v[{32+4*n+2*half}:{33+4*n+2*half}], v9 offset:{96*256 + 8*half}', f't{n}')
    n = 0
    for dbl in range(2):
        for kb in range(3):
            a.e(f's_add_u32 s28, s18, {dbl * 229376 + kb * 4096}')
            a.wait_lg(f't{n}')
            a.vmem(f'buffer_store_dwordx4 v[{32+4*n}:{35+4*n}], v18, s[24:27], s28 offen', 'o')
            n += 1
    a.wait_lg(f't{n}')
    a.vmem(f'buffer_store_dwordx4 v[{32+4*n}:{35+4*n}], v18, s[24:27], s19 offen', 'o')
    a.label('K0_END')
    a.e('s_endpgm')
    a.end_kernel(name, 128, 64, 128)
    return f'; @launch kernel={name} grid=({K0_TILES + K0_MODWG + K0_WDWG},1,1) block=(256,1,1) lds={K0_LDS}'


HEADER = open('cdna_kernels/' + NAME + '.s.ref').read().split('; Override launch')[0]


def build(kernels):
    a = Asm()
    launches = [k(a) for k in kernels]
    return HEADER + '\n'.join(launches) + '\n.amdgcn_target "amdgcn-amd-amdhsa--gfx950"\n' + a.text()


if __name__ == '__main__':
    ks = [gen_k0]
    out = sys.argv[1] if len(sys.argv) > 1 else 'cur.s'
    open(out, 'w').write(build(ks))
```

```python
from gen import *

K1_CONV = 256
K1_PREP = 112
K1_CH = 39424
KC_STRIDE = 4352
KC_OFFS = [0, 5, 4, 10, 14, 2, 12, 8]
KC_NIB = 0x8C2EA450
R_OFF = 34816
K1_LDS = 2 * K1_CH


def interleave(a, mf, fill, start=0, per=1):
    fi = 0
    for k, m in enumerate(mf):
        m()
        if k >= start:
            for _ in range(per):
                if fi < len(fill):
                    fill[fi]()
                    fi += 1
    while fi < len(fill):
        fill[fi]()
        fi += 1


def gen_k1(a):
    name = 'k1_conv_kernel'
    a.begin_kernel(name)
    a.e(f's_cmp_ge_u32 s2, {K1_CONV + K1_PREP}')
    a.e('s_cbranch_scc1 K1_END')
    a.e(f's_cmp_ge_u32 s2, {K1_CONV}')
    a.e('s_cbranch_scc1 K1_PREP')
    a.stamp(0)
    a.e(f's_load_dwordx4 s[4:7], s[0:1], {KA_SSMK}')
    a.e(f's_load_dwordx2 s[8:9], s[0:1], {KA_WS}')
    a.e('v_lshrrev_b32 v2, 6, v0')
    a.e('v_and_b32 v1, 63, v0')
    a.e('v_readfirstlane_b32 s10, v2')
    a.e('v_and_b32 v3, 127, v0')
    a.e('v_lshlrev_b32 v4, 4, v3')
    a.e('v_subrev_u32 v5, 16, v4')
    a.e('s_lshr_b32 s11, s10, 1')
    a.e('s_and_b32 s12, s10, 1')
    a.e('s_lshl_b32 s13, s2, 1')
    a.e('s_add_u32 s13, s13, s11')
    a.e(f's_mul_i32 s14, s11, {K1_CH}')
    a.e('s_lshl_b32 s15, s13, 12')
    a.e('s_lshl_b32 s16, s12, 11')
    a.e('s_add_u32 s17, s15, s16')
    a.e('v_lshlrev_b32 v6, 4, v1')
    a.e('v_and_b32 v7, 15, v1')
    a.e('v_lshrrev_b32 v8, 4, v1')
    a.e('v_lshlrev_b32 v9, 5, v7')
    a.e('v_lshl_add_u32 v9, v8, 3, v9')
    a.e('v_lshlrev_b32 v18, 1, v9')
    a.e(f's_add_u32 s18, s14, {R_OFF}')
    a.e('s_add_u32 s18, s18, s16')
    a.e('s_lshl_b32 s19, s13, 2')
    a.e(f's_add_u32 s19, s19, {WS_MOD}')
    a.e('s_add_u32 s40, s19, 2048')
    a.e('s_add_u32 s41, s19, 4096')
    a.e('s_lshl_b32 s42, s13, 1')
    a.e('s_and_b32 s42, s42, 0xfffffffc')
    a.e('s_waitcnt lgkmcnt(0)')
    a.e('s_add_u32 s4, s4, s15')
    a.e('s_addc_u32 s5, s5, 0')
    a.srd(20, 4, 4096)
    a.srd(24, 8, WS_SIZE)
    a.e('s_load_dword s44, s[8:9], s19')
    a.e('s_load_dword s45, s[8:9], s40')
    a.e('s_load_dword s46, s[8:9], s41')
    a.e('s_load_dword s47, s[6:7], s42')
    L = 32
    a.vmem(f'buffer_load_dwordx4 v[{L}:{L+3}], v5, s[20:23], 0 offen', 'k0')
    a.vmem(f'buffer_load_dwordx4 v[{L+4}:{L+7}], v4, s[20:23], 0 offen', 'k0')
    a.vmem(f'buffer_load_dwordx4 v[{L+8}:{L+11}], v4, s[20:23], 0 offen offset:2032', 'k1')
    a.vmem(f'buffer_load_dwordx4 v[{L+12}:{L+15}], v4, s[20:23], 0 offen offset:2048', 'k1')
    a.e('s_mov_b32 m0, s18')
    a.vmem('buffer_load_dwordx4 v6, s[24:27], s17 offen lds', 'r')
    a.vmem('buffer_load_dwordx4 v6, s[24:27], s17 offen offset:1024 lds', 'r')
    NM, RS, Q, KV = 64, 80, 96, 104
    a.e(f's_add_u32 s28, s17, {WS_QT}')
    a.e('s_lshl_b32 s29, s12, 12')
    a.e(f's_add_u32 s30, s29, {WS_NM}')
    a.e(f's_add_u32 s31, s29, {WS_RS}')
    a.e(f's_add_u32 s32, s17, {WS_X1T}')
    for n in range(4):
        a.vmem(f'buffer_load_dwordx2 v[{Q+2*n}:{Q+2*n+1}], v9, s[24:27], s28 offen offset:{512*n}', 'ep')
        a.vmem(f'buffer_load_dwordx4 v[{NM+4*n}:{NM+4*n+3}], v18, s[24:27], s30 offen offset:{1024*n}', 'ep')
        a.vmem(f'buffer_load_dwordx4 v[{RS+4*n}:{RS+4*n+3}], v18, s[24:27], s31 offen offset:{1024*n}', 'ep')
    Z = 28
    for i in range(4):
        a.e(f'v_mov_b32 v{Z+i}, 0')
    a.e('v_and_b32 v19, 7, v3')
    a.e('v_lshlrev_b32 v20, 2, v19')
    a.e(f's_mov_b32 s33, 0x{KC_NIB:08x}')
    a.e('v_lshrrev_b32 v20, v20, s33')
    a.e('v_and_b32 v20, 15, v20')
    a.e(f's_movk_i32 s34, {KC_STRIDE}')
    a.e('v_mul_lo_u32 v19, v19, s34')
    a.e('v_lshl_add_u32 v19, v20, 4, v19')
    a.e('v_lshrrev_b32 v20, 3, v3')
    a.e('v_lshl_add_u32 v19, v20, 4, v19')
    a.e('v_add_u32 v19, s14, v19')
    a.e('v_cmp_gt_u32 vcc, 9, v3')
    a.e('s_and_saveexec_b64 s[36:37], vcc')
    a.lds(f'ds_write_b128 v19, v[{Z}:{Z+3}]')
    a.e('s_mov_b64 exec, s[36:37]')
    a.e('v_add_u32 v21, s14, v4')
    a.e('v_subrev_u32 v20, 64, v3')
    a.e('v_cmp_gt_u32 vcc, 30, v20')
    a.e('s_and_saveexec_b64 s[36:37], vcc')
    a.lds(f'ds_write_b128 v21, v[{Z}:{Z+3}] offset:{R_OFF + 4096 - 1024}')
    a.e('s_mov_b64 exec, s[36:37]')
    a.e('v_add_u32 v19, 1, v7')
    a.e('v_and_b32 v20, 7, v19')
    a.e('v_lshlrev_b32 v22, 2, v20')
    a.e('v_lshrrev_b32 v22, v22, s33')
    a.e('v_and_b32 v22, 15, v22')
    a.e('v_mul_lo_u32 v20, v20, s34')
    a.e('v_lshl_add_u32 v20, v22, 4, v20')
    a.e('v_and_b32 v19, 0x18, v19')
    a.e('v_lshl_add_u32 v19, v8, 3, v19')
    a.e('v_lshl_add_u32 v20, v19, 1, v20')
    a.e('s_lshl_b32 s35, s12, 8')
    a.e('s_add_u32 s38, s14, s35')
    a.e('v_add_u32 v2, s38, v20')
    a.e('v_lshlrev_b32 v19, 5, v7')
    a.e('v_lshlrev_b32 v20, 4, v8')
    a.e('v_sub_u32 v19, v20, v19')
    a.e(f's_add_u32 s38, s38, {R_OFF + 480}')
    a.e('v_add_u32 v3, s38, v19')
    a.e(f's_add_u32 s38, s14, {R_OFF + 4088 - 1536}')
    a.e('s_sub_u32 s38, s38, s16')
    a.e('v_sub_u32 v5, s38, v9')
    a.e('s_lshl_b32 s38, s12, 12')
    a.e('s_add_u32 s39, s14, s38')
    a.e('v_add_u32 v4, s39, v6')
    a.e('s_xor_b32 s38, s38, 4096')
    a.e('s_add_u32 s39, s14, s38')
    a.e('v_add_u32 v6, s39, v6')
    for pos, (X, O, O2) in enumerate(((48, 54, 112), (118, 22, 60))):
        W = L + 8 * pos
        a.wait_vm(f'k{pos}')
        a.stamp(1 + pos)

        def wr(e, r, extra=0):
            a.lds(f'ds_write_b128 v21, v[{r}:{r+3}] offset:{e * KC_STRIDE + KC_OFFS[e] * 16 + 16 + extra + 2048 * pos}')
        wr(0, W + 4, 16)
        wr(4, W + 2)
        if pos == 1:
            pass
        regsX = [X + k for k in range(6)]
        regsO = [O + k for k in range(6)]
        regsP = [O2 + k for k in range(6)] if pos == 0 else [124, 125, 126, 127, 60, 61]
        for k in range(6):
            a.e(f'v_mov_b32 v{regsX[k]}, v{W + k + 1}')
        wr(2, X)
        wr(6, X + 2)
        for k in range(6):
            a.e(f'v_alignbit_b32 v{regsO[k]}, v{W + k + 1}, v{W + k}, 16')
        wr(1, O)
        wr(5, O + 2)
        if pos == 0:
            for k in range(6):
                a.e(f'v_alignbit_b32 v{O2 + k}, v{W + k + 2}, v{W + k + 1}, 16')
            wr(3, O2)
            wr(7, O2 + 2)
        else:
            for k in range(6):
                a.e(f'v_alignbit_b32 v{48 + k}, v{W + k + 2}, v{W + k + 1}, 16')
            wr(3, 48)
            wr(7, 50)
    GL, GH, AL, AH, DL, DH, SA = 10, 11, 12, 13, 14, 15, 16
    a.wait_lg0()
    a.e(f'v_mov_b32 v{SA}, s44')
    a.e('v_mov_b32 v19, s45')
    a.e('v_add_f32 v19, 1.0, v19')
    a.e(f'v_cvt_pk_bf16_f32 v{GL}, v19, 0')
    a.e(f'v_lshlrev_b32 v{GH}, 16, v{GL}')
    a.e(f'v_mov_b32 v{AH}, s46')
    a.e(f'v_lshrrev_b32 v{AL}, 16, v{AH}')
    a.e('s_lshr_b32 s48, s47, 16')
    a.e('s_and_b32 s49, s47, 0xffff')
    a.e('s_bitcmp1_b32 s13, 0')
    a.e('s_cselect_b32 s48, s48, s49')
    a.e(f'v_mov_b32 v{DL}, s48')
    a.e(f'v_lshlrev_b32 v{DH}, 16, v{DL}')
    a.e('s_mov_b32 s50, 0x3f803f80')
    a.e('s_mov_b32 s51, 0x00003f80')
    a.e('s_mov_b32 s52, 0x3f800000')
    a.wait_vm('r')
    a.stamp(3)
    a.e('s_barrier')
    a.stamp(4)
    ACC = 32

    def afr(buf, i):
        return f'a[{64 * buf + 4 * i}:{64 * buf + 4 * i + 3}]'

    def bfr(buf, j):
        return f'a[{64 * buf + 32 + 4 * j}:{64 * buf + 32 + 4 * j + 3}]'

    def rd_a(r, i):
        return lambda: a.lds(f'ds_read_b128 {afr(r & 1, i)}, v2 offset:{64 * (r + 8 * i)}', f'a{r}_{i}')

    def rd_b(r, j):
        return lambda: a.lds(f'ds_read_b128 {bfr(r & 1, j)}, v3 offset:{64 * (r + 56 - 8 * j)}', f'b{r}_{j}')

    def reads(r):
        return [rd_a(r, 0)] + [rd_b(r, j) for j in range(8)] + [rd_a(r, i) for i in range(1, 8)]

    order = [(i, j) for i in range(8) for j in range(8 - i)]
    order.remove((7, 0))
    order.insert(order.index((5, 0)), (7, 0))

    def mfma(r, i, j, first, waits):
        def f():
            for t in waits:
                if t in a.lg:
                    a.wait_lg(t)
            nb = i + j
            c = '0' if first else f'v[{ACC + 4 * nb}:{ACC + 4 * nb + 3}]'
            a.e(f'v_mfma_f32_16x16x32_bf16 v[{ACC + 4 * nb}:{ACC + 4 * nb + 3}], {afr(r & 1, i)}, {bfr(r & 1, j)}, {c}')
        return f

    H = Q
    QF, KVD = NM, RS
    T = [112, 116, 120, 124]

    def pre_ops(group):
        ops = []

        def each(fn):
            for s, (n, k) in enumerate(group):
                ops.append((lambda s=s, n=n, k=k: fn(T[s], n, k)))
        each(lambda t, n, k: a.e(f'v_dot2_f32_bf16 v{t}, v{Q+2*n+k}, s51, v{NM+4*n+2*k}'))
        each(lambda t, n, k: a.e(f'v_dot2_f32_bf16 v{t+1}, v{Q+2*n+k}, s52, v{NM+4*n+2*k+1}'))
        each(lambda t, n, k: a.e(f'v_lshlrev_b32 v{QF+4*n+2*k}, 16, v{Q+2*n+k}'))
        each(lambda t, n, k: a.e(f'v_and_b32 v{QF+4*n+2*k+1}, 0xffff0000, v{Q+2*n+k}'))
        each(lambda t, n, k: a.e(f'v_cvt_pk_bf16_f32 v{t+2}, v{t}, v{t+1}'))
        each(lambda t, n, k: a.e(f'v_lshlrev_b32 v{t}, 16, v{t+2}'))
        each(lambda t, n, k: a.e(f'v_and_b32 v{t+1}, 0xffff0000, v{t+2}'))
        each(lambda t, n, k: a.e(f'v_pk_mul_f32 v[{t}:{t+1}], v[{t}:{t+1}], v[{RS+4*n+2*k}:{RS+4*n+2*k+1}]'))
        each(lambda t, n, k: a.e(f'v_cvt_pk_bf16_f32 v{t+2}, v{t}, v{t+1}'))
        each(lambda t, n, k: a.e(f'v_dot2_f32_bf16 v{t}, v{t+2}, v{GL}, 0'))
        each(lambda t, n, k: a.e(f'v_dot2_f32_bf16 v{t+1}, v{t+2}, v{GH}, 0'))
        each(lambda t, n, k: a.e(f'v_dot2_f32_bf16 v{KVD+4*n+2*k}, v{KV+2*n+1-k}, v{DH}, 0'))
        each(lambda t, n, k: a.e(f'v_cvt_pk_bf16_f32 v{t+2}, v{t}, v{t+1}'))
        each(lambda t, n, k: a.e(f'v_dot2_f32_bf16 v{t}, v{t+2}, s51, v{SA}'))
        each(lambda t, n, k: a.e(f'v_dot2_f32_bf16 v{t+1}, v{t+2}, s52, v{SA}'))
        each(lambda t, n, k: a.e(f'v_dot2_f32_bf16 v{KVD+4*n+2*k+1}, v{KV+2*n+1-k}, v{DL}, 0'))
        each(lambda t, n, k: a.e(f'v_cvt_pk_bf16_f32 v{H+2*n+k}, v{t}, v{t+1}'))
        return ops

    for f in reads(0):
        f()
    pre = pre_ops([(0, 0), (0, 1), (1, 0), (1, 1)]) + pre_ops([(2, 0), (2, 1), (3, 0), (3, 1)])
    npre = len(pre)
    for r in range(4):
        mf = [mfma(r, i, j, r == 0 and i == 0, [f'a{r}_{i}', f'b{r}_{j}']) for (i, j) in order]
        fill = []
        if r < 3:
            nxt = reads(r + 1)
        else:
            nxt = []
        if r == 0:
            kvr = [(lambda n=n: a.lds(f'ds_read_b64 v[{KV+2*n}:{KV+2*n+1}], v5 offset:{512*(3-n)}', 'kv')) for n in range(4)]
            interleave(a, mf, kvr + nxt, start=14, per=1)
        else:
            if r == 1:
                a.wait_vm('ep')
            part = pre[(r - 1) * npre // 3: r * npre // 3]
            merged = []
            x, y = list(nxt), list(part)
            while x or y:
                if x:
                    merged.append(x.pop(0))
                for _ in range(3):
                    if y:
                        merged.append(y.pop(0))
            if r == 1:
                a.wait_lg('kv')
            interleave(a, mf, merged, start=0, per=2)
    a.stamp(5)
    a.e('s_barrier')
    a.e('s_cmp_eq_u32 s12, 0')
    a.e('s_cbranch_scc0 K1_W1')
    for n in range(4):
        a.lds(f'ds_write_b128 v4, v[{ACC+16+4*n}:{ACC+16+4*n+3}] offset:{1024*n}')
    a.e('s_branch K1_W2')
    a.label('K1_W1')
    for n in range(4):
        a.e(f'ds_write_b128 v4, v[{ACC+4*n}:{ACC+4*n+3}] offset:{1024*n}')
    for n in range(8):
        a.e(f'v_mov_b32 v{ACC+2*n}, v{ACC+16+2*n}') if False else None
    a.label('K1_W2')
    a.wait_lg0()
    a.e('s_barrier')
    RD = 112
    for n in range(4):
        a.lds(f'ds_read_b128 v[{RD+4*n}:{RD+4*n+3}], v6 offset:{1024*n}', f'rd{n}')
    a.e('s_cmp_eq_u32 s12, 0')
    a.e('s_cbranch_scc0 K1_A1')
    lg_save = list(a.lg)
    for n in range(4):
        a.wait_lg(f'rd{n}')
        for k in range(2):
            a.e(f'v_pk_add_f32 v[{RD+4*n+2*k}:{RD+4*n+2*k+1}], v[{RD+4*n+2*k}:{RD+4*n+2*k+1}], v[{ACC+4*n+2*k}:{ACC+4*n+2*k+1}]')
    a.e('s_branch K1_A2')
    a.label('K1_A1')
    a.lg = lg_save
    for n in range(4):
        a.wait_lg(f'rd{n}')
        for k in range(2):
            a.e(f'v_pk_add_f32 v[{RD+4*n+2*k}:{RD+4*n+2*k+1}], v[{RD+4*n+2*k}:{RD+4*n+2*k+1}], v[{ACC+16+4*n+2*k}:{ACC+16+4*n+2*k+1}]')
    a.label('K1_A2')
    a.stamp(6)
    items = [(n, k) for n in range(4) for k in range(2)]
    TP = 32

    def allp(fn):
        for s, (n, k) in enumerate(items):
            fn(TP + 4 * s, n, k, RD + 4 * n + 2 * k)
    allp(lambda t, n, k, y: a.e(f'v_cvt_pk_bf16_f32 v{t}, v{y}, v{KVD+4*n+2*k}'))
    allp(lambda t, n, k, y: a.e(f'v_cvt_pk_bf16_f32 v{t+1}, v{y+1}, v{KVD+4*n+2*k+1}'))
    allp(lambda t, n, k, y: a.e(f'v_dot2_f32_bf16 v{t+2}, v{t}, s50, 0'))
    allp(lambda t, n, k, y: a.e(f'v_dot2_f32_bf16 v{t+3}, v{t+1}, s50, 0'))
    allp(lambda t, n, k, y: a.e(f'v_cvt_pk_bf16_f32 v{t}, v{t+2}, 0'))
    allp(lambda t, n, k, y: a.e(f'v_cvt_pk_bf16_f32 v{t+1}, 0, v{t+3}'))
    allp(lambda t, n, k, y: a.e(f'v_dot2_f32_bf16 v{t+2}, v{H+2*n+k}, v{t}, 0'))
    allp(lambda t, n, k, y: a.e(f'v_dot2_f32_bf16 v{t+3}, v{H+2*n+k}, v{t+1}, 0'))
    allp(lambda t, n, k, y: a.e(f'v_cvt_pk_bf16_f32 v{t}, v{t+2}, v{t+3}'))
    allp(lambda t, n, k, y: a.e(f'v_dot2_f32_bf16 v{t+2}, v{t}, v{AL}, 0'))
    allp(lambda t, n, k, y: a.e(f'v_dot2_f32_bf16 v{t+3}, v{t}, v{AH}, 0'))
    allp(lambda t, n, k, y: a.e(f'v_cvt_pk_bf16_f32 v{t}, v{t+2}, v{t+3}'))
    allp(lambda t, n, k, y: a.e(f'v_dot2_f32_bf16 v{t+2}, v{t}, s51, v{QF+4*n+2*k}'))
    allp(lambda t, n, k, y: a.e(f'v_dot2_f32_bf16 v{t+3}, v{t}, s52, v{QF+4*n+2*k+1}'))
    allp(lambda t, n, k, y: a.e(f'v_cvt_pk_bf16_f32 v{RD+2*n+k}, v{t+2}, v{t+3}'))
    for n in range(4):
        a.vmem(f'buffer_store_dwordx2 v[{RD+2*n}:{RD+2*n+1}], v9, s[24:27], s32 offen offset:{512*n}', 'o')
    a.stamp(7)
    if STAMPS:
        a.e('s_waitcnt vmcnt(0)')
    a.stamp_out(1, 24, 8)
    a.e('s_endpgm')

    a.label('K1_PREP')
    a.vm, a.lg = [], []
    a.stamp(0)
    a.e(f's_load_dwordx4 s[4:7], s[0:1], {KA_WG}')
    a.e(f's_load_dwordx2 s[8:9], s[0:1], {KA_WS}')
    a.e(f's_sub_u32 s10, s2, {K1_CONV}')
    a.e('s_and_b32 s11, s10, 1')
    a.e('s_lshr_b32 s12, s10, 1')
    a.e('v_lshrrev_b32 v2, 6, v0')
    a.e('v_and_b32 v1, 63, v0')
    a.e('v_readfirstlane_b32 s13, v2')
    a.e('v_lshrrev_b32 v3, 2, v1')
    a.e('v_and_b32 v4, 3, v1')
    a.e('v_lshl_add_u32 v3, v2, 7, v3')
    a.e('s_movk_i32 s14, 3584')
    a.e('v_mul_lo_u32 v3, v3, s14')
    a.e('v_lshl_add_u32 v3, v4, 4, v3')
    a.e('s_lshl_b32 s15, s12, 6')
    a.e('v_add_u32 v3, s15, v3')
    a.e('v_lshlrev_b32 v5, 3, v0')
    a.e('s_lshl_b32 s16, s13, 13')
    a.e('s_waitcnt lgkmcnt(0)')
    a.e('s_cmp_eq_u32 s11, 0')
    a.e('s_cselect_b32 s4, s4, s6')
    a.e('s_cselect_b32 s5, s5, s7')
    a.srd(20, 4, 512 * 1792 * 2)
    a.srd(24, 8, WS_SIZE)
    a.e(f's_mov_b32 s17, {WS_MOD + 3 * 2048}')
    a.e(f's_mov_b32 s18, {WS_MOD + 4 * 2048}')
    a.vmem('buffer_load_dwordx2 v[10:11], v5, s[24:27], s17 offen', 'sb')
    a.vmem('buffer_load_dwordx2 v[12:13], v5, s[24:27], s18 offen', 'cb')
    for i in range(8):
        a.e(f's_add_u32 s19, s16, {1024 * i}')
        a.e('s_mov_b32 m0, s19')
        a.e(f's_mov_b32 s28, {57344 * i}')
        a.vmem('buffer_load_dwordx4 v3, s[20:23], s28 offen lds', 'w')
    GA = 32768
    a.e('v_lshlrev_b32 v6, 2, v0')
    a.wait_vm('cb')
    a.e('v_add_f32 v12, 1.0, v12')
    a.e('v_add_f32 v13, 1.0, v13')
    a.e('v_cvt_pk_bf16_f32 v14, v12, 0')
    a.e('v_cvt_pk_bf16_f32 v15, 0, v13')
    a.e('v_cvt_pk_bf16_f32 v16, v10, v11')
    a.lds(f'ds_write_b32 v6, v14 offset:{GA}')
    a.lds(f'ds_write_b32 v6, v15 offset:{GA + 1024}')
    a.lds(f'ds_write_b32 v6, v16 offset:{GA + 2048}')
    a.e('v_lshrrev_b32 v7, 4, v1')
    a.e('v_bfe_u32 v8, v1, 2, 2')
    a.e('v_lshl_add_u32 v8, v7, 3, v8')
    a.e('v_lshlrev_b32 v8, 6, v8')
    a.e('v_lshl_add_u32 v8, v4, 3, v8')
    a.e('v_add_u32 v8, s16, v8')
    a.e('v_lshlrev_b32 v9, 4, v7')
    a.e('s_lshl_b32 s19, s13, 8')
    a.e('v_add_u32 v9, s19, v9')
    a.e('v_lshlrev_b32 v17, 4, v1')
    for ft in range(2):
        a.e('s_lshl_b32 s30, s12, 1')
        a.e(f's_add_u32 s30, s30, {ft}')
        a.e('s_mul_i32 s31, s30, 147')
        a.e('s_lshr_b32 s31, s31, 10')
        a.e('s_mul_i32 s32, s31, 7')
        a.e('s_sub_u32 s30, s30, s32')
        a.e('s_mul_i32 s32, s11, 7')
        a.e('s_add_u32 s30, s30, s32')
        a.e('s_lshl_b32 s31, s31, 4')
        a.e('s_lshl_b32 s32, s13, 2')
        a.e('s_add_u32 s31, s31, s32')
        a.e('s_mul_i32 s31, s31, 14')
        a.e('s_add_u32 s30, s30, s31')
        a.e('s_lshl_b32 s30, s30, 10')
        a.e(f's_add_u32 s{34+ft}, s30, {WS_WF}')
    a.e('s_mov_b32 s50, 0x3f803f80')
    a.wait_all()
    a.stamp(1)
    a.e('s_barrier')
    U = 20
    for kk in range(4):
        G = 32 + 12 * (kk & 1)
        a.lds(f'ds_read_b128 v[{G}:{G+3}], v9 offset:{GA + 64 * kk}', f'g{kk}')
        a.lds(f'ds_read_b128 v[{G+4}:{G+7}], v9 offset:{GA + 1024 + 64 * kk}', f'g{kk}')
        a.lds(f'ds_read_b128 v[{G+8}:{G+11}], v9 offset:{GA + 2048 + 64 * kk}', f'g{kk}')
        for ft in range(2):
            Wr = 64 + 8 * (kk & 1) + 4 * ft
            for half in range(2):
                a.lds(f'ds_read_b64_tr_b16 v[{Wr+2*half}:{Wr+2*half+1}], v8 offset:{2048 * kk + 256 * half + 32 * ft}', f'g{kk}')
        a.wait_lg(f'g{kk}')
        P = 80
        for ft in range(2):
            Wr = 64 + 8 * (kk & 1) + 4 * ft
            for k in range(4):
                a.e(f'v_dot2_f32_bf16 v{P+16*ft+2*k}, v{Wr+k}, v{G+k}, 0')
                a.e(f'v_dot2_f32_bf16 v{P+16*ft+2*k+1}, v{Wr+k}, v{G+4+k}, 0')
        for ft in range(2):
            Wr = 64 + 8 * (kk & 1) + 4 * ft
            for k in range(4):
                c = '0' if (kk == 0 and k == 0) else f'v{U+2*ft+1}'
                a.e(f'v_dot2_f32_bf16 v{U+2*ft+1}, v{Wr+k}, v{G+8+k}, {c}')
        for ft in range(2):
            O = P + 16 * ft + 8 + 4 * (kk & 1)
            for k in range(4):
                a.e(f'v_cvt_pk_bf16_f32 v{O+k}, v{P+16*ft+2*k}, v{P+16*ft+2*k+1}')
            a.vmem(f'buffer_store_dwordx4 v[{O}:{O+3}], v17, s[24:27], s{34+ft} offen', 'o')
        for ft in range(2):
            O = P + 16 * ft + 8 + 4 * (kk & 1)
            for k in range(4):
                c = '0' if (kk == 0 and k == 0) else f'v{U+2*ft}'
                a.e(f'v_dot2_f32_bf16 v{U+2*ft}, v{O+k}, s50, {c}')
        a.e('s_add_u32 s34, s34, 14336')
        a.e('s_add_u32 s35, s35, 14336')
    a.stamp(2)
    if STAMPS:
        a.e('s_waitcnt vmcnt(0)')
        a.stamp_out(1, 24, 3)
        a.e('s_mov_b64 exec, -1')
        a.e('v_and_b32 v1, 63, v0')
    a.e('s_barrier')
    a.e('v_lshlrev_b32 v6, 4, v0')
    a.lds(f'ds_write_b128 v6, v[{U}:{U+3}]')
    a.wait_lg0()
    a.e('s_barrier')
    a.e('s_cmp_lg_u32 s13, 0')
    a.e('s_cbranch_scc1 K1_END')
    a.e('v_and_b32 v6, 15, v1')
    a.e('v_lshlrev_b32 v6, 4, v6')
    a.e('v_lshl_add_u32 v6, v7, 2, v6')
    for i in range(16):
        a.lds(f'ds_read_b32 v{32+i}, v6 offset:{256 * i}', 'z')
    a.wait_lg0()
    for i in range(1, 16):
        a.e(f'v_add_f32 v32, v32, v{32+i}')
    a.e('v_and_b32 v8, 1, v7')
    a.e('s_movk_i32 s14, 7168')
    a.e('v_mul_lo_u32 v8, v8, s14')
    a.e('v_lshrrev_b32 v9, 1, v7')
    a.e('v_lshl_add_u32 v8, v9, 6, v8')
    a.e('v_and_b32 v9, 15, v1')
    a.e('v_lshl_add_u32 v8, v9, 2, v8')
    a.e('s_mul_i32 s15, s11, 14336')
    a.e('s_lshl_b32 s16, s12, 7')
    a.e('s_add_u32 s15, s15, s16')
    a.e(f's_add_u32 s15, s15, {WS_UT}')
    a.e('buffer_store_dword v32, v8, s[24:27], s15 offen')
    a.label('K1_END')
    a.e('s_endpgm')
    a.end_kernel(name, 256, 64, 128)
    return f'; @launch kernel={name} grid=({K1_CONV + K1_PREP},1,1) block=(256,1,1) lds={K1_LDS}'
```

```python
from gen import *
import os

K23_WG = 256
SLOT = 24576
NSLOT = 6
B_OFF = 14336
UTL = NSLOT * SLOT
X1L = UTL + 2048
K23_LDS = X1L + 8192
SPIN = 400000
NV = 176


def quad(r):
    k, n = r[0], int(r[1:])
    return f'{k}[{n}:{n+3}]'


def gen_k23(a):
    name = 'k2_mlp_kernel'
    a.begin_kernel(name)
    a.e(f's_cmp_ge_u32 s2, {K23_WG}')
    a.e('s_cbranch_scc1 K2_END')
    a.stamp(0)
    a.e(f's_load_dwordx2 s[8:9], s[0:1], {KA_WS}')
    a.e(f's_load_dwordx2 s[4:5], s[0:1], {KA_OUT}')
    a.e('v_lshrrev_b32 v15, 6, v0')
    a.e('v_and_b32 v1, 63, v0')
    a.e('v_readfirstlane_b32 s10, v15')
    a.e('s_and_b32 s11, s2, 7')
    a.e('s_lshr_b32 s12, s2, 3')
    a.e('s_lshr_b32 s13, s11, 1')
    a.e('s_lshl_b32 s13, s13, 2')
    a.e('s_and_b32 s14, s12, 3')
    a.e('s_add_u32 s13, s13, s14')
    a.e('s_and_b32 s14, s11, 1')
    a.e('s_lshl_b32 s14, s14, 3')
    a.e('s_lshr_b32 s15, s12, 2')
    a.e('s_add_u32 s14, s14, s15')
    a.e('s_and_b32 s15, s10, 3')
    a.e('v_lshrrev_b32 v2, 4, v1')
    a.e('v_and_b32 v3, 15, v1')
    a.e('v_lshlrev_b32 v4, 4, v1')
    if os.environ.get('NOREMAP'):
        a.e('s_lshr_b32 s34, s14, 1')
        a.e('s_and_b32 s35, s14, 1')
        a.e('s_mov_b32 s32, s13')
    else:
        a.e('s_lshr_b32 s34, s12, 2')
        a.e('s_bfe_u32 s35, s12, 0x10001')
        a.e('s_lshl_b32 s32, s11, 1')
        a.e('s_and_b32 s36, s12, 1')
        a.e('s_add_u32 s32, s32, s36')
    a.e('s_mul_i32 s37, s34, 229376')
    a.e(f's_add_u32 s37, s37, {WS_WDF}')
    a.e('s_mul_i32 s38, s15, 57344')
    a.e('s_add_u32 s38, s38, s37')
    VA, VB0, VB1 = 5, 8, 11
    a.e(f'v_mov_b32 v{VA}, v4')
    for k in (1, 2):
        a.e(f'v_add_u32 v{VA+k}, {2 * SLOT * k}, v4')
    a.e('s_waitcnt lgkmcnt(0)')
    a.srd(24, 8, WS_SIZE)
    a.srd(28, 4, 2048 * 512 * 2)
    a.e('s_cmp_lt_u32 s10, 4')
    a.e('s_cbranch_scc1 K2_COMPUTE')

    WREG = [f'a{r}' for r in range(0, 80, 4)]

    def wd_reg(n):
        fr = 36 + n
        if n % 4 == 0:
            a.e(f's_add_u32 s45, s38, {fr * 1024}')
        a.vmem(f'buffer_load_dwordx4 {quad(WREG[n])}, v4, s[24:27], s45 offen offset:{1024 * (n % 4)}', 'wdr')

    a.e('s_mul_i32 s16, s14, 229376')
    a.e(f's_add_u32 s16, s16, {WS_WF}')
    a.e('v_and_b32 v16, 1, v15')
    a.e('v_lshl_add_u32 v16, v16, 2, v2')
    a.e('v_lshlrev_b32 v16, 1, v16')
    a.e('v_xor_b32 v16, v16, v3')
    a.e('v_lshlrev_b32 v16, 4, v16')
    a.e('v_lshl_add_u32 v14, v2, 12, v16')
    a.e('s_lshl_b32 s17, s13, 8')
    a.e('s_lshl_b32 s23, s15, 15')
    a.e('s_add_u32 s17, s17, s23')
    a.e(f's_add_u32 s17, s17, {WS_X1T}')
    a.e('s_lshl_b32 s18, s15, 11')
    a.e(f's_add_u32 s18, s18, {B_OFF}')
    a.e('s_mul_i32 s19, s15, 3072')
    a.e('s_add_u32 s20, s16, s19')
    a.e('s_lshr_b32 s21, s15, 1')
    a.e('s_lshl_b32 s21, s21, 10')
    a.e('s_add_u32 s21, s21, 12288')
    a.e('s_add_u32 s22, s16, s21')
    a.e('s_bitcmp1_b32 s15, 0')
    a.e('s_cselect_b32 s46, 0, -1')
    a.e('s_cselect_b32 s47, -1, 0')

    def dma(ks):
        slot = ks % NSLOT
        a.e(f's_add_u32 m0, s18, {slot * SLOT}')
        a.e(f's_add_u32 s23, s17, {ks * 131072}')
        a.vmem('buffer_load_dwordx4 v14, s[24:27], s23 offen lds', f'D{ks}')
        a.e(f's_add_u32 s23, s17, {ks * 131072 + 16384 - 1024}')
        a.vmem('buffer_load_dwordx4 v14, s[24:27], s23 offen offset:1024 lds', f'D{ks}')
        a.e(f's_add_u32 m0, s19, {slot * SLOT}')
        a.e(f's_add_u32 s23, s20, {ks * 14336}')
        for e in range(3):
            a.vmem(f'buffer_load_dwordx4 v4, s[24:27], s23 offen offset:{1024 * e} lds', f'D{ks}')
        a.e(f's_add_u32 m0, s21, {slot * SLOT}')
        a.e(f's_add_u32 s23, s22, {ks * 14336}')
        a.e('s_mov_b64 exec, s[46:47]')
        a.vmem('buffer_load_dwordx4 v4, s[24:27], s23 offen lds', f'D{ks}')
        a.e('s_mov_b64 exec, -1')

    def wd_lds(it):
        slot = (10 + it) % NSLOT
        for jj in range(6):
            a.e(f's_add_u32 m0, s39, {slot * SLOT + jj * 4096}')
            a.e(f's_add_u32 s23, s38, {(6 * it + jj) * 1024}')
            a.vmem('buffer_load_dwordx4 v4, s[24:27], s23 offen lds', 'wdl')

    for ks in range(3):
        dma(ks)
    a.e('s_lshl_b32 s39, s15, 10')
    a.stamp(1)
    a.wait_vm('D0')
    a.e('s_barrier')
    a.stamp(2)
    for ks in range(3, NSLOT):
        dma(ks)
    a.e('v_lshrrev_b32 v16, 3, v1')
    a.e('v_and_b32 v17, 7, v1')
    a.e('v_lshlrev_b32 v17, 4, v17')
    a.e('v_lshl_add_u32 v16, v16, 12, v17')
    a.e('s_lshl_b32 s23, s34, 2')
    a.e('s_add_u32 s23, s23, s15')
    a.e('s_lshl_b32 s23, s23, 16')
    a.e('s_lshl_b32 s36, s32, 8')
    a.e('s_add_u32 s23, s23, s36')
    a.e('s_lshl_b32 s36, s35, 7')
    a.e('s_add_u32 s23, s23, s36')
    a.e(f's_add_u32 s23, s23, {WS_X1T}')
    a.e('s_lshl_b32 s36, s15, 11')
    a.e(f's_add_u32 m0, s36, {X1L}')
    a.vmem('buffer_load_dwordx4 v16, s[24:27], s23 offen lds', 'side')
    a.e(f's_add_u32 s23, s23, {32768 - 1024}')
    a.vmem('buffer_load_dwordx4 v16, s[24:27], s23 offen offset:1024 lds', 'side')
    a.e('s_mul_i32 s23, s15, 7168')
    a.e('s_mul_i32 s36, s14, 448')
    a.e('s_add_u32 s23, s23, s36')
    a.e(f's_add_u32 s23, s23, {WS_UT}')
    a.e('s_lshl_b32 s36, s15, 9')
    a.e(f's_add_u32 m0, s36, {UTL}')
    a.e('s_mov_b64 exec, 0xfffffff')
    a.vmem('buffer_load_dwordx4 v4, s[24:27], s23 offen lds', 'side')
    a.e('s_mov_b64 exec, -1')
    nreg = 0
    for ks in list(range(0, 16, 2)) + [15]:
        last = min(ks + 2, 15)
        if f'D{last}' in a.vm:
            a.wait_vm(f'D{last}')
        a.e('s_barrier')
        if ks % 4 == 0:
            a.stamp(3 + ks // 4)
        if ks < 15:
            for st in (ks + 5, ks + 6):
                if 6 <= st < 16:
                    dma(st)
        if 2 <= ks <= 10:
            for _ in range(4):
                wd_reg(nreg)
                nreg += 1
        for it in {10: (0,), 12: (1, 2), 14: (3, 4), 15: (5,)}.get(ks, ()):
            wd_lds(it)
    a.stamp(7)
    a.stamp(8)
    a.e('s_branch K2_JOIN')

    a.label('K2_COMPUTE')
    a.vm, a.lg = [], []
    BF, ONES, ACC, S, Q, MR = 32, 16, 48, 160, 168, 28
    a.e('v_bfe_u32 v16, v1, 2, 2')
    a.e('v_and_b32 v17, 3, v1')
    a.e('v_and_b32 v18, 1, v2')
    a.e('v_lshl_add_u32 v18, v18, 2, v16')
    a.e('v_lshl_add_u32 v16, v2, 3, v16')
    a.e('v_lshlrev_b32 v16, 8, v16')
    a.e('v_lshl_add_u32 v16, v17, 3, v16')
    a.e(f'v_add_u32 v16, {B_OFF}, v16')
    a.e('s_lshl_b32 s22, s15, 1')
    for t, vb in ((0, VB0), (1, VB1)):
        a.e(f's_add_u32 s23, s22, {t}')
        a.e('v_xor_b32 v17, s23, v18')
        a.e(f'v_lshl_add_u32 v{vb}, v17, 5, v16')
        for k in (1, 2):
            a.e(f'v_add_u32 v{vb+k}, {2 * SLOT * k}, v{vb}')
    for k in range(4):
        a.e(f'v_mov_b32 v{ONES+k}, 0x3f803f80')
    a.e('v_lshlrev_b32 v14, 4, v2')
    a.e(f'v_add_u32 v14, {UTL}, v14')
    a.e('s_lshl_b32 s23, s13, 2')
    a.e('s_add_u32 s23, s23, s15')
    a.e('s_lshl_b32 s23, s23, 4')
    a.e('s_add_u32 s23, s23, s14')
    a.e('s_mul_i32 s23, s23, 7168')
    a.e(f's_add_u32 s48, s23, {WS_HF}')
    a.e('s_add_u32 s49, s48, 4096')

    RING = 20

    def rd_a(n):
        ks, m = divmod(n, 14)
        slot = ks % NSLOT
        k, o = slot >> 1, (slot & 1) * SLOT
        r = 4 * (n % RING)
        a.lds(f'ds_read_b128 a[{r}:{r+3}], v{VA+k} offset:{o + m * 1024}', f'A{n}')

    def rd_b(ks):
        slot = ks % NSLOT
        k, o = slot >> 1, (slot & 1) * SLOT
        return [(lambda r=BF + 8 * (ks & 1) + 4 * t + 2 * half, vb=vb, half=half:
                 a.lds(f'ds_read_b64_tr_b16 v[{r}:{r+1}], v{vb+k} offset:{o + half * 1024}', f'B{ks}'))
                for t, vb in ((0, VB0), (1, VB1)) for half in range(2)]

    def stats_ops():
        L = []

        def e(x):
            L.append(lambda x=x: a.e(x))

        def rnd2(lo, hi, tmp):
            e(f'v_cvt_pk_bf16_f32 v{tmp}, v{lo}, v{hi}')
            e(f'v_lshlrev_b32 v{lo}, 16, v{tmp}')
            e(f'v_and_b32 v{hi}, 0xffff0000, v{tmp}')
        e('v_and_b32 v24, 3, v3')
        e('v_lshrrev_b32 v25, 2, v3')
        for t in range(2):
            e(f'v_mov_b32 v{MR+2*t+1}, v{Q+4*t}')
        for k in range(1, 4):
            e(f'v_cmp_eq_u32 vcc, {k}, v24')
            for t in range(2):
                e(f'v_cndmask_b32 v{MR+2*t+1}, v{MR+2*t+1}, v{Q+4*t+k}, vcc')
        e('v_cmp_eq_u32 vcc, v25, v2')
        for t in range(2):
            e(f'v_cndmask_b32 v{MR+2*t+1}, 0, v{MR+2*t+1}, vcc')
        for step in ('v_permlane32_swap_b32', 'v_permlane16_swap_b32'):
            for t in range(2):
                e(f'v_mov_b32 v{26+t}, v{MR+2*t+1}')
            for t in range(2):
                e(f'{step} v{MR+2*t+1}, v{26+t}')
            for t in range(2):
                e(f'v_add_f32 v{MR+2*t+1}, v{MR+2*t+1}, v{26+t}')
        for t in range(2):
            e(f'v_mul_f32 v{MR+2*t}, 0x3b000000, v{S+4*t}')
            e(f'v_mul_f32 v{MR+2*t+1}, 0x3b000000, v{MR+2*t+1}')
        for t in range(2):
            e(f'v_fma_f32 v{MR+2*t+1}, -v{MR+2*t}, v{MR+2*t}, v{MR+2*t+1}')
        for t in range(2):
            e(f'v_max_f32 v{MR+2*t+1}, 0, v{MR+2*t+1}')
        rnd2(MR + 1, MR + 3, 26)
        rnd2(MR + 0, MR + 2, 27)
        for t in range(2):
            e(f'v_add_f32 v{MR+2*t+1}, 0x3727c5ac, v{MR+2*t+1}')
        rnd2(MR + 1, MR + 3, 26)
        for t in range(2):
            e(f'v_sqrt_f32 v{MR+2*t+1}, v{MR+2*t+1}')
        rnd2(MR + 1, MR + 3, 26)
        for t in range(2):
            e(f'v_rcp_f32 v{26+t}, v{MR+2*t+1}')
        for t in range(2):
            e(f'v_fma_f32 v{MR+2*t+1}, -v{MR+2*t+1}, v{26+t}, 1.0')
        for t in range(2):
            e(f'v_fma_f32 v{MR+2*t+1}, v{MR+2*t+1}, v{26+t}, v{26+t}')
        for t in range(2):
            e(f'v_mul_f32 v{MR+2*t}, -v{MR+2*t}, v{MR+2*t+1}')
        return L

    morder = [x for fl in range(7) for x in (fl, 7 + fl)]
    a.stamp(1)
    a.e('s_barrier')
    a.stamp(2)
    for f in rd_b(0):
        f()
    for j in range(14):
        ks, m = 0, morder[j]
        a.lds(f'ds_read_b128 a[{4*j}:{4*j+3}], v{VA} offset:{m * 1024}', f'A{j}')

    def rd(n):
        ks, j = divmod(n, 14)
        slot = ks % NSLOT
        k, o = slot >> 1, (slot & 1) * SLOT
        r = 4 * (n % RING)
        a.lds(f'ds_read_b128 a[{r}:{r+3}], v{VA+k} offset:{o + morder[j] * 1024}', f'A{n}')
    for ks in range(16):
        if ks % 2 == 0 or ks == 15:
            a.wait_lg0()
            a.e('s_barrier')
        if ks % 4 == 0:
            a.stamp(3 + ks // 4)
        pend = []
        if ks + 1 < 16:
            pend = rd_b(ks + 1) + [(lambda n=14 * (ks + 1) + j: rd(n)) for j in range(6)]
        if f'B{ks}' in a.lg:
            a.wait_lg(f'B{ks}')
        st_ops = stats_ops() if ks == 15 else []
        for t in range(2):
            br = BF + 8 * (ks & 1) + 4 * t
            for d, A in ((S + 4 * t, f'v[{ONES}:{ONES+3}]'), (Q + 4 * t, f'v[{br}:{br+3}]')):
                c = '0' if ks == 0 else f'v[{d}:{d+3}]'
                a.e(f'v_mfma_f32_16x16x32_bf16 v[{d}:{d+3}], {A}, v[{br}:{br+3}], {c}')
                if pend:
                    pend.pop(0)()
        for j in range(14):
            n = 14 * ks + j
            if f'A{n}' in a.lg:
                a.wait_lg(f'A{n}')
            ar = 4 * (n % RING)
            for t in range(2):
                br = BF + 8 * (ks & 1) + 4 * t
                d = ACC + 56 * t + 4 * morder[j]
                c = '0' if ks == 0 else f'v[{d}:{d+3}]'
                a.e(f'v_mfma_f32_16x16x32_bf16 v[{d}:{d+3}], a[{ar}:{ar+3}], v[{br}:{br+3}], {c}')
                if pend:
                    pend.pop(0)()
                elif j >= 2:
                    for _ in range(2):
                        if st_ops:
                            st_ops.pop(0)()
            if ks + 1 < 16 and j < 8:
                pend.append(lambda n2=n + RING: rd(n2))
        while pend:
            pend.pop(0)()
        while st_ops:
            st_ops.pop(0)()
    a.stamp(7)
    UTR, T, OUT = 32, 16, 160

    def utread(fl):
        for arr in range(4):
            a.lds(f'ds_read_b128 v[{UTR+4*arr}:{UTR+4*arr+3}], v14 offset:{arr * 512 + fl * 64}', f'ut{fl}')
    utread(0)
    for n in range(20):
        wd_reg(n)
    a.stamp(8)
    for i in range(7):
        a.wait_lg0()
        for t in range(2):
            mu = MR + 2 * t
            for mat in range(2):
                for p in range(2):
                    tt = UTR + 8 * mat + 4 + 2 * p
                    ac = ACC + 56 * t + 4 * (mat * 7 + i) + 2 * p
                    a.e(f'v_pk_fma_f32 v[{ac}:{ac+1}], v[{mu}:{mu+1}], v[{ac}:{ac+1}], v[{tt}:{tt+1}] op_sel:[1,0,0] op_sel_hi:[1,1,1]')
        for t in range(2):
            mu = MR + 2 * t
            for mat in range(2):
                for p in range(2):
                    u = UTR + 8 * mat + 2 * p
                    ac = ACC + 56 * t + 4 * (mat * 7 + i) + 2 * p
                    a.e(f'v_pk_fma_f32 v[{ac}:{ac+1}], v[{mu}:{mu+1}], v[{u}:{u+1}], v[{ac}:{ac+1}] op_sel_hi:[0,1,1]')
        if i + 1 < 7:
            utread(i + 1)
        for t in range(2):
            for p in range(2):
                g = ACC + 56 * t + 4 * i + 2 * p
                u = ACC + 56 * t + 4 * (7 + i) + 2 * p
                q = T + 3 * (2 * t + p)
                a.e(f'v_cvt_pk_bf16_f32 v{q}, v{g}, v{g+1}')
                a.e(f'v_cvt_pk_bf16_f32 v{q+1}, v{u}, 0')
                a.e(f'v_cvt_pk_bf16_f32 v{q+2}, 0, v{u+1}')
        for t in range(2):
            for p in range(2):
                q = T + 3 * (2 * t + p)
                a.e(f'v_pk_max_i16 v{q}, v{q}, 0')
        for t in range(2):
            for p in range(2):
                g = ACC + 56 * t + 4 * i + 2 * p
                q = T + 3 * (2 * t + p)
                a.e(f'v_dot2_f32_bf16 v{g}, v{q}, v{q+1}, 0')
                a.e(f'v_dot2_f32_bf16 v{g+1}, v{q}, v{q+2}, 0')
        last = (i == 6)
        O = OUT + 8 * ((i >> 1) & 1)
        for t in range(2):
            for p in range(2):
                g = ACC + 56 * t + 4 * i + 2 * p
                o = (O + 2 * t + p) if last else (O + 4 * t + 2 * (i & 1) + p)
                a.e(f'v_cvt_pk_bf16_f32 v{o}, v{g}, v{g+1}')
        if last:
            a.vmem(f'buffer_store_dwordx4 v[{O}:{O+3}], v4, s[24:27], s49 offen offset:{6 * 1024 - 4096} sc1', 'hs')
        elif i & 1:
            kbp = i >> 1
            for t in range(2):
                sl = 3 * t + kbp
                sreg, off = ('s48', sl * 1024) if sl < 4 else ('s49', sl * 1024 - 4096)
                a.vmem(f'buffer_store_dwordx4 v[{O+4*t}:{O+4*t+3}], v4, s[24:27], {sreg} offen offset:{off} sc1', 'hs')
    a.label('K2_JOIN')
    a.stamp(9)
    a.wait_vm0()
    a.e('s_barrier')
    a.stamp(10)
    a.e('s_cmp_lg_u32 s10, 0')
    a.e('s_cbranch_scc1 K2_WAIT')
    a.e('s_lshl_b32 s23, s13, 7')
    a.e(f's_add_u32 s23, s23, {WS_CNT}')
    a.e('s_lshl_b32 s36, s32, 7')
    a.e(f's_add_u32 s36, s36, {WS_CNT}')
    a.e('v_mov_b32 v16, 0')
    a.e('v_mov_b32 v17, 1')
    a.e('s_mov_b64 exec, 1')
    a.e('buffer_atomic_add v17, v16, s[24:27], s23 offen')
    a.e(f's_mov_b32 s50, {SPIN}')
    a.label('K2_POLL')
    a.e('buffer_load_dword v18, v16, s[24:27], s36 offen sc1')
    a.e('s_waitcnt vmcnt(0)')
    a.e('v_readfirstlane_b32 s45, v18')
    a.e('s_cmp_ge_u32 s45, 16')
    a.e('s_cbranch_scc1 K2_READY')
    a.e('s_sleep 1')
    a.e('s_sub_u32 s50, s50, 1')
    a.e('s_cmp_lg_u32 s50, 0')
    a.e('s_cbranch_scc1 K2_POLL')
    a.label('K2_READY')
    a.e('s_mov_b64 exec, -1')
    a.label('K2_WAIT')
    a.e('s_lshl_b32 s23, s32, 2')
    a.e('s_lshl_b32 s36, s35, 1')
    a.e('s_add_u32 s23, s23, s36')
    a.e('s_lshr_b32 s33, s10, 2')
    a.e('s_add_u32 s23, s23, s33')
    a.e('s_lshl_b32 s23, s23, 4')
    a.e('s_lshl_b32 s36, s15, 2')
    a.e('s_add_u32 s23, s23, s36')
    a.e('s_mul_i32 s23, s23, 7168')
    a.e(f's_add_u32 s48, s23, {WS_HF}')
    a.e('s_lshl_b32 s23, s15, 10')
    for k in range(3):
        a.e(f'v_add_u32 v{VA+k}, s23, v{VA+k}')
    a.e('s_barrier')
    a.stamp(11)
    a.vm, a.lg = [], []
    BREG = [f'v{r}' for r in range(16, 112, 4)]
    ACC3, AT = 112, 144

    def bload(n):
        if n % 4 == 0:
            a.e(f's_add_u32 s49, s48, {n * 1024}')
        a.vmem(f'buffer_load_dwordx4 {quad(BREG[n % 24])}, v4, s[24:27], s49 offen offset:{1024 * (n % 4)} sc1', f'H{n}')
    for n in range(24):
        bload(n)
    steps = [(c, kb) for c in range(4) for kb in range(4)]

    def afrags(c, kb):
        return [14 * c + 4 * kb + tau for tau in range(4)] if kb < 3 else [14 * c + 12, 14 * c + 13]

    def aread(si):
        c, kb = steps[si]
        for i, fr in enumerate(afrags(c, kb)):
            if fr < 36:
                slot = (10 + fr // 6) % NSLOT
                k, o = slot >> 1, (slot & 1) * SLOT + 4096 * (fr % 6)
                r = AT + 16 * (si & 1) + 4 * i
                a.lds(f'ds_read_b128 v[{r}:{r+3}], v{VA+k} offset:{o}', f'A{si}')

    def areg(si, i):
        c, kb = steps[si]
        fr = afrags(c, kb)[i]
        if fr < 36:
            return ('v', AT + 16 * (si & 1) + 4 * i)
        return (WREG[fr - 36][0], int(WREG[fr - 36][1:]))
    aread(0)
    for si, (c, kb) in enumerate(steps):
        if si + 1 < len(steps):
            aread(si + 1)
        if f'A{si}' in a.lg:
            a.wait_lg(f'A{si}')
        first = (si == 0)
        if kb < 3:
            for t in range(2):
                n = 7 * c + 3 * t + kb
                if f'H{n}' in a.vm:
                    a.wait_vm(f'H{n}')
                for tau in range(4):
                    k, r = areg(si, tau)
                    d = ACC3 + 16 * t + 4 * tau
                    cc = '0' if first else f'v[{d}:{d+3}]'
                    a.e(f'v_mfma_f32_16x16x32_bf16 v[{d}:{d+3}], {k}[{r}:{r+3}], {quad(BREG[n % 24])}, {cc}')
        else:
            n = 7 * c + 6
            if f'H{n}' in a.vm:
                a.wait_vm(f'H{n}')
            bk, br = BREG[n % 24][0], int(BREG[n % 24][1:])
            for t in range(2):
                for tau in range(4):
                    k, r = areg(si, tau >> 1)
                    r += 2 * (tau & 1)
                    d = ACC3 + 16 * t + 4 * tau
                    a.e(f'v_mfma_f32_16x16x16_bf16 v[{d}:{d+3}], {k}[{r}:{r+1}], {bk}[{br+2*t}:{br+2*t+1}], v[{d}:{d+3}]')
            if c == 0:
                for n2 in range(24, 28):
                    bload(n2)
                a.e('v_lshlrev_b32 v14, 5, v2')
                a.e('s_lshl_b32 s23, s34, 8')
                a.e('s_and_b32 s36, s15, 1')
                a.e('s_lshl_b32 s36, s36, 7')
                a.e('s_add_u32 s23, s23, s36')
                a.e(f's_add_u32 s23, s23, {WS_MOD + 5 * 2048}')
                a.vmem('buffer_load_dwordx4 v[8:11], v14, s[24:27], s23 offen', 'gb')
                a.vmem('buffer_load_dwordx4 v[12:15], v14, s[24:27], s23 offen offset:16', 'gb')
    a.stamp(12)
    a.e('s_mul_i32 s23, s33, 24576')
    a.e('v_add_u32 v5, s23, v4')
    a.e('v_bfe_u32 v6, v1, 2, 2')
    a.e('v_lshl_add_u32 v6, v2, 3, v6')
    a.e('v_lshlrev_b32 v6, 7, v6')
    a.e('v_and_b32 v7, 3, v1')
    a.e('v_lshl_add_u32 v6, v7, 3, v6')
    a.e('s_and_b32 s36, s15, 1')
    a.e('s_lshl_b32 s36, s36, 12')
    a.e('s_lshl_b32 s23, s33, 6')
    a.e('s_add_u32 s36, s36, s23')
    a.e('s_lshr_b32 s23, s15, 1')
    a.e('s_lshl_b32 s23, s23, 5')
    a.e('s_add_u32 s36, s36, s23')
    a.e(f's_add_u32 s36, s36, {X1L}')
    a.e('v_add_u32 v6, s36, v6')
    X = 16
    a.lds(f'ds_read_b64_tr_b16 v[{X}:{X+1}], v6', 'x')
    a.lds(f'ds_read_b64_tr_b16 v[{X+2}:{X+3}], v6 offset:512', 'x')
    a.e('v_lshlrev_b32 v7, 10, v3')
    a.e('v_lshl_add_u32 v7, v2, 4, v7')
    a.e('s_lshl_b32 s23, s32, 3')
    a.e('s_lshl_b32 s36, s35, 2')
    a.e('s_add_u32 s23, s23, s36')
    a.e('s_lshl_b32 s36, s33, 1')
    a.e('s_add_u32 s23, s23, s36')
    a.e('s_lshr_b32 s36, s15, 1')
    a.e('s_add_u32 s23, s23, s36')
    a.e('s_lshl_b32 s23, s23, 14')
    a.e('s_lshl_b32 s36, s34, 7')
    a.e('s_add_u32 s23, s23, s36')
    a.e('s_and_b32 s36, s15, 1')
    a.e('s_lshl_b32 s36, s36, 6')
    a.e('s_add_u32 s51, s23, s36')
    a.e('s_barrier')
    for kq in range(4):
        a.e(f's_cmp_eq_u32 s15, {kq}')
        a.e(f's_cbranch_scc0 K3_W{kq}')
        for j in range(4):
            if j == kq:
                continue
            idx = kq if kq < j else kq - 1
            for h in range(2):
                d = ACC3 + 8 * j + 4 * h
                a.e(f'ds_write_b128 v5, v[{d}:{d+3}] offset:{(j * 3 + idx) * 2048 + h * 1024}')
        if kq != 0:
            for r in range(8):
                a.e(f'v_mov_b32 v{ACC3+r}, v{ACC3+8*kq+r}')
        a.label(f'K3_W{kq}')
    a.e('s_mul_i32 s23, s15, 6144')
    a.e('v_add_u32 v5, s23, v5')
    a.wait_lg0()
    a.e('s_barrier')
    RD = 144
    for j in range(3):
        for h in range(2):
            a.lds(f'ds_read_b128 v[{RD+8*j+4*h}:{RD+8*j+4*h+3}], v5 offset:{j * 2048 + h * 1024}', f'r{j}')
    for r in range(0, 8, 2):
        a.unpack(24 + r, 25 + r, X + r // 2)
    for j in range(3):
        a.wait_lg(f'r{j}')
        for r in range(0, 8, 2):
            a.e(f'v_pk_add_f32 v[{ACC3+r}:{ACC3+r+1}], v[{ACC3+r}:{ACC3+r+1}], v[{RD+8*j+r}:{RD+8*j+r+1}]')
    a.wait_vm('gb')
    T = 32
    for r in range(0, 8, 2):
        a.rnd2(ACC3 + r, ACC3 + r + 1, ACC3 + r, ACC3 + r + 1, T + r // 2)
    for r in range(0, 8, 2):
        a.e(f'v_pk_mul_f32 v[{ACC3+r}:{ACC3+r+1}], v[{ACC3+r}:{ACC3+r+1}], v[{8+r}:{9+r}]')
    for r in range(0, 8, 2):
        a.rnd2(ACC3 + r, ACC3 + r + 1, ACC3 + r, ACC3 + r + 1, T + r // 2)
    for r in range(0, 8, 2):
        a.e(f'v_pk_add_f32 v[{ACC3+r}:{ACC3+r+1}], v[{ACC3+r}:{ACC3+r+1}], v[{24+r}:{25+r}]')
    for r in range(0, 8, 2):
        a.e(f'v_cvt_pk_bf16_f32 v{T + r // 2}, v{ACC3+r}, v{ACC3+r+1}')
    a.vmem(f'buffer_store_dwordx4 v[{T}:{T+3}], v7, s[28:31], s51 offen', 'o')
    a.stamp(13)
    if STAMPS:
        a.e('s_waitcnt vmcnt(0)')
    a.stamp_out(2, 24, 14, wshift=9)
    a.label('K2_END')
    a.e('s_endpgm')
    a.end_kernel(name, 256, 64, NV)
    return f'; @launch kernel={name} grid=({K23_WG},1,1) block=(512,1,1) lds={K23_LDS}'
```

```python
import sys, re

NAME = 'adaLN_cond__ssm_conv_h3__glu_gated_reglu__prompt'

MB = 1 << 20
WS_KVT = 0 * MB
WS_QT = 2 * MB
WS_X1T = 4 * MB
WS_X1R = 6 * MB
WS_WF = 8 * MB
WS_WDF = 12 * MB
WS_HF = 16 * MB
WS_NM = 24 * MB
WS_RS = 24 * MB + 8192
WS_MOD = 24 * MB + 65536
WS_UT = 24 * MB + 131072
WS_CNT = 24 * MB + 196608
WS_SIZE = 0x10000000
WS_DBG = 32 * MB
import os
STAMPS = bool(os.environ.get('STAMPS'))

KA_Q, KA_K, KA_V, KA_SHIFT, KA_SSMK, KA_SSMD, KA_BX, KA_WG, KA_WU, KA_WD, KA_C, KA_WMOD, KA_OUT, KA_DBG, KA_WS = [8 * i for i in range(15)]


def _regs(tok):
    tok = tok.strip()
    m = re.match(r'^-?\|?([vas])\[(\d+):(\d+)\]\|?$', tok)
    if m:
        return [f'{m.group(1)}{i}' for i in range(int(m.group(2)), int(m.group(3)) + 1)]
    m = re.match(r'^-?\|?([vas])(\d+)\|?$', tok)
    if m:
        return [f'{m.group(1)}{m.group(2)}']
    if tok in ('vcc', 'exec', 'm0'):
        return [tok]
    return []


TRANS = ('v_exp_f32', 'v_log_f32', 'v_rcp_f32', 'v_rsq_f32', 'v_sqrt_f32', 'v_sin_f32', 'v_cos_f32')


class Hazards:
    def __init__(self):
        self.pos = 0
        self.wr = {}
        self.crd = {}
        self.st = {}

    def flush(self, a):
        need = 0
        for r, (p, k, op) in self.wr.items():
            lim = {'mfma': 8, 'dot': 3, 'trans': 2, 'valu': 5 if r[0] in 's' or r in ('vcc', 'exec') else 2, 'salu_m0': 1}.get(k, 0)
            need = max(need, lim - (self.pos - p - 1))
        for r, p in self.crd.items():
            need = max(need, 3 - (self.pos - p - 1))
        for r, p in self.st.items():
            need = max(need, 2 - (self.pos - p - 1))
        self.nop(a, need)
        self.wr, self.crd, self.st = {}, {}, {}

    def nop(self, a, n):
        while n > 0:
            k = min(n, 16)
            a.lines.append(f'    s_nop {k - 1}')
            self.pos += k
            n -= k

    def emit(self, a, l):
        code = l.split(';')[0].strip()
        parts = code.split(None, 1)
        op = parts[0]
        ops = []
        if len(parts) > 1:
            for t in parts[1].split(','):
                ops.append(t.strip().split(' ')[0])
        if op.startswith(('s_cbranch', 's_branch')):
            self.flush(a)
        is_mfma = op.startswith('v_mfma')
        is_valu = op.startswith('v_') and not is_mfma
        is_ds = op.startswith('ds_')
        is_vmem = op.startswith('buffer_') or op.startswith('global_')
        is_dpp = is_valu and ('_dpp' in op or 'quad_perm' in code or 'row_' in code)
        dst, src, srcC, data = [], [], [], []
        if is_mfma:
            dst = _regs(ops[0]); src = _regs(ops[1]) + _regs(ops[2]); srcC = _regs(ops[3])
        elif is_valu:
            if op.startswith('v_permlane') and 'swap' in op:
                dst = _regs(ops[0]) + _regs(ops[1]); src = list(dst)
            elif op.startswith('v_swap'):
                dst = _regs(ops[0]) + _regs(ops[1]); src = list(dst)
            elif op.startswith('v_cmpx'):
                dst = ['exec']; src = sum((_regs(o) for o in ops), [])
            elif op in ('v_add_co_u32', 'v_sub_co_u32', 'v_addc_co_u32', 'v_subb_co_u32'):
                dst = _regs(ops[0]) + _regs(ops[1]); src = sum((_regs(o) for o in ops[2:]), [])
            else:
                dst = _regs(ops[0]); src = sum((_regs(o) for o in ops[1:]), [])
                if op.startswith(('v_fmac', 'v_dot2c', 'v_pk_fmac', 'v_mac')) or is_dpp or op.startswith('v_writelane'):
                    src += dst
                if op.startswith('v_cndmask') and len(ops) == 3:
                    src += ['vcc']
            if op.startswith('v_dot'):
                srcC = _regs(ops[3]) if len(ops) > 3 else list(dst)
        elif is_ds:
            if op.startswith('ds_read') or op.startswith('ds_bpermute') or op.startswith('ds_permute'):
                dst = _regs(ops[0]); src = sum((_regs(o) for o in ops[1:]), [])
            else:
                src = sum((_regs(o) for o in ops), [])
        elif is_vmem:
            if '_load' in op and ' lds' not in code:
                dst = _regs(ops[0]); src = sum((_regs(o) for o in ops[1:]), [])
            elif '_load' in op:
                src = sum((_regs(o) for o in ops), []) + ['m0']
            else:
                src = sum((_regs(o) for o in ops), [])
                if 'x3' in op or 'x4' in op:
                    data = _regs(ops[0] if op.startswith('buffer_') else ops[1])
        elif op.startswith('s_') and ops:
            if not op.startswith(('s_cmp', 's_cbranch', 's_branch', 's_waitcnt', 's_nop', 's_barrier', 's_setprio', 's_endpgm')):
                dst = _regs(ops[0]); src = sum((_regs(o) for o in ops[1:]), [])
                if 'saveexec' in op:
                    dst = dst + ['exec']
        need = 0

        def req(p, n):
            nonlocal need
            need = max(need, n - (self.pos - p - 1))
        for r in set(src + srcC):
            if r not in self.wr:
                continue
            p, k, pop = self.wr[r]
            if k == 'mfma':
                if is_mfma:
                    if r in src:
                        req(p, 8)
                    elif ops[3] != pop:
                        req(p, 6)
                elif is_valu or is_ds or is_vmem:
                    req(p, 8)
            elif k == 'dot':
                if op == pop and r in srcC and r not in _regs(ops[1]) + _regs(ops[2]):
                    pass
                elif is_valu or is_mfma or is_ds or is_vmem:
                    req(p, 3)
            elif k in ('valu', 'trans'):
                if r[0] == 'v' and r != 'vcc' or r[0] == 'a':
                    if is_mfma:
                        req(p, 2)
                    if is_dpp or op.startswith('v_permlane'):
                        req(p, 2)
                    if op.startswith(('v_readlane', 'v_readfirstlane')):
                        req(p, 1)
                    if k == 'trans' and is_valu and op not in TRANS:
                        req(p, 1)
                else:
                    if is_vmem:
                        req(p, 5)
                    if is_valu:
                        req(p, 4 if op.startswith(('v_readlane', 'v_writelane')) else 2)
            elif k == 'salu_m0':
                req(p, 1)
        if 'exec' in self.wr and self.wr['exec'][1] == 'valu':
            p = self.wr['exec'][0]
            if is_mfma or op.startswith(('v_readlane', 'v_readfirstlane', 'v_writelane', 'v_permlane')):
                req(p, 4)
            if is_dpp:
                req(p, 5)
        for r in dst:
            if r in self.wr:
                p, k, pop = self.wr[r]
                if k == 'mfma' and not is_mfma:
                    req(p, 8)
                if k == 'mfma' and is_mfma and ops[0] != pop:
                    req(p, 8)
                if k == 'dot' and op != pop:
                    req(p, 3)
            if is_valu and r in self.crd:
                req(self.crd[r], 3)
            if r in self.st:
                req(self.st[r], 2 if is_valu else 1)
        self.nop(a, need)
        a.lines.append('    ' + l)
        here = self.pos
        if op == 's_nop':
            self.pos += int(ops[0]) + 1
        else:
            self.pos += 1
        for r in dst:
            if is_mfma:
                self.wr[r] = (here, 'mfma', ops[0])
            elif op.startswith('v_dot'):
                self.wr[r] = (here, 'dot', op)
            elif op in TRANS:
                self.wr[r] = (here, 'trans', op)
            elif is_valu:
                self.wr[r] = (here, 'valu', op)
            elif r == 'm0':
                self.wr[r] = (here, 'salu_m0', op)
            else:
                self.wr.pop(r, None)
        if is_mfma:
            for r in srcC:
                self.crd[r] = here
        for r in data:
            self.st[r] = here
        if op.startswith(('s_cbranch', 's_branch')):
            pass


class Asm:
    def __init__(self):
        self.lines = []
        self.vm = []
        self.lg = []
        self.hz = Hazards()
        self.nvm = 0

    def e(self, s):
        for l in s.strip('\n').split('\n'):
            l = l.strip()
            if not l:
                continue
            self.hz.emit(self, l)

    def label(self, s):
        self.hz.flush(self)
        self.lines.append(s + ':')

    def raw(self, s):
        self.lines.append(s)

    def vmem(self, s, tag=None):
        self.e(s)
        self.vm.append(tag)
        self.nvm += 1

    def lds(self, s, tag=None):
        self.e(s)
        self.lg.append(tag)

    def wait_vm(self, tag):
        idx = max(i for i, t in enumerate(self.vm) if t == tag)
        n = len(self.vm) - 1 - idx
        assert n <= 63
        self.e(f's_waitcnt vmcnt({n})')
        self.vm = self.vm[idx + 1:]

    def wait_lg(self, tag):
        idx = max(i for i, t in enumerate(self.lg) if t == tag)
        n = len(self.lg) - 1 - idx
        if n > 15:
            n = 15
            idx = len(self.lg) - 1 - 15
            self.e(f's_waitcnt lgkmcnt({n})')
            self.lg = self.lg[idx + 1:]
            return self.wait_lg(tag) if tag in self.lg else None
        self.e(f's_waitcnt lgkmcnt({n})')
        self.lg = self.lg[idx + 1:]

    def wait_all(self):
        self.e('s_waitcnt vmcnt(0) lgkmcnt(0)')
        self.vm = []
        self.lg = []

    def wait_vm0(self):
        self.e('s_waitcnt vmcnt(0)')
        self.vm = []

    def wait_lg0(self):
        self.e('s_waitcnt lgkmcnt(0)')
        self.lg = []

    def srd(self, d, base, nbytes):
        self.e(f's_mov_b32 s{d}, s{base}')
        self.e(f's_and_b32 s{d+1}, s{base+1}, 0xffff')
        self.e(f's_mov_b32 s{d+2}, {nbytes}')
        self.e(f's_mov_b32 s{d+3}, 0x00020000')

    def rnd2(self, lo, hi, a, b, tmp):
        self.e(f'v_cvt_pk_bf16_f32 v{tmp}, v{a}, v{b}')
        self.e(f'v_lshlrev_b32 v{lo}, 16, v{tmp}')
        self.e(f'v_and_b32 v{hi}, 0xffff0000, v{tmp}')

    def unpack(self, lo, hi, src):
        self.e(f'v_lshlrev_b32 v{lo}, 16, v{src}')
        self.e(f'v_and_b32 v{hi}, 0xffff0000, v{src}')

    def stamp(self, k):
        if STAMPS:
            self.e(f's_memrealtime s[{70+2*k}:{71+2*k}]')

    def stamp_out(self, kern, srd, n, tid='v0', wshift=8):
        if not STAMPS:
            return
        self.stamp(n)
        self.e('s_mov_b64 exec, -1')
        self.e('s_waitcnt lgkmcnt(0)')
        self.e(f'v_lshrrev_b32 v1, 6, {tid}')
        self.e(f'v_and_b32 v2, 63, {tid}')
        self.e('v_lshlrev_b32 v1, 6, v1')
        self.e('v_lshl_add_u32 v1, v2, 2, v1')
        self.e('v_mov_b32 v3, 0')
        for k in range(n + 1):
            self.e(f'v_writelane_b32 v3, s{70+2*k}, {k}')
        self.e(f's_lshl_b32 s68, s2, {wshift}')
        self.e(f's_add_u32 s68, s68, {WS_DBG + kern * MB}')
        self.e('v_cmp_gt_u32 vcc, 16, v2')
        self.e('s_and_saveexec_b64 s[66:67], vcc')
        self.e(f'buffer_store_dword v3, v1, s[{srd}:{srd+3}], s68 offen')

    def begin_kernel(self, name):
        self.raw('.text')
        self.raw(f'.globl {name}')
        self.raw('.p2align 8')
        self.raw(f'.type {name},@function')
        self.label(name)
        self.vm = []
        self.lg = []

    def end_kernel(self, name, vgpr, sgpr, accum):
        self.raw('.section .rodata,"a"')
        self.raw('.p2align 6')
        self.raw(f'.amdhsa_kernel {name}')
        self.raw(f'  .amdhsa_next_free_vgpr {vgpr}')
        self.raw(f'  .amdhsa_next_free_sgpr {102 if STAMPS else sgpr}')
        self.raw(f'  .amdhsa_accum_offset {accum}')
        self.raw('  .amdhsa_group_segment_fixed_size 0')
        self.raw('  .amdhsa_kernarg_size 120')
        self.raw('  .amdhsa_user_sgpr_count 2')
        self.raw('  .amdhsa_user_sgpr_kernarg_segment_ptr 1')
        self.raw('  .amdhsa_system_sgpr_workgroup_id_x 1')
        self.raw('  .amdhsa_float_denorm_mode_32 3')
        self.raw('.end_amdhsa_kernel')

    def text(self):
        return '\n'.join(self.lines) + '\n'


def row_reduce_add(a, regs):
    for mod in ('quad_perm:[1,0,3,2]', 'quad_perm:[2,3,0,1]', 'row_half_mirror', 'row_mirror'):
        for r in regs:
            a.e(f'v_add_f32_dpp v{r}, v{r}, v{r} {mod} row_mask:0xf bank_mask:0xf')
        if len(regs) < 3:
            a.e(f's_nop {2 - len(regs)}' if len(regs) < 2 else 's_nop 0')


def wave_total(a, regs, sbase):
    a.e('s_nop 0')
    for i, r in enumerate(regs):
        for k in range(4):
            a.e(f'v_readlane_b32 s{sbase + 4 * i + k}, v{r}, {16 * k}')
    a.e('s_nop 1')
    for i, r in enumerate(regs):
        a.e(f'v_mov_b32 v{r}, s{sbase + 4 * i}')
    for k in range(1, 4):
        for i, r in enumerate(regs):
            a.e(f'v_add_f32 v{r}, s{sbase + 4 * i + k}, v{r}')


K0_TILES = 256
K0_MODWG = 96
K0_WDWG = 64
K0_LDS = 28672


def gen_k0(a):
    name = 'k0_prep_kernel'
    a.begin_kernel(name)
    a.e(f's_cmp_ge_u32 s2, {K0_TILES + K0_MODWG + K0_WDWG}')
    a.e('s_cbranch_scc1 K0_END')
    a.e(f's_cmp_ge_u32 s2, {K0_TILES + K0_MODWG}')
    a.e('s_cbranch_scc1 K0_WD')
    a.e(f's_cmp_ge_u32 s2, {K0_TILES}')
    a.e('s_cbranch_scc1 K0_MOD')
    a.stamp(0)
    a.e(f's_load_dwordx4 s[4:7], s[0:1], {KA_Q}')
    a.e(f's_load_dwordx4 s[8:11], s[0:1], {KA_V}')
    a.e(f's_load_dwordx2 s[12:13], s[0:1], {KA_WS}')
    a.e('s_lshr_b32 s14, s2, 3')
    a.e('s_and_b32 s15, s2, 7')
    a.e('v_and_b32 v1, 31, v0')
    a.e('v_lshrrev_b32 v2, 5, v0')
    a.e('s_lshl_b32 s16, s14, 6')
    a.e('v_lshlrev_b32 v3, 3, v2')
    a.e('v_add_u32 v3, s16, v3')
    a.e('s_lshl_b32 s17, s15, 7')
    a.e('v_lshlrev_b32 v4, 2, v1')
    a.e('v_add_u32 v4, s17, v4')
    a.e('v_lshl_add_u32 v5, v3, 10, v4')
    a.e('v_subrev_u32 v6, 3072, v5')
    a.e('v_subrev_u32 v7, 2048, v5')
    a.e('v_subrev_u32 v8, 1024, v5')
    a.e('v_add_u32 v9, 4096, v5')
    a.e('v_lshlrev_b32 v44, 2, v4')
    a.e('v_lshrrev_b32 v45, 6, v0')
    a.e('v_and_b32 v46, 63, v0')
    a.e('s_lshl_b32 s18, s2, 3')
    a.e('v_lshlrev_b32 v47, 1, v45')
    a.e('v_add_u32 v47, s18, v47')
    a.e('v_lshlrev_b32 v48, 4, v46')
    a.e('v_lshl_add_u32 v48, v47, 10, v48')
    a.e('s_waitcnt lgkmcnt(0)')
    a.srd(20, 4, 2097152)
    a.srd(24, 6, 2097152)
    a.srd(28, 8, 2097152)
    a.srd(32, 10, 4096)
    a.srd(36, 12, WS_SIZE)
    a.vmem('buffer_load_dwordx4 v[40:43], v44, s[32:35], 0 offen', 'sh')
    for i, r in enumerate((6, 7, 8)):
        a.vmem(f'buffer_load_dword v{10 + i}, v{r}, s[24:27], 0 offen', 'k')
    for i in range(8):
        a.vmem(f'buffer_load_dword v{13 + i}, v{5 if i < 4 else 9}, s[24:27], 0 offen offset:{1024 * (i & 3)}', 'k')
    for i in range(8):
        a.vmem(f'buffer_load_dword v{21 + i}, v{5 if i < 4 else 9}, s[28:31], 0 offen offset:{1024 * (i & 3)}', 'v')
    for i in range(8):
        a.vmem(f'buffer_load_dword v{29 + i}, v{5 if i < 4 else 9}, s[20:23], 0 offen offset:{1024 * (i & 3)}', 'q')
    a.vmem('buffer_load_dwordx4 v[52:55], v48, s[20:23], 0 offen', 'st')
    a.vmem('buffer_load_dwordx4 v[56:59], v48, s[20:23], 0 offen offset:1024', 'st')
    a.e('v_lshlrev_b32 v49, 11, v4')
    a.e('v_lshlrev_b32 v50, 1, v3')
    a.e('v_add_u32 v51, v49, v50')
    a.e(f'v_add_u32 v51, {WS_QT}, v51')
    a.e('v_sub_u32 v50, 4080, v50')
    a.e('v_add_u32 v49, v49, v50')
    a.wait_vm('sh')
    W0, W1 = 60, 64
    a.unpack(W0 + 0, W0 + 1, 40)
    a.unpack(W0 + 2, W0 + 3, 41)
    a.unpack(W1 + 0, W1 + 1, 42)
    a.unpack(W1 + 2, W1 + 3, 43)
    a.wait_vm('k')
    a.stamp(1)
    KL, KH = 70, 82
    for i in range(11):
        a.unpack(KL + i, KH + i, 10 + i)
    a.wait_vm('v')
    R = 100
    for i in range(8):
        A0, A1, P0, P1, T = 94, 95, 96, 97, 98
        a.e(f'v_mul_f32 v{P0}, v{KL + i}, v{W0 + 3}')
        a.e(f'v_mul_f32 v{P1}, v{KH + i}, v{W1 + 3}')
        a.rnd2(A0, A1, P0, P1, T)
        for t in range(1, 4):
            a.e(f'v_mul_f32 v{P0}, v{KL + i + t}, v{W0 + 3 - t}')
            a.e(f'v_mul_f32 v{P1}, v{KH + i + t}, v{W1 + 3 - t}')
            a.rnd2(P0, P1, P0, P1, T)
            a.e(f'v_add_f32 v{A0}, v{A0}, v{P0}')
            a.e(f'v_add_f32 v{A1}, v{A1}, v{P1}')
            a.rnd2(A0, A1, A0, A1, T)
        a.unpack(P0, P1, 21 + i)
        a.e(f'v_mul_f32 v{P0}, v{A0}, v{P0}')
        a.e(f'v_mul_f32 v{P1}, v{A1}, v{P1}')
        a.e(f'v_cvt_pk_bf16_f32 v{R + i}, v{P0}, v{P1}')
    a.e('s_mov_b32 s40, 0x05040100')
    a.e('s_mov_b32 s41, 0x07060302')
    O = 108
    for j in range(4):
        a.e(f'v_perm_b32 v{O + j}, v{R + 6 - 2 * j}, v{R + 7 - 2 * j}, s40')
        a.e(f'v_perm_b32 v{O + 4 + j}, v{R + 6 - 2 * j}, v{R + 7 - 2 * j}, s41')
    a.vmem(f'buffer_store_dwordx4 v[{O}:{O + 3}], v49, s[36:39], 0 offen', 'o')
    a.e('v_add_u32 v50, 4096, v49')
    a.vmem(f'buffer_store_dwordx4 v[{O + 4}:{O + 7}], v50, s[36:39], 0 offen', 'o')
    a.wait_vm('q')
    O2 = 116
    for j in range(4):
        a.e(f'v_perm_b32 v{O2 + j}, v{29 + 2 * j + 1}, v{29 + 2 * j}, s40')
        a.e(f'v_perm_b32 v{O2 + 4 + j}, v{29 + 2 * j + 1}, v{29 + 2 * j}, s41')
    a.vmem(f'buffer_store_dwordx4 v[{O2}:{O2 + 3}], v51, s[36:39], 0 offen', 'o')
    a.e('v_add_u32 v50, 4096, v51')
    a.vmem(f'buffer_store_dwordx4 v[{O2 + 4}:{O2 + 7}], v50, s[36:39], 0 offen', 'o')
    a.wait_vm('st')
    X = 70
    for r in range(2):
        for j in range(4):
            a.unpack(X + 8 * r + 2 * j, X + 8 * r + 2 * j + 1, 52 + 4 * r + j)
    S0, S1 = 90, 91
    for r, S in ((0, S0), (1, S1)):
        a.e(f'v_add_f32 v{S}, v{X + 8 * r}, v{X + 8 * r + 1}')
        for j in range(2, 8):
            a.e(f'v_add_f32 v{S}, v{S}, v{X + 8 * r + j}')
    a.e('s_nop 1')
    row_reduce_add(a, [S0, S1])
    wave_total(a, [S0, S1], 44)
    a.e(f'v_mul_f32 v{S0}, 0x3b000000, v{S0}')
    a.e(f'v_mul_f32 v{S1}, 0x3b000000, v{S1}')
    Q0, Q1 = 92, 93
    for r, S, Q in ((0, S0, Q0), (1, S1, Q1)):
        for j in range(8):
            a.e(f'v_sub_f32 v{X + 8 * r + j}, v{X + 8 * r + j}, v{S}')
        a.e(f'v_mul_f32 v{Q}, v{X + 8 * r}, v{X + 8 * r}')
        for j in range(1, 8):
            a.e(f'v_fmac_f32 v{Q}, v{X + 8 * r + j}, v{X + 8 * r + j}')
    a.e('s_nop 1')
    row_reduce_add(a, [Q0, Q1])
    wave_total(a, [Q0, Q1], 44)
    a.e(f'v_mul_f32 v{Q0}, 0x3b000000, v{Q0}')
    a.e(f'v_mul_f32 v{Q1}, 0x3b000000, v{Q1}')
    a.rnd2(Q0, Q1, Q0, Q1, 94)
    a.e(f'v_add_f32 v{Q0}, 0x3727c5ac, v{Q0}')
    a.e(f'v_add_f32 v{Q1}, 0x3727c5ac, v{Q1}')
    a.rnd2(Q0, Q1, Q0, Q1, 94)
    a.e(f'v_sqrt_f32 v{Q0}, v{Q0}')
    a.e(f'v_sqrt_f32 v{Q1}, v{Q1}')
    a.rnd2(Q0, Q1, Q0, Q1, 94)
    a.rnd2(S0, S1, S0, S1, 94)
    a.e(f'v_rcp_f32 v94, v{Q0}')
    a.e(f'v_rcp_f32 v95, v{Q1}')
    a.e(f'v_xor_b32 v{S0}, 0x80000000, v{S0}')
    a.e(f'v_xor_b32 v{S1}, 0x80000000, v{S1}')
    a.e(f'v_fma_f32 v{Q0}, -v{Q0}, v94, 1.0')
    a.e(f'v_fma_f32 v{Q1}, -v{Q1}, v95, 1.0')
    a.e(f'v_fmac_f32 v94, v{Q0}, v94')
    a.e(f'v_fmac_f32 v95, v{Q1}, v95')
    a.e('v_lshlrev_b32 v96, 2, v47')
    a.e(f'v_add_u32 v96, {WS_NM}, v96')
    a.e(f'v_add_u32 v97, {WS_RS - WS_NM}, v96')
    a.e('v_cmp_eq_u32 vcc, 0, v46')
    a.e('s_and_saveexec_b64 s[42:43], vcc')
    a.vmem(f'buffer_store_dwordx2 v[{S0}:{S1}], v96, s[36:39], 0 offen', 'o')
    a.vmem('buffer_store_dwordx2 v[94:95], v97, s[36:39], 0 offen', 'o')
    a.stamp(2)
    if STAMPS:
        a.e('s_waitcnt vmcnt(0)')
    a.stamp_out(0, 36, 3)
    a.e('s_endpgm')
    a.label('K0_MOD')
    a.vm = []
    a.e(f's_load_dwordx4 s[4:7], s[0:1], {KA_C}')
    a.e(f's_load_dwordx2 s[12:13], s[0:1], {KA_WS}')
    a.e(f's_sub_u32 s14, s2, {K0_TILES}')
    a.e('s_and_b32 s15, s14, 7')
    a.e('s_lshr_b32 s16, s14, 3')
    a.e('s_mul_i32 s15, s15, 12')
    a.e('s_add_u32 s15, s15, s16')
    a.e('s_lshl_b32 s17, s15, 6')
    a.e('v_and_b32 v1, 63, v0')
    a.e('v_lshrrev_b32 v2, 6, v0')
    a.e('v_lshrrev_b32 v3, 2, v1')
    a.e('v_and_b32 v4, 3, v1')
    a.e('v_lshl_add_u32 v5, v2, 7, v3')
    a.e('s_movk_i32 s18, 6144')
    a.e('v_mul_lo_u32 v6, v5, s18')
    a.e('v_lshl_add_u32 v6, v4, 4, v6')
    a.e('v_add_u32 v6, s17, v6')
    a.e('v_lshlrev_b32 v7, 1, v5')
    a.e('s_waitcnt lgkmcnt(0)')
    a.srd(20, 4, 1024)
    a.srd(24, 6, 3145728)
    a.srd(36, 12, WS_SIZE)
    for i in range(8):
        a.vmem(f'buffer_load_ushort v{10 + i}, v7, s[20:23], 0 offen offset:{32 * i}', 'c')
    for i in range(8):
        a.e(f's_mov_b32 s{44 + i}, {98304 * i}')
    for i in range(8):
        a.vmem(f'buffer_load_dwordx4 v[{20 + 4 * i}:{23 + 4 * i}], v6, s[24:27], s{44 + i} offen', f'w{i}')
    a.wait_vm('c')
    for i in range(8):
        a.e(f'v_lshlrev_b32 v{10 + i}, 16, v{10 + i}')
        a.e(f'v_mul_f32 v{60 + i}, 0xbfb8aa3b, v{10 + i}')
    for i in range(8):
        a.e(f'v_exp_f32 v{60 + i}, v{60 + i}')
    a.e('s_nop 0')
    for i in range(8):
        a.e(f'v_add_f32 v{60 + i}, 1.0, v{60 + i}')
    for i in range(8):
        a.e(f'v_rcp_f32 v{60 + i}, v{60 + i}')
    a.e('s_nop 0')
    for i in range(8):
        a.e(f'v_mul_f32 v{60 + i}, v{10 + i}, v{60 + i}')
    for i in range(0, 8, 2):
        a.rnd2(60 + i, 61 + i, 60 + i, 61 + i, 68)
    ACC = 72
    for i in range(8):
        a.wait_vm(f'w{i}')
        for j in range(4):
            a.unpack(80, 81, 20 + 4 * i + j)
            if i == 0:
                a.e(f'v_mul_f32 v{ACC + 2 * j}, v80, v60')
                a.e(f'v_mul_f32 v{ACC + 2 * j + 1}, v81, v60')
            else:
                a.e(f'v_fmac_f32 v{ACC + 2 * j}, v80, v{60 + i}')
                a.e(f'v_fmac_f32 v{ACC + 2 * j + 1}, v81, v{60 + i}')
    a.e('s_nop 1')
    for mod in ('row_ror:4', 'row_ror:8'):
        for j in range(8):
            a.e(f'v_add_f32_dpp v{ACC + j}, v{ACC + j}, v{ACC + j} {mod} row_mask:0xf bank_mask:0xf')
    a.e('v_lshrrev_b32 v8, 4, v1')
    a.e('v_lshl_add_u32 v8, v2, 2, v8')
    a.e('v_lshl_add_u32 v8, v8, 2, v4')
    a.e('v_lshlrev_b32 v8, 5, v8')
    a.e('v_and_b32 v9, 12, v1')
    a.e('v_cmp_eq_u32 vcc, 0, v9')
    a.e('s_and_saveexec_b64 s[42:43], vcc')
    a.e(f'ds_write_b128 v8, v[{ACC}:{ACC + 3}]')
    a.e(f'ds_write_b128 v8, v[{ACC + 4}:{ACC + 7}] offset:16')
    a.e('s_mov_b64 exec, s[42:43]')
    a.e('s_waitcnt lgkmcnt(0)')
    a.e('s_barrier')
    a.e('v_cmp_gt_u32 vcc, 32, v0')
    a.e('s_and_saveexec_b64 s[42:43], vcc')
    a.e('s_cbranch_execz K0_END')
    a.e('v_lshlrev_b32 v8, 2, v0')
    for i in range(16):
        a.e(f'ds_read_b32 v{20 + i}, v8 offset:{128 * i}')
    a.e('s_waitcnt lgkmcnt(0)')
    for i in range(1, 16):
        a.e(f'v_add_f32 v20, v20, v{20 + i}')
    a.rnd2(20, 21, 20, 20, 22)
    a.e('s_lshl_b32 s17, s15, 7')
    a.e(f's_add_u32 s17, s17, {WS_MOD}')
    a.e('buffer_store_dword v20, v8, s[36:39], s17 offen')
    a.e('s_endpgm')
    a.label('K0_WD')
    a.vm, a.lg = [], []
    a.e(f's_load_dwordx2 s[4:5], s[0:1], {KA_WD}')
    a.e(f's_load_dwordx2 s[8:9], s[0:1], {KA_WS}')
    a.e(f's_sub_u32 s10, s2, {K0_TILES + K0_MODWG}')
    a.e('s_lshr_b32 s11, s10, 2')
    a.e('s_and_b32 s12, s10, 3')
    a.e('v_lshrrev_b32 v2, 6, v0')
    a.e('v_and_b32 v1, 63, v0')
    a.e('v_readfirstlane_b32 s13, v2')
    a.e('v_lshrrev_b32 v3, 4, v1')
    a.e('v_and_b32 v4, 15, v1')
    a.e('v_lshlrev_b32 v5, 4, v4')
    a.e('v_lshl_add_u32 v5, v3, 10, v5')
    a.e('v_lshlrev_b32 v18, 4, v1')
    a.e('s_mul_i32 s14, s11, 114688')
    a.e('s_lshl_b32 s15, s12, 8')
    a.e('s_add_u32 s14, s14, s15')
    a.e('s_mul_i32 s15, s13, 28672')
    a.e('s_add_u32 s14, s14, s15')
    a.e('s_mul_i32 s16, s13, 7168')
    a.e('s_waitcnt lgkmcnt(0)')
    a.srd(20, 4, 1792 * 512 * 2)
    a.srd(24, 8, WS_SIZE)
    for i in range(7):
        a.e(f's_add_u32 m0, s16, {1024 * i}')
        a.e(f's_add_u32 s17, s14, {4096 * i}')
        a.vmem('buffer_load_dwordx4 v5, s[20:23], s17 offen lds', 'w')
    a.e('s_cmp_lg_u32 s10, 0')
    a.e('s_cbranch_scc1 K0_WD1')
    a.e('v_lshlrev_b32 v6, 4, v0')
    for i in range(4):
        a.e(f'v_mov_b32 v{20+i}, 0')
    a.e(f's_mov_b32 s17, {WS_CNT}')
    for i in range(3):
        a.e(f's_mov_b32 s17, {WS_CNT + 4096 * i}')
        a.e('buffer_store_dwordx4 v[20:23], v6, s[24:27], s17 offen')
    a.label('K0_WD1')
    a.e('v_bfe_u32 v6, v1, 2, 2')
    a.e('v_and_b32 v7, 3, v1')
    a.e('v_lshl_add_u32 v6, v3, 2, v6')
    a.e('v_lshlrev_b32 v6, 8, v6')
    a.e('v_lshl_add_u32 v6, v7, 4, v6')
    a.e('s_lshr_b32 s15, s13, 1')
    a.e('s_and_b32 s16, s13, 1')
    a.e('s_lshl_b32 s17, s15, 6')
    a.e('s_lshl_b32 s18, s16, 3')
    a.e('s_add_u32 s17, s17, s18')
    a.e('v_add_u32 v8, s17, v6')
    a.e('s_lshl_b32 s17, s15, 7')
    a.e('s_lshl_b32 s18, s16, 6')
    a.e('s_add_u32 s17, s17, s18')
    a.e('v_add_u32 v9, s17, v6')
    a.e('s_lshl_b32 s17, s12, 5')
    a.e('s_add_u32 s17, s17, s11')
    a.e('s_mul_i32 s17, s17, 14336')
    a.e(f's_add_u32 s17, s17, {WS_WDF}')
    a.e('s_lshl_b32 s18, s13, 10')
    a.e('s_add_u32 s18, s18, s17')
    a.e('s_mul_i32 s19, s15, 229376')
    a.e('s_add_u32 s19, s19, s17')
    a.e('s_lshl_b32 s28, s16, 10')
    a.e('s_add_u32 s19, s19, s28')
    a.e('s_add_u32 s19, s19, 12288')
    a.wait_vm0()
    a.e('s_barrier')
    n = 0
    for dbl in range(2):
        for kb in range(3):
            for half in range(2):
                a.lds(f'ds_read_b64_tr_b16 v[{32+4*n+2*half}:{33+4*n+2*half}], v8 offset:{(32*kb+16*half)*256 + 128*dbl}', f't{n}')
            n += 1
    for half in range(2):
        a.lds(f'ds_read_b64_tr_b16 v[{32+4*n+2*half}:{33+4*n+2*half}], v9 offset:{96*256 + 8*half}', f't{n}')
    n = 0
    for dbl in range(2):
        for kb in range(3):
            a.e(f's_add_u32 s28, s18, {dbl * 229376 + kb * 4096}')
            a.wait_lg(f't{n}')
            a.vmem(f'buffer_store_dwordx4 v[{32+4*n}:{35+4*n}], v18, s[24:27], s28 offen', 'o')
            n += 1
    a.wait_lg(f't{n}')
    a.vmem(f'buffer_store_dwordx4 v[{32+4*n}:{35+4*n}], v18, s[24:27], s19 offen', 'o')
    a.label('K0_END')
    a.e('s_endpgm')
    a.end_kernel(name, 128, 64, 128)
    return f'; @launch kernel={name} grid=({K0_TILES + K0_MODWG + K0_WDWG},1,1) block=(256,1,1) lds={K0_LDS}'


HEADER = open('cdna_kernels/' + NAME + '.s.ref').read().split('; Override launch')[0]


def build(kernels):
    a = Asm()
    launches = [k(a) for k in kernels]
    return HEADER + '\n'.join(launches) + '\n.amdgcn_target "amdgcn-amd-amdhsa--gfx950"\n' + a.text()


if __name__ == '__main__':
    ks = [gen_k0]
    out = sys.argv[1] if len(sys.argv) > 1 else 'cur.s'
    open(out, 'w').write(build(ks))
```

```python
from gen import *
from k1 import KC_STRIDE, KC_OFFS, KC_NIB, R_OFF, K1_CH, interleave
import os

KM_WG = 256
SLOT = 24576
NSLOT = 6
B_OFF = 14336
UTL = NSLOT * SLOT
X1L = UTL + 2048
LCNT = X1L + 8192
KM_LDS = LCNT + 256
PART = 2 * K1_CH
STG = PART + 32768
HX = STG
SPIN = 400000
NV = 176
BARS = [0, 1, 2, 3, 4, 6, 8, 10, 12, 14, 15]
ISSUE = {0: [4, 5], 1: [6], 2: [7], 3: [8], 4: [9, 10], 6: [11, 12], 8: [13, 14], 10: [15]}
XBCHK = 3
WDR = {6: 4, 8: 4, 10: 8, 12: 4}
PSLEEP = int(os.environ.get('PSLEEP', '1'))
WS_UTP = WS_X1R
HMC, HMG, XAC, XAR, XBC, XBR = [WS_CNT + 128 * i for i in (0, 16, 32, 40, 56, 64)]


def quad(r):
    k, n = r[0], int(r[1:])
    return f'{k}[{n}:{n+3}]'


STN = os.environ.get('STN', 'start,B1,cA,B3,B4,B5,B0,k8,lend,join,drain,hoff,down,end').split(',')


def gen_km(a):
    def stamp(n):
        if n in STN:
            a.stamp(STN.index(n))
    name = 'k1_main_kernel'
    a.begin_kernel(name)
    a.e(f's_cmp_ge_u32 s2, {KM_WG}')
    a.e('s_cbranch_scc1 KM_END')
    stamp('start')
    a.e(f's_load_dwordx2 s[8:9], s[0:1], {KA_WS}')
    a.e(f's_load_dwordx4 s[40:43], s[0:1], {KA_SSMK}')
    a.e(f's_load_dwordx4 s[44:47], s[0:1], {KA_WG}')
    a.e(f's_load_dwordx2 s[4:5], s[0:1], {KA_OUT}')
    a.e('v_lshrrev_b32 v15, 6, v0')
    a.e('v_and_b32 v1, 63, v0')
    a.e('v_readfirstlane_b32 s10, v15')
    a.e('s_and_b32 s11, s2, 7')
    a.e('s_lshr_b32 s12, s2, 3')
    a.e('s_lshr_b32 s13, s11, 1')
    a.e('s_lshl_b32 s13, s13, 2')
    a.e('s_and_b32 s14, s12, 3')
    a.e('s_add_u32 s13, s13, s14')
    a.e('s_and_b32 s14, s11, 1')
    a.e('s_lshl_b32 s14, s14, 3')
    a.e('s_lshr_b32 s15, s12, 2')
    a.e('s_add_u32 s14, s14, s15')
    a.e('s_and_b32 s15, s10, 3')
    a.e('v_lshlrev_b32 v6, 4, v1')
    a.e('v_and_b32 v7, 15, v1')
    a.e('v_lshrrev_b32 v8, 4, v1')
    a.e('s_lshl_b32 s16, s2, 12')
    a.e('s_lshl_b32 s17, s15, 10')
    a.e('s_add_u32 s18, s16, s17')
    a.e('s_cmp_ge_u32 s10, 4')
    a.e('s_cbranch_scc1 KM_AUX')

    NM, RS, QS, KV, QF, KVD = 64, 72, [80, 84], 88, 96, 104
    cGL, cGH, cAL, cAH, cDL, cDH, cSA = 20, 21, 22, 23, 24, 25, 26
    T = [112, 116, 120, 124]
    items = [(n, k) for n in range(2) for k in range(2)]

    def pre(c):
        Q = QS[c]
        for n in range(2):
            a.lds(f'ds_read_b64 v[{KV+2*n}:{KV+2*n+1}], v5 offset:{512 * (1 - n) + K1_CH * c}', 'kv')
        sa, ca, ga, dd = [56 + 4 * c + k for k in range(4)]
        a.e(f'v_mov_b32 v{cSA}, s{sa}')
        a.e(f'v_mov_b32 v19, s{ca}')
        a.e('v_add_f32 v19, 1.0, v19')
        a.e(f'v_cvt_pk_bf16_f32 v{cGL}, v19, 0')
        a.e(f'v_lshlrev_b32 v{cGH}, 16, v{cGL}')
        a.e(f'v_mov_b32 v{cAH}, s{ga}')
        a.e(f'v_lshrrev_b32 v{cAL}, 16, v{cAH}')
        a.e(f's_lshr_b32 s36, s{dd}, 16')
        a.e(f's_and_b32 s39, s{dd}, 0xffff')
        a.e('s_bitcmp1_b32 s2, 0')
        a.e('s_cselect_b32 s36, s36, s39')
        a.e(f'v_mov_b32 v{cDL}, s36')
        a.e(f'v_lshlrev_b32 v{cDH}, 16, v{cDL}')
        if 'ep' in a.vm:
            a.wait_vm('ep')

        def each(fn):
            for s, (n, k) in enumerate(items):
                fn(T[s], n, k)
        each(lambda t, n, k: a.e(f'v_dot2_f32_bf16 v{t}, v{Q+2*n+k}, s34, v{NM+4*n+2*k}'))
        each(lambda t, n, k: a.e(f'v_dot2_f32_bf16 v{t+1}, v{Q+2*n+k}, s35, v{NM+4*n+2*k+1}'))
        each(lambda t, n, k: a.e(f'v_lshlrev_b32 v{QF+4*n+2*k}, 16, v{Q+2*n+k}'))
        each(lambda t, n, k: a.e(f'v_and_b32 v{QF+4*n+2*k+1}, 0xffff0000, v{Q+2*n+k}'))
        each(lambda t, n, k: a.e(f'v_cvt_pk_bf16_f32 v{t+2}, v{t}, v{t+1}'))
        each(lambda t, n, k: a.e(f'v_lshlrev_b32 v{t}, 16, v{t+2}'))
        each(lambda t, n, k: a.e(f'v_and_b32 v{t+1}, 0xffff0000, v{t+2}'))
        each(lambda t, n, k: a.e(f'v_mul_f32 v{t}, v{t}, v{RS+4*n+2*k}'))
        each(lambda t, n, k: a.e(f'v_mul_f32 v{t+1}, v{t+1}, v{RS+4*n+2*k+1}'))
        each(lambda t, n, k: a.e(f'v_cvt_pk_bf16_f32 v{t+2}, v{t}, v{t+1}'))
        each(lambda t, n, k: a.e(f'v_dot2_f32_bf16 v{t}, v{t+2}, v{cGL}, 0'))
        each(lambda t, n, k: a.e(f'v_dot2_f32_bf16 v{t+1}, v{t+2}, v{cGH}, 0'))
        a.wait_lg('kv')
        each(lambda t, n, k: a.e(f'v_dot2_f32_bf16 v{KVD+4*n+2*k}, v{KV+2*n+1-k}, v{cDH}, 0'))
        each(lambda t, n, k: a.e(f'v_cvt_pk_bf16_f32 v{t+2}, v{t}, v{t+1}'))
        each(lambda t, n, k: a.e(f'v_dot2_f32_bf16 v{t}, v{t+2}, s34, v{cSA}'))
        each(lambda t, n, k: a.e(f'v_dot2_f32_bf16 v{t+1}, v{t+2}, s35, v{cSA}'))
        each(lambda t, n, k: a.e(f'v_dot2_f32_bf16 v{KVD+4*n+2*k+1}, v{KV+2*n+1-k}, v{cDL}, 0'))
        each(lambda t, n, k: a.e(f'v_cvt_pk_bf16_f32 v{Q+2*n+k}, v{t}, v{t+1}'))

    RD, TP, XO = 128, 160, 112

    def post(c):
        H = QS[c]
        for q in range(4):
            for n in range(2):
                a.lds(f'ds_read_b128 v[{RD+16*n+4*q}:{RD+16*n+4*q+3}], v4 offset:{4096 * n + 1024 * q}', f'p{q}')
        a.wait_lg('p1')
        for n in range(2):
            for k in range(4):
                a.e(f'v_add_f32 v{RD+16*n+k}, v{RD+16*n+k}, v{RD+16*n+4+k}')
        a.wait_lg('p3')
        for n in range(2):
            for k in range(4):
                a.e(f'v_add_f32 v{RD+16*n+8+k}, v{RD+16*n+8+k}, v{RD+16*n+12+k}')
        for n in range(2):
            for k in range(4):
                a.e(f'v_add_f32 v{RD+16*n+k}, v{RD+16*n+k}, v{RD+16*n+8+k}')

        def allp(fn):
            for s, (n, k) in enumerate(items):
                fn(TP + 4 * s, n, k, RD + 16 * n + 2 * k)
        allp(lambda t, n, k, y: a.e(f'v_cvt_pk_bf16_f32 v{t}, v{y}, v{KVD+4*n+2*k}'))
        allp(lambda t, n, k, y: a.e(f'v_cvt_pk_bf16_f32 v{t+1}, v{y+1}, v{KVD+4*n+2*k+1}'))
        allp(lambda t, n, k, y: a.e(f'v_dot2_f32_bf16 v{t+2}, v{t}, s33, 0'))
        allp(lambda t, n, k, y: a.e(f'v_dot2_f32_bf16 v{t+3}, v{t+1}, s33, 0'))
        allp(lambda t, n, k, y: a.e(f'v_cvt_pk_bf16_f32 v{t}, v{t+2}, 0'))
        allp(lambda t, n, k, y: a.e(f'v_cvt_pk_bf16_f32 v{t+1}, 0, v{t+3}'))
        allp(lambda t, n, k, y: a.e(f'v_dot2_f32_bf16 v{t+2}, v{H+2*n+k}, v{t}, 0'))
        allp(lambda t, n, k, y: a.e(f'v_dot2_f32_bf16 v{t+3}, v{H+2*n+k}, v{t+1}, 0'))
        allp(lambda t, n, k, y: a.e(f'v_cvt_pk_bf16_f32 v{t}, v{t+2}, v{t+3}'))
        allp(lambda t, n, k, y: a.e(f'v_dot2_f32_bf16 v{t+2}, v{t}, v{cAL}, 0'))
        allp(lambda t, n, k, y: a.e(f'v_dot2_f32_bf16 v{t+3}, v{t}, v{cAH}, 0'))
        allp(lambda t, n, k, y: a.e(f'v_cvt_pk_bf16_f32 v{t}, v{t+2}, v{t+3}'))
        allp(lambda t, n, k, y: a.e(f'v_dot2_f32_bf16 v{t+2}, v{t}, s34, v{QF+4*n+2*k}'))
        allp(lambda t, n, k, y: a.e(f'v_dot2_f32_bf16 v{t+3}, v{t}, s35, v{QF+4*n+2*k+1}'))
        xo = XO + 4 * c
        allp(lambda t, n, k, y: a.e(f'v_cvt_pk_bf16_f32 v{xo+2*n+k}, v{t+2}, v{t+3}'))
        a.e(f'v_permlane16_swap_b32 v{xo}, v{xo+2}')
        a.e(f'v_permlane16_swap_b32 v{xo+1}, v{xo+3}')
        a.e(f's_add_u32 s36, s18, {WS_X1T + 0x100000 * c}')
        a.vmem(f'buffer_store_dwordx4 v[{xo}:{xo+3}], v14, s[24:27], s36 offen sc1', f'x{c}')

    def arrive1(cbase):
        a.e('s_lshr_b32 s36, s2, 5')
        a.e('s_lshl_b32 s36, s36, 7')
        a.e(f's_add_u32 s36, s36, {cbase}')
        a.e('v_mov_b32 v16, 0')
        a.e('v_mov_b32 v27, 1')
        a.e('buffer_atomic_add v27, v16, s[24:27], s36 offen sc0 sc1')

    def arrive2(rbase, lab):
        a.e('s_waitcnt vmcnt(0)')
        a.e('v_readfirstlane_b32 s36, v27')
        a.e('s_cmp_lg_u32 s36, 31')
        a.e(f's_cbranch_scc1 {lab}')
        a.e('v_lshlrev_b32 v16, 7, v1')
        a.e('v_mov_b32 v17, 1')
        a.e(f's_mov_b32 s36, {rbase}')
        a.e('s_mov_b64 exec, 0xffff')
        a.e('buffer_atomic_add v17, v16, s[24:27], s36 offen sc1')
        a.e('s_mov_b64 exec, -1')
        a.label(lab)


    def epi_addr():
        a.e('s_lshl_b32 s36, s15, 13')
        a.e(f's_add_u32 s36, s36, {PART}')
        a.e('v_add_u32 v4, s36, v6')
        a.e('v_and_b32 v14, 1, v8')
        a.e('v_lshlrev_b32 v14, 9, v14')
        a.e('v_lshl_add_u32 v14, v7, 5, v14')
        a.e('v_lshrrev_b32 v15, 1, v8')
        a.e('v_lshl_add_u32 v14, v15, 4, v14')
        a.e('s_mul_i32 s36, s15, 5120')
        a.e(f's_add_u32 s36, s36, {HX}')
        a.e('v_add_u32 v12, s36, v6')
        a.e('s_mov_b32 s33, 0x3f803f80')
        a.e('s_mov_b32 s34, 0x00003f80')
        a.e('s_mov_b32 s35, 0x3f800000')

    def lds_arrive(sreg):
        a.e(f'v_mov_b32 v16, {LCNT}')
        a.e('v_mov_b32 v17, 1')
        a.e('s_mov_b64 exec, 1')
        a.e('ds_add_rtn_u32 v19, v16, v17')
        a.wait_lg0()
        a.e(f'v_readfirstlane_b32 {sreg}, v19')

    a.e('v_lshlrev_b32 v4, 4, v0')
    a.e('v_subrev_u32 v5, 16, v4')
    a.e('s_waitcnt lgkmcnt(0)')
    a.e('s_add_u32 s40, s40, s16')
    a.e('s_addc_u32 s41, s41, 0')
    a.srd(48, 40, 4096)
    a.e('s_add_u32 s40, s40, 0x100000')
    a.e('s_addc_u32 s41, s41, 0')
    a.srd(52, 40, 4096)
    a.srd(24, 8, WS_SIZE)
    LR = [32, 64]
    a.vmem(f'buffer_load_dwordx4 v[{LR[0]}:{LR[0]+3}], v5, s[48:51], 0 offen', 'k0')
    a.vmem(f'buffer_load_dwordx4 v[{LR[0]+4}:{LR[0]+7}], v4, s[48:51], 0 offen', 'k0')
    a.e(f's_add_u32 m0, s17, {R_OFF}')
    a.vmem('buffer_load_dwordx4 v6, s[24:27], s18 offen lds', 'r0')

    def loads_b():
        a.vmem(f'buffer_load_dwordx4 v[{LR[1]}:{LR[1]+3}], v5, s[52:55], 0 offen', 'k1')
        a.vmem(f'buffer_load_dwordx4 v[{LR[1]+4}:{LR[1]+7}], v4, s[52:55], 0 offen', 'k1')
        a.e(f's_add_u32 m0, s17, {R_OFF + K1_CH}')
        a.e('s_add_u32 s19, s18, 0x100000')
        a.vmem('buffer_load_dwordx4 v6, s[24:27], s19 offen lds', 'r1')
    a.e('s_lshl_b32 s19, s2, 2')
    a.e(f's_add_u32 s19, s19, {WS_MOD + 4096 + 1024}')
    a.e('s_load_dword s62, s[8:9], s19')
    a.srd(28, 4, 2048 * 512 * 2)
    Z = 28
    for i in range(4):
        a.e(f'v_mov_b32 v{Z+i}, 0')
    a.e('v_and_b32 v19, 7, v0')
    a.e('v_lshlrev_b32 v20, 2, v19')
    a.e(f's_mov_b32 s33, 0x{KC_NIB:08x}')
    a.e('v_lshrrev_b32 v20, v20, s33')
    a.e('v_and_b32 v20, 15, v20')
    a.e(f's_movk_i32 s34, {KC_STRIDE}')
    a.e('v_mul_lo_u32 v19, v19, s34')
    a.e('v_lshl_add_u32 v19, v20, 4, v19')
    a.e('v_lshrrev_b32 v20, 3, v0')
    a.e('v_lshl_add_u32 v19, v20, 4, v19')
    a.e('v_cmp_gt_u32 vcc, 9, v0')
    a.e('s_and_saveexec_b64 s[36:37], vcc')
    for c in range(2):
        a.lds(f'ds_write_b128 v19, v[{Z}:{Z+3}] offset:{K1_CH * c}')
    a.e('s_mov_b64 exec, s[36:37]')
    a.e('v_subrev_u32 v20, 64, v0')
    a.e(f'v_add_u32 v21, {K1_CH}, v4')
    a.e('v_cmp_gt_u32 vcc, 30, v20')
    a.e('s_and_saveexec_b64 s[36:37], vcc')
    a.lds(f'ds_write_b128 v4, v[{Z}:{Z+3}] offset:{R_OFF + 4096 - 1024}')
    a.lds(f'ds_write_b128 v21, v[{Z}:{Z+3}] offset:{R_OFF + 4096 - 1024}')
    a.e('s_mov_b64 exec, s[36:37]')
    a.e('v_add_u32 v19, 1, v7')
    a.e('v_and_b32 v20, 7, v19')
    a.e('v_lshlrev_b32 v22, 2, v20')
    a.e('v_lshrrev_b32 v22, v22, s33')
    a.e('v_and_b32 v22, 15, v22')
    a.e('v_mul_lo_u32 v20, v20, s34')
    a.e('v_lshl_add_u32 v20, v22, 4, v20')
    a.e('v_and_b32 v19, 0x18, v19')
    a.e('v_lshl_add_u32 v19, v8, 3, v19')
    a.e('v_lshl_add_u32 v20, v19, 1, v20')
    a.e('s_lshl_b32 s35, s15, 7')
    a.e('v_add_u32 v2, s35, v20')
    a.e('v_lshlrev_b32 v19, 5, v7')
    a.e('v_lshlrev_b32 v20, 4, v8')
    a.e('v_sub_u32 v19, v20, v19')
    a.e(f's_add_u32 s38, s35, {R_OFF + 480}')
    a.e('v_add_u32 v3, s38, v19')
    a.e(f'v_add_u32 v9, {K1_CH}, v2')
    a.e(f'v_add_u32 v10, {K1_CH}, v3')
    a.e(f's_add_u32 s38, s17, {PART}')
    a.e('v_add_u32 v11, s38, v6')

    def build(c):
        W = LR[c]
        X, O, O2 = 80, 86, 92
        vw = 4 if c == 0 else 21
        a.wait_vm(f'k{c}')
        if c == 0:
            loads_b()

        def wr(e, r, extra=0):
            a.lds(f'ds_write_b128 v{vw}, v[{r}:{r+3}] offset:{e * KC_STRIDE + KC_OFFS[e] * 16 + 16 + extra}')
        wr(0, W + 4, 16)
        wr(4, W + 2)
        for k in range(6):
            a.e(f'v_mov_b32 v{X + k}, v{W + k + 1}')
        wr(2, X)
        wr(6, X + 2)
        for k in range(6):
            a.e(f'v_alignbit_b32 v{O + k}, v{W + k + 1}, v{W + k}, 16')
        wr(1, O)
        wr(5, O + 2)
        for k in range(6):
            a.e(f'v_alignbit_b32 v{O2 + k}, v{W + k + 2}, v{W + k + 1}, 16')
        wr(3, O2)
        wr(7, O2 + 2)
        a.wait_vm(f'r{c}')
        a.wait_lg0()

    ACCC = 32

    def fq(q):
        return f'a[{4*q}:{4*q+3}]' if q < 20 else f'v[{128 + 4 * (q - 20)}:{131 + 4 * (q - 20)}]'

    def conv(c):
        va, vb = (2, 3) if c == 0 else (9, 10)

        def rd_a(r, i):
            return lambda: a.lds(f'ds_read_b128 {fq(16 * r + i)}, v{va} offset:{64 * (r + 8 * i)}', f'a{r}_{i}')

        def rd_b(r, j):
            return lambda: a.lds(f'ds_read_b128 {fq(16 * r + 8 + j)}, v{vb} offset:{64 * (r + 56 - 8 * j)}', f'b{r}_{j}')

        def reads(r):
            return [rd_a(r, 0)] + [rd_b(r, j) for j in range(8)] + [rd_a(r, i) for i in range(1, 8)]
        order = [(i, j) for i in range(8) for j in range(8 - i)]
        order.remove((7, 0))
        order.insert(order.index((5, 0)), (7, 0))

        def mfma(r, i, j, first):
            def f():
                for t in (f'a{r}_{i}', f'b{r}_{j}'):
                    if t in a.lg:
                        a.wait_lg(t)
                nb = i + j
                cc = '0' if first else f'v[{ACCC + 4 * nb}:{ACCC + 4 * nb + 3}]'
                a.e(f'v_mfma_f32_16x16x32_bf16 v[{ACCC + 4 * nb}:{ACCC + 4 * nb + 3}], {fq(16 * r + i)}, {fq(16 * r + 8 + j)}, {cc}')
            return f
        for f in reads(0):
            f()
        interleave(a, [mfma(0, i, j, i == 0) for (i, j) in order], reads(1), start=10, per=1)
        order2 = sorted(order, key=lambda p: (p[0] + p[1], p[0]))
        seq = []
        for lo in range(0, 8, 2):
            x = [p for p in order2 if p[0] + p[1] == lo]
            y = [p for p in order2 if p[0] + p[1] == lo + 1]
            while x or y:
                if y:
                    seq.append(y.pop(0))
                if x:
                    seq.append(x.pop(0))
        done = []
        for k, (i, j) in enumerate(seq):
            mfma(1, i, j, False)()
            for nb in range(8):
                last = max(q for q, p in enumerate(seq) if p[0] + p[1] == nb)
                if nb not in done and last + 3 <= k:
                    a.lds(f'ds_write_b128 v11, v[{ACCC+4*nb}:{ACCC+4*nb+3}] offset:{4096 * nb}', 'pw')
                    done.append(nb)
        for nb in range(8):
            if nb not in done:
                a.lds(f'ds_write_b128 v11, v[{ACCC+4*nb}:{ACCC+4*nb+3}] offset:{4096 * nb}', 'pw')
        a.wait_lg0()

    build(0)
    a.e('s_barrier')
    stamp('B1')
    conv(0)
    stamp('cA')
    a.e('s_barrier')
    build(1)
    epi_addr()
    a.e(f'v_mov_b32 v{cAH}, s62')
    a.e(f'v_lshrrev_b32 v{cAL}, 16, v{cAH}')
    a.e('s_barrier')
    stamp('B3')
    conv(1)
    a.e('s_barrier')
    stamp('B4')
    for q, r in enumerate((QS[1], QF, QF + 4, KVD, KVD + 4)):
        a.lds(f'ds_read_b128 v[{r}:{r+3}], v12 offset:{1024 * q}', 'hx')
    post(1)
    a.e('s_branch KM_COMPUTE')

    a.label('KM_AUX')
    a.vm, a.lg = [], []
    a.e('v_lshlrev_b32 v9, 5, v7')
    a.e('v_lshl_add_u32 v9, v8, 3, v9')
    a.e('v_lshlrev_b32 v18, 1, v9')
    a.e('v_lshrrev_b32 v10, 1, v1')
    a.e('s_movk_i32 s19, 3584')
    a.e('v_mul_lo_u32 v10, v10, s19')
    a.e('v_and_b32 v11, 1, v1')
    a.e('v_lshl_add_u32 v10, v11, 4, v10')
    a.e('v_lshlrev_b32 v19, 5, v8')
    a.e('s_lshl_b32 s19, s2, 2')
    a.e(f's_add_u32 s19, s19, {WS_MOD}')
    a.e('s_lshl_b32 s20, s2, 1')
    a.e('s_and_b32 s20, s20, 0xfffffffc')
    a.e('s_mul_i32 s21, s13, 114688')
    a.e('s_mul_i32 s22, s14, 224')
    a.e('s_add_u32 s21, s21, s22')
    a.e('s_lshl_b32 s22, s15, 12')
    a.e(f's_add_u32 s22, s22, {STG}')
    a.e(f'v_mov_b32 v16, {LCNT}')
    a.e('v_mov_b32 v17, 0')
    a.e('ds_write_b32 v16, v17')
    a.e('s_waitcnt lgkmcnt(0)')
    a.srd(24, 8, WS_SIZE)
    for c in range(2):
        for k in range(3):
            a.e(f's_add_u32 s23, s19, {2048 * k + 1024 * c}')
            a.e(f's_load_dword s{56 + 4 * c + k}, s[8:9], s23')
        a.e(f's_add_u32 s23, s20, {512 * c}')
        a.e(f's_load_dword s{59 + 4 * c}, s[42:43], s23')
    for j in range(4):
        if j < 3:
            a.e(f's_add_u32 s{48+j}, s15, {4 * j}')
        else:
            a.e('s_and_b32 s51, s15, 1')
            a.e('s_add_u32 s51, s51, 12')
        a.e(f's_cmp_ge_u32 s{48+j}, 7')
        a.e('s_cselect_b32 s52, s46, s44')
        a.e('s_cselect_b32 s53, s47, s45')
        a.e('s_cselect_b32 s36, 7, 0')
        a.e(f's_sub_u32 s36, s{48+j}, s36')
        a.e('s_and_b32 s53, s53, 0xffff')
        a.e(f's_mov_b32 s54, {512 * 1792 * 2}')
        a.e('s_mov_b32 s55, 0x00020000')
        a.e('s_lshl_b32 s36, s36, 5')
        a.e('s_add_u32 s36, s36, s21')
        a.e(f's_add_u32 m0, s22, {1024 * j}')
        a.vmem('buffer_load_dwordx4 v10, s[52:55], s36 offen lds', 'wraw')
    CB, SBF, GL, GH, SBP = 32, 40, 48, 52, 56
    a.e('s_lshl_b32 s36, s13, 7')
    a.e(f's_add_u32 s36, s36, {WS_MOD + 3 * 2048}')
    a.vmem(f'buffer_load_dwordx4 v[{SBF}:{SBF+3}], v19, s[24:27], s36 offen', 'cb')
    a.vmem(f'buffer_load_dwordx4 v[{SBF+4}:{SBF+7}], v19, s[24:27], s36 offen offset:16', 'cb')
    a.vmem(f'buffer_load_dwordx4 v[{CB}:{CB+3}], v19, s[24:27], s36 offen offset:2048', 'cb')
    a.vmem(f'buffer_load_dwordx4 v[{CB+4}:{CB+7}], v19, s[24:27], s36 offen offset:2064', 'cb')
    a.e(f's_add_u32 s36, s18, {WS_QT}')
    a.e('s_lshl_b32 s37, s15, 11')
    a.e(f's_add_u32 s38, s37, {WS_NM}')
    a.e(f's_add_u32 s39, s37, {WS_RS}')
    for n in range(2):
        a.vmem(f'buffer_load_dwordx2 v[{QS[0]+2*n}:{QS[0]+2*n+1}], v9, s[24:27], s36 offen offset:{512*n}', 'ep')
        a.vmem(f'buffer_load_dwordx4 v[{NM+4*n}:{NM+4*n+3}], v18, s[24:27], s38 offen offset:{1024*n}', 'ep')
        a.vmem(f'buffer_load_dwordx4 v[{RS+4*n}:{RS+4*n+3}], v18, s[24:27], s39 offen offset:{1024*n}', 'ep')
    a.e('s_add_u32 s65, s36, 0x100000')
    a.srd(28, 4, 2048 * 512 * 2)
    a.e('v_bfe_u32 v11, v1, 2, 2')
    a.e('v_lshl_add_u32 v11, v8, 3, v11')
    a.e('v_lshlrev_b32 v11, 5, v11')
    a.e('v_and_b32 v13, 3, v1')
    a.e('v_lshl_add_u32 v11, v13, 3, v11')
    a.e('v_add_u32 v11, s22, v11')
    a.e('v_lshrrev_b32 v13, 5, v1')
    a.e('s_movk_i32 s36, 448')
    a.e('v_mul_lo_u32 v13, v13, s36')
    a.e('v_lshl_add_u32 v13, v7, 2, v13')
    a.e(f's_sub_u32 s36, {R_OFF + 4088 - 512}, s17')
    a.e('v_sub_u32 v5, s36, v9')
    epi_addr()
    a.e('s_lshl_b32 s36, s14, 4')
    a.e('s_add_u32 s36, s36, s13')
    a.e('s_mul_i32 s37, s36, 14336')
    a.e(f's_add_u32 s37, s37, {WS_WF}')
    a.e('s_mul_i32 s38, s36, 1792')
    a.e(f's_add_u32 s38, s38, {WS_UTP}')
    a.e('s_barrier')
    stamp('B1')
    a.wait_vm('cb')
    a.wait_lg0()
    WR, P, O, U = 128, 144, 152, 168
    for j in range(4):
        for half in range(2):
            a.lds(f'ds_read_b64_tr_b16 v[{WR+4*j+2*half}:{WR+4*j+2*half+1}], v11 offset:{1024 * j + 128 * half}', f'w{j}')
    for k in range(8):
        a.e(f'v_add_f32 v{CB+k}, 1.0, v{CB+k}')
    for k in range(4):
        a.e(f'v_cvt_pk_bf16_f32 v{GL+k}, v{CB+2*k}, 0')
        a.e(f'v_cvt_pk_bf16_f32 v{GH+k}, 0, v{CB+2*k+1}')
        a.e(f'v_cvt_pk_bf16_f32 v{SBP+k}, v{SBF+2*k}, v{SBF+2*k+1}')
    for j in range(4):
        a.wait_lg(f'w{j}')
        for k in range(4):
            a.e(f'v_dot2_f32_bf16 v{P+2*k}, v{WR+4*j+k}, v{GL+k}, 0')
            a.e(f'v_dot2_f32_bf16 v{P+2*k+1}, v{WR+4*j+k}, v{GH+k}, 0')
        for k in range(4):
            a.e(f'v_cvt_pk_bf16_f32 v{O+4*j+k}, v{P+2*k}, v{P+2*k+1}')
        a.e(f's_lshl_b32 s36, s{48+j}, 10')
        a.e('s_add_u32 s36, s36, s37')
        a.vmem(f'buffer_store_dwordx4 v[{O+4*j}:{O+4*j+3}], v6, s[24:27], s36 offen sc1', 'wo')
    for k in range(16):
        a.e(f'v_accvgpr_write_b32 a{k}, v{WR+k}')
        a.e(f'v_accvgpr_write_b32 a{16+k}, v{O+k}')
    for n in range(2):
        a.vmem(f'buffer_load_dwordx2 v[{QS[1]+2*n}:{QS[1]+2*n+1}], v9, s[24:27], s65 offen offset:{512*n}', 'qb')
    pre(0)
    stamp('cA')
    a.e('s_barrier')
    post(0)
    stamp('B3')
    a.e('s_barrier')
    a.wait_vm0()
    lds_arrive('s64')
    a.e('s_cmp_lg_u32 s64, 3')
    a.e('s_cbranch_scc1 KM_S1')
    arrive1(XAC)
    a.label('KM_S1')
    a.e('s_mov_b64 exec, -1')
    pre(1)
    for q, r in enumerate((QS[1], QF, QF + 4, KVD, KVD + 4)):
        a.lds(f'ds_write_b128 v12, v[{r}:{r+3}] offset:{1024 * q}')
    a.e('s_cmp_lg_u32 s64, 3')
    a.e('s_cbranch_scc1 KM_S1B')
    arrive2(XAR, 'KM_S1B')
    a.wait_lg0()
    a.e('s_barrier')
    stamp('B4')
    for k in range(16):
        a.e(f'v_accvgpr_read_b32 v{WR+k}, a{k}')
        a.e(f'v_accvgpr_read_b32 v{O+k}, a{16+k}')
    for k in range(4):
        for j in range(4):
            cc = '0' if k == 0 else f'v{U+2*j+1}'
            a.e(f'v_dot2_f32_bf16 v{U+2*j+1}, v{WR+4*j+k}, v{SBP+k}, {cc}')
        for j in range(4):
            cc = '0' if k == 0 else f'v{U+2*j}'
            a.e(f'v_dot2_f32_bf16 v{U+2*j}, v{O+4*j+k}, s33, {cc}')
    for j in range(4):
        a.e(f'v_permlane32_swap_b32 v{U+2*j}, v{U+2*j+1}')
    for j in range(4):
        a.e(f'v_add_f32 v{U+2*j}, v{U+2*j}, v{U+2*j+1}')
    for j in range(4):
        a.e(f'v_mov_b32 v{U+2*j+1}, v{U+2*j}')
    for j in range(4):
        a.e(f'v_permlane16_swap_b32 v{U+2*j}, v{U+2*j+1}')
    for j in range(4):
        a.e(f'v_add_f32 v{U+2*j}, v{U+2*j}, v{U+2*j+1}')
    a.e('s_mov_b32 s64, 0xffff')
    a.e('s_mov_b32 s65, 0xffff')
    a.e('s_mov_b64 exec, s[64:65]')
    for j in range(4):
        a.e(f's_cmp_ge_u32 s{48+j}, 7')
        a.e('s_cselect_b32 s36, 448, 0')
        a.e(f's_lshl_b32 s39, s{48+j}, 6')
        a.e('s_add_u32 s36, s36, s39')
        a.e('s_add_u32 s36, s36, s38')
        a.vmem(f'buffer_store_dword v{U+2*j}, v13, s[24:27], s36 offen sc1', 'ut')
    a.e('s_mov_b64 exec, -1')

    def mlp_setup():
        a.e('v_lshrrev_b32 v2, 4, v1')
        a.e('v_and_b32 v3, 15, v1')
        a.e('v_lshlrev_b32 v4, 4, v1')
        a.e('s_lshr_b32 s34, s14, 1')
        a.e('s_and_b32 s35, s14, 1')
        a.e('s_mov_b32 s32, s13')
        a.e('s_mul_i32 s37, s34, 229376')
        a.e(f's_add_u32 s37, s37, {WS_WDF}')
        a.e('s_mul_i32 s38, s15, 57344')
        a.e('s_add_u32 s38, s38, s37')
        a.e(f'v_mov_b32 v{VA}, v4')
        for k in (1, 2):
            a.e(f'v_add_u32 v{VA+k}, {2 * SLOT * k}, v4')

    VA, VB0, VB1 = 5, 8, 11
    WREG = [f'a{r}' for r in range(0, 80, 4)]

    def wd_reg(n):
        fr = 36 + n
        if n % 4 == 0:
            a.e(f's_add_u32 s45, s38, {fr * 1024}')
        a.vmem(f'buffer_load_dwordx4 {quad(WREG[n])}, v4, s[24:27], s45 offen offset:{1024 * (n % 4)}', 'wdr')

    mlp_setup()
    a.e('s_mul_i32 s16, s14, 229376')
    a.e(f's_add_u32 s16, s16, {WS_WF}')
    a.e('s_and_b32 s23, s15, 1')
    a.e('s_lshl_b32 s23, s23, 2')
    a.e('v_add_u32 v16, s23, v2')
    a.e('v_lshlrev_b32 v16, 1, v16')
    a.e('v_xor_b32 v16, v16, v3')
    a.e('v_lshlrev_b32 v16, 4, v16')
    a.e('v_lshl_add_u32 v14, v2, 12, v16')
    a.e('s_lshl_b32 s17, s13, 8')
    a.e('s_lshl_b32 s23, s15, 15')
    a.e('s_add_u32 s17, s17, s23')
    a.e(f's_add_u32 s17, s17, {WS_X1T}')
    a.e('s_lshl_b32 s18, s15, 11')
    a.e(f's_add_u32 s18, s18, {B_OFF}')
    a.e('s_mul_i32 s19, s15, 3072')
    a.e('s_add_u32 s20, s16, s19')
    a.e('s_lshr_b32 s21, s15, 1')
    a.e('s_lshl_b32 s21, s21, 10')
    a.e('s_add_u32 s21, s21, 12288')
    a.e('s_add_u32 s22, s16, s21')
    a.e('s_bitcmp1_b32 s15, 0')
    a.e('s_cselect_b32 s46, 0, -1')
    a.e('s_cselect_b32 s47, -1, 0')
    a.e('s_lshl_b32 s39, s15, 10')

    def dma(ks):
        slot = ks % NSLOT
        a.e(f's_add_u32 m0, s18, {slot * SLOT}')
        a.e(f's_add_u32 s23, s17, {ks * 131072}')
        a.vmem('buffer_load_dwordx4 v14, s[24:27], s23 offen sc1 lds', f'D{ks}')
        a.e(f's_add_u32 s23, s17, {ks * 131072 + 16384 - 1024}')
        a.vmem('buffer_load_dwordx4 v14, s[24:27], s23 offen offset:1024 sc1 lds', f'D{ks}')
        a.e(f's_add_u32 m0, s19, {slot * SLOT}')
        a.e(f's_add_u32 s23, s20, {ks * 14336}')
        for e in range(3):
            a.vmem(f'buffer_load_dwordx4 v4, s[24:27], s23 offen offset:{1024 * e} sc1 lds', f'D{ks}')
        a.e(f's_add_u32 m0, s21, {slot * SLOT}')
        a.e(f's_add_u32 s23, s22, {ks * 14336}')
        a.e('s_mov_b64 exec, s[46:47]')
        a.vmem('buffer_load_dwordx4 v4, s[24:27], s23 offen sc1 lds', f'D{ks}')
        a.e('s_mov_b64 exec, -1')

    def wd_lds(it):
        slot = (10 + it) % NSLOT
        for jj in range(6):
            a.e(f's_add_u32 m0, s39, {slot * SLOT + jj * 4096}')
            a.e(f's_add_u32 s23, s38, {(6 * it + jj) * 1024}')
            a.vmem('buffer_load_dwordx4 v4, s[24:27], s23 offen lds', 'wdl')

    a.e('s_cmp_eq_u32 s10, 4')
    a.e('s_cbranch_scc1 KM_P1A')
    sv = list(a.vm)
    for n in range(20):
        wd_reg(n)
    a.wait_vm('ut')
    a.vm = sv
    a.e('s_branch KM_P1W')
    a.label('KM_P1A')
    a.e('s_and_b32 s23, s2, 15')
    a.e('s_lshl_b32 s23, s23, 7')
    a.e(f's_add_u32 s23, s23, {XAR}')
    a.e('v_mov_b32 v16, 0')
    a.e('s_mov_b64 exec, 1')
    a.e(f's_mov_b32 s50, {SPIN}')
    a.label('KM_P1')
    a.e('buffer_load_dword v18, v16, s[24:27], s23 offen sc1')
    a.e('s_waitcnt vmcnt(0)')
    a.e('v_readfirstlane_b32 s36, v18')
    a.e('s_cmp_ge_u32 s36, 8')
    a.e('s_cbranch_scc1 KM_P1R')
    a.e(f's_sleep {PSLEEP}')
    a.e('s_sub_u32 s50, s50, 1')
    a.e('s_cmp_lg_u32 s50, 0')
    a.e('s_cbranch_scc1 KM_P1')
    a.label('KM_P1R')
    a.e('s_mov_b64 exec, -1')
    a.label('KM_P1W')
    a.vm = []
    a.e('s_barrier')
    stamp('B5')
    for ks in range(3):
        dma(ks)
    a.wait_vm('D0')
    a.e('s_barrier')
    stamp('B0')
    dma(3)
    UP = 32

    def utp_loads():
        a.e('s_mul_i32 s23, s14, 28672')
        a.e('s_mul_i32 s36, s15, 448')
        a.e('s_add_u32 s23, s23, s36')
        a.e(f's_add_u32 s23, s23, {WS_UTP}')
        a.e('s_mov_b64 exec, 0xfffffff')
        for k in range(16):
            if k % 2 == 0 and k:
                a.e('s_add_u32 s23, s23, 3584')
            a.vmem(f'buffer_load_dwordx4 v[{UP+4*k}:{UP+4*k+3}], v4, s[24:27], s23 offen offset:{1792 * (k & 1)} sc1', 'utp')
        a.e('s_mov_b64 exec, -1')

    def side():
        a.e('v_lshrrev_b32 v16, 3, v1')
        a.e('v_and_b32 v17, 7, v1')
        a.e('v_lshlrev_b32 v17, 4, v17')
        a.e('v_lshl_add_u32 v16, v16, 12, v17')
        a.e('s_lshl_b32 s23, s34, 2')
        a.e('s_add_u32 s23, s23, s15')
        a.e('s_lshl_b32 s23, s23, 16')
        a.e('s_lshl_b32 s36, s32, 8')
        a.e('s_add_u32 s23, s23, s36')
        a.e('s_lshl_b32 s36, s35, 7')
        a.e('s_add_u32 s23, s23, s36')
        a.e(f's_add_u32 s23, s23, {WS_X1T}')
        a.e('s_lshl_b32 s36, s15, 11')
        a.e(f's_add_u32 m0, s36, {X1L}')
        a.vmem('buffer_load_dwordx4 v16, s[24:27], s23 offen sc1 lds', 'side')
        a.e(f's_add_u32 s23, s23, {32768 - 1024}')
        a.vmem('buffer_load_dwordx4 v16, s[24:27], s23 offen offset:1024 sc1 lds', 'side')

    nreg = 0
    mark = 0
    for bi, ks in enumerate(BARS):
        need = BARS[bi + 1] if bi + 1 < len(BARS) else 15
        if f'D{need}' in a.vm:
            a.wait_vm(f'D{need}')
        if ks == XBCHK:
            a.e('s_cmp_lg_u32 s10, 4')
            a.e('s_cbranch_scc1 KM_P2W')
            a.e(f's_mov_b32 s50, {SPIN}')
            a.e('s_mov_b64 exec, 1')
            a.e(f's_waitcnt vmcnt({a.nvm - mark})')
            a.label('KM_P2')
            a.e('v_readfirstlane_b32 s36, v21')
            a.e('s_cmp_ge_u32 s36, 8')
            a.e('s_cbranch_scc1 KM_P2R')
            a.e('buffer_load_dword v21, v20, s[24:27], s64 offen sc1')
            a.e('s_waitcnt vmcnt(0)')
            a.e('s_sub_u32 s50, s50, 1')
            a.e('s_cmp_lg_u32 s50, 0')
            a.e('s_cbranch_scc1 KM_P2')
            a.label('KM_P2R')
            a.e('s_mov_b64 exec, -1')
            a.label('KM_P2W')
        if ks == 10:
            a.wait_lg0()
        a.e('s_barrier')
        stamp(f'k{ks}')
        if ks == XBCHK - 1:
            a.e('s_cmp_lg_u32 s10, 4')
            a.e('s_cbranch_scc1 KM_P2A')
            a.e('s_and_b32 s64, s2, 15')
            a.e('s_lshl_b32 s64, s64, 7')
            a.e(f's_add_u32 s64, s64, {XBR}')
            a.e('v_mov_b32 v20, 0')
            a.e('s_mov_b64 exec, 1')
            a.e('buffer_load_dword v21, v20, s[24:27], s64 offen sc1')
            a.e('s_mov_b64 exec, -1')
            a.label('KM_P2A')
            mark = a.nvm
        for st in ISSUE.get(ks, ()):
            dma(st)
        if ks == 4:
            side()
            utp_loads()
        if ks == 8:
            a.wait_vm('utp')
            for step in (8, 4, 2, 1):
                for k in range(step):
                    for r in range(4):
                        a.e(f'v_add_f32 v{UP+4*k+r}, v{UP+4*k+r}, v{UP+4*(k+step)+r}')
            a.e('s_lshl_b32 s36, s15, 9')
            a.e(f's_add_u32 s36, s36, {UTL}')
            a.e('v_add_u32 v16, s36, v4')
            a.e('s_mov_b64 exec, 0xfffffff')
            a.lds(f'ds_write_b128 v16, v[{UP}:{UP+3}]')
            a.e('s_mov_b64 exec, -1')
        if ks in WDR:
            a.e('s_cmp_lg_u32 s10, 4')
            a.e(f's_cbranch_scc1 KM_WR{ks}')
            sv, sn = list(a.vm), a.nvm
            for _ in range(WDR[ks]):
                wd_reg(nreg)
                nreg += 1
            a.vm, a.nvm = sv, sn
            a.label(f'KM_WR{ks}')
        for it in {10: (0,), 12: (1, 2), 14: (3, 4), 15: (5,)}.get(ks, ()):
            wd_lds(it)
    assert nreg == 20
    stamp('lend')
    a.e('s_branch K2_JOIN')

    a.label('KM_COMPUTE')
    a.vm, a.lg = [], []
    mlp_setup()
    BF, ONES, ACC, S, Q, MR = 32, 16, 48, 160, 168, 28
    a.e('v_bfe_u32 v16, v1, 2, 2')
    a.e('v_and_b32 v17, 3, v1')
    a.e('v_and_b32 v18, 1, v2')
    a.e('v_lshl_add_u32 v18, v18, 2, v16')
    a.e('v_lshl_add_u32 v16, v2, 3, v16')
    a.e('v_lshlrev_b32 v16, 8, v16')
    a.e('v_lshl_add_u32 v16, v17, 3, v16')
    a.e(f'v_add_u32 v16, {B_OFF}, v16')
    a.e('s_lshl_b32 s22, s15, 1')
    for t, vb in ((0, VB0), (1, VB1)):
        a.e(f's_add_u32 s23, s22, {t}')
        a.e('v_xor_b32 v17, s23, v18')
        a.e(f'v_lshl_add_u32 v{vb}, v17, 5, v16')
        for k in (1, 2):
            a.e(f'v_add_u32 v{vb+k}, {2 * SLOT * k}, v{vb}')
    for k in range(4):
        a.e(f'v_mov_b32 v{ONES+k}, 0x3f803f80')
    a.e('v_lshlrev_b32 v14, 4, v2')
    a.e(f'v_add_u32 v14, {UTL}, v14')
    a.e('s_lshl_b32 s23, s13, 2')
    a.e('s_add_u32 s23, s23, s15')
    a.e('s_lshl_b32 s23, s23, 4')
    a.e('s_add_u32 s23, s23, s14')
    a.e('s_mul_i32 s23, s23, 7168')
    a.e(f's_add_u32 s48, s23, {WS_HF}')
    a.e('s_add_u32 s49, s48, 4096')
    a.e('s_barrier')
    stamp('B5')
    a.e('s_waitcnt vmcnt(0)')
    lds_arrive('s64')
    a.e('s_cmp_lg_u32 s64, 7')
    a.e('s_cbranch_scc1 KM_S2')
    arrive1(XBC)
    a.e('s_mov_b64 exec, -1')
    arrive2(XBR, 'KM_S2')
    a.e('s_mov_b64 exec, -1')
    for k in range(4):
        a.e(f'v_mov_b32 v{ONES+k}, 0x3f803f80')

    RING = 20

    def rd_b(ks):
        slot = ks % NSLOT
        k, o = slot >> 1, (slot & 1) * SLOT
        return [(lambda r=BF + 8 * (ks & 1) + 4 * t + 2 * half, vb=vb, half=half:
                 a.lds(f'ds_read_b64_tr_b16 v[{r}:{r+1}], v{vb+k} offset:{o + half * 1024}', f'B{ks}'))
                for t, vb in ((0, VB0), (1, VB1)) for half in range(2)]

    def stats_ops():
        L = []

        def e(x):
            L.append(lambda x=x: a.e(x))

        def rnd2(lo, hi, tmp):
            e(f'v_cvt_pk_bf16_f32 v{tmp}, v{lo}, v{hi}')
            e(f'v_lshlrev_b32 v{lo}, 16, v{tmp}')
            e(f'v_and_b32 v{hi}, 0xffff0000, v{tmp}')
        e('v_and_b32 v24, 3, v3')
        e('v_lshrrev_b32 v25, 2, v3')
        for t in range(2):
            e(f'v_mov_b32 v{MR+2*t+1}, v{Q+4*t}')
        for k in range(1, 4):
            e(f'v_cmp_eq_u32 vcc, {k}, v24')
            for t in range(2):
                e(f'v_cndmask_b32 v{MR+2*t+1}, v{MR+2*t+1}, v{Q+4*t+k}, vcc')
        e('v_cmp_eq_u32 vcc, v25, v2')
        for t in range(2):
            e(f'v_cndmask_b32 v{MR+2*t+1}, 0, v{MR+2*t+1}, vcc')
        for step in ('v_permlane32_swap_b32', 'v_permlane16_swap_b32'):
            for t in range(2):
                e(f'v_mov_b32 v{26+t}, v{MR+2*t+1}')
            for t in range(2):
                e(f'{step} v{MR+2*t+1}, v{26+t}')
            for t in range(2):
                e(f'v_add_f32 v{MR+2*t+1}, v{MR+2*t+1}, v{26+t}')
        for t in range(2):
            e(f'v_mul_f32 v{MR+2*t}, 0x3b000000, v{S+4*t}')
            e(f'v_mul_f32 v{MR+2*t+1}, 0x3b000000, v{MR+2*t+1}')
        for t in range(2):
            e(f'v_fma_f32 v{MR+2*t+1}, -v{MR+2*t}, v{MR+2*t}, v{MR+2*t+1}')
        for t in range(2):
            e(f'v_max_f32 v{MR+2*t+1}, 0, v{MR+2*t+1}')
        rnd2(MR + 1, MR + 3, 26)
        rnd2(MR + 0, MR + 2, 27)
        for t in range(2):
            e(f'v_add_f32 v{MR+2*t+1}, 0x3727c5ac, v{MR+2*t+1}')
        rnd2(MR + 1, MR + 3, 26)
        for t in range(2):
            e(f'v_sqrt_f32 v{MR+2*t+1}, v{MR+2*t+1}')
        rnd2(MR + 1, MR + 3, 26)
        for t in range(2):
            e(f'v_rcp_f32 v{26+t}, v{MR+2*t+1}')
        for t in range(2):
            e(f'v_fma_f32 v{MR+2*t+1}, -v{MR+2*t+1}, v{26+t}, 1.0')
        for t in range(2):
            e(f'v_fma_f32 v{MR+2*t+1}, v{MR+2*t+1}, v{26+t}, v{26+t}')
        for t in range(2):
            e(f'v_mul_f32 v{MR+2*t}, -v{MR+2*t}, v{MR+2*t+1}')
        return L

    morder = [x for fl in range(7) for x in (fl, 7 + fl)]
    a.e('s_barrier')
    stamp('B0')
    for f in rd_b(0):
        f()
    for j in range(14):
        a.lds(f'ds_read_b128 a[{4*j}:{4*j+3}], v{VA} offset:{morder[j] * 1024}', f'A{j}')

    def rd(n):
        ks, j = divmod(n, 14)
        slot = ks % NSLOT
        k, o = slot >> 1, (slot & 1) * SLOT
        r = 4 * (n % RING)
        a.lds(f'ds_read_b128 a[{r}:{r+3}], v{VA+k} offset:{o + morder[j] * 1024}', f'A{n}')
    for ks in range(16):
        if ks in BARS:
            a.wait_lg0()
            a.e('s_barrier')
            stamp(f'k{ks}')
        pend = []
        if ks + 1 < 16:
            pend = rd_b(ks + 1) + [(lambda n=14 * (ks + 1) + j: rd(n)) for j in range(6)]
        if f'B{ks}' in a.lg:
            a.wait_lg(f'B{ks}')
        st_ops = stats_ops() if ks == 15 else []
        for t in range(2):
            br = BF + 8 * (ks & 1) + 4 * t
            for d, A in ((S + 4 * t, f'v[{ONES}:{ONES+3}]'), (Q + 4 * t, f'v[{br}:{br+3}]')):
                c = '0' if ks == 0 else f'v[{d}:{d+3}]'
                a.e(f'v_mfma_f32_16x16x32_bf16 v[{d}:{d+3}], {A}, v[{br}:{br+3}], {c}')
                if pend:
                    pend.pop(0)()
        for j in range(14):
            n = 14 * ks + j
            if f'A{n}' in a.lg:
                a.wait_lg(f'A{n}')
            ar = 4 * (n % RING)
            for t in range(2):
                br = BF + 8 * (ks & 1) + 4 * t
                d = ACC + 56 * t + 4 * morder[j]
                c = '0' if ks == 0 else f'v[{d}:{d+3}]'
                a.e(f'v_mfma_f32_16x16x32_bf16 v[{d}:{d+3}], a[{ar}:{ar+3}], v[{br}:{br+3}], {c}')
                if pend:
                    pend.pop(0)()
                elif j >= 2:
                    for _ in range(2):
                        if st_ops:
                            st_ops.pop(0)()
            if ks + 1 < 16 and j < 8:
                pend.append(lambda n2=n + RING: rd(n2))
        while pend:
            pend.pop(0)()
        while st_ops:
            st_ops.pop(0)()
    stamp('lend')
    UTR, T, OUT = 32, 16, 160

    def utread(fl):
        for arr in range(4):
            a.lds(f'ds_read_b128 v[{UTR+4*arr}:{UTR+4*arr+3}], v14 offset:{arr * 512 + fl * 64}', f'ut{fl}')
    utread(0)
    for n in range(20):
        wd_reg(n)
    for i in range(7):
        a.wait_lg0()
        for t in range(2):
            mu = MR + 2 * t
            for mat in range(2):
                for p in range(2):
                    tt = UTR + 8 * mat + 4 + 2 * p
                    ac = ACC + 56 * t + 4 * (mat * 7 + i) + 2 * p
                    a.e(f'v_pk_fma_f32 v[{ac}:{ac+1}], v[{mu}:{mu+1}], v[{ac}:{ac+1}], v[{tt}:{tt+1}] op_sel:[1,0,0] op_sel_hi:[1,1,1]')
        for t in range(2):
            mu = MR + 2 * t
            for mat in range(2):
                for p in range(2):
                    u = UTR + 8 * mat + 2 * p
                    ac = ACC + 56 * t + 4 * (mat * 7 + i) + 2 * p
                    a.e(f'v_pk_fma_f32 v[{ac}:{ac+1}], v[{mu}:{mu+1}], v[{u}:{u+1}], v[{ac}:{ac+1}] op_sel_hi:[0,1,1]')
        if i + 1 < 7:
            utread(i + 1)
        for t in range(2):
            for p in range(2):
                g = ACC + 56 * t + 4 * i + 2 * p
                u = ACC + 56 * t + 4 * (7 + i) + 2 * p
                q = T + 3 * (2 * t + p)
                a.e(f'v_cvt_pk_bf16_f32 v{q}, v{g}, v{g+1}')
                a.e(f'v_cvt_pk_bf16_f32 v{q+1}, v{u}, 0')
                a.e(f'v_cvt_pk_bf16_f32 v{q+2}, 0, v{u+1}')
        for t in range(2):
            for p in range(2):
                q = T + 3 * (2 * t + p)
                a.e(f'v_pk_max_i16 v{q}, v{q}, 0')
        for t in range(2):
            for p in range(2):
                g = ACC + 56 * t + 4 * i + 2 * p
                q = T + 3 * (2 * t + p)
                a.e(f'v_dot2_f32_bf16 v{g}, v{q}, v{q+1}, 0')
                a.e(f'v_dot2_f32_bf16 v{g+1}, v{q}, v{q+2}, 0')
        last = (i == 6)
        O = OUT + 8 * ((i >> 1) & 1)
        for t in range(2):
            for p in range(2):
                g = ACC + 56 * t + 4 * i + 2 * p
                o = (O + 2 * t + p) if last else (O + 4 * t + 2 * (i & 1) + p)
                a.e(f'v_cvt_pk_bf16_f32 v{o}, v{g}, v{g+1}')
        if last:
            a.vmem(f'buffer_store_dwordx4 v[{O}:{O+3}], v4, s[24:27], s49 offen offset:{6 * 1024 - 4096} sc1', 'hs')
        elif i & 1:
            kbp = i >> 1
            for t in range(2):
                sl = 3 * t + kbp
                sreg, off = ('s48', sl * 1024) if sl < 4 else ('s49', sl * 1024 - 4096)
                a.vmem(f'buffer_store_dwordx4 v[{O+4*t}:{O+4*t+3}], v4, s[24:27], {sreg} offen offset:{off} sc1', 'hs')
    a.label('K2_JOIN')
    stamp('join')
    a.wait_vm0()
    a.e('s_barrier')
    stamp('drain')
    a.e('s_cmp_lg_u32 s10, 0')
    a.e('s_cbranch_scc1 K2_WAIT')
    a.e('s_lshl_b32 s23, s13, 7')
    a.e(f's_add_u32 s36, s23, {HMG}')
    a.e(f's_add_u32 s23, s23, {HMC}')
    a.e('v_mov_b32 v16, 0')
    a.e('v_mov_b32 v17, 1')
    a.e('v_mov_b32 v18, 1')
    a.e('s_mov_b64 exec, 1')
    a.e('buffer_atomic_add v18, v16, s[24:27], s23 offen sc0 sc1')
    a.e('s_waitcnt vmcnt(0)')
    a.e('v_readfirstlane_b32 s45, v18')
    a.e('s_cmp_lg_u32 s45, 15')
    a.e('s_cbranch_scc1 K2_NL')
    a.e('buffer_store_dword v17, v16, s[24:27], s36 offen sc1')
    a.e('s_branch K2_READY')
    a.label('K2_NL')
    a.e(f's_mov_b32 s50, {SPIN}')
    a.label('K2_POLL')
    a.e('buffer_load_dword v18, v16, s[24:27], s36 offen sc1')
    a.e('s_waitcnt vmcnt(0)')
    a.e('v_readfirstlane_b32 s45, v18')
    a.e('s_cmp_lg_u32 s45, 0')
    a.e('s_cbranch_scc1 K2_READY')
    a.e('s_sub_u32 s50, s50, 1')
    a.e('s_cmp_lg_u32 s50, 0')
    a.e('s_cbranch_scc1 K2_POLL')
    a.label('K2_READY')
    a.e('s_mov_b64 exec, -1')
    a.label('K2_WAIT')
    a.e('s_lshl_b32 s23, s32, 2')
    a.e('s_lshl_b32 s36, s35, 1')
    a.e('s_add_u32 s23, s23, s36')
    a.e('s_lshr_b32 s33, s10, 2')
    a.e('s_add_u32 s23, s23, s33')
    a.e('s_lshl_b32 s23, s23, 4')
    a.e('s_lshl_b32 s36, s15, 2')
    a.e('s_add_u32 s23, s23, s36')
    a.e('s_mul_i32 s23, s23, 7168')
    a.e(f's_add_u32 s48, s23, {WS_HF}')
    a.e('s_lshl_b32 s23, s15, 10')
    for k in range(3):
        a.e(f'v_add_u32 v{VA+k}, s23, v{VA+k}')
    a.e('s_barrier')
    stamp('hoff')
    a.vm, a.lg = [], []
    BREG = [f'v{r}' for r in range(16, 112, 4)]
    ACC3, AT = 112, 144

    def bload(n):
        if n % 4 == 0:
            a.e(f's_add_u32 s49, s48, {n * 1024}')
        a.vmem(f'buffer_load_dwordx4 {quad(BREG[n % 24])}, v4, s[24:27], s49 offen offset:{1024 * (n % 4)} sc1', f'H{n}')
    for n in range(24):
        bload(n)
    steps = [(c, kb) for c in range(4) for kb in range(4)]

    def afrags(c, kb):
        return [14 * c + 4 * kb + tau for tau in range(4)] if kb < 3 else [14 * c + 12, 14 * c + 13]

    def aread(si):
        c, kb = steps[si]
        for i, fr in enumerate(afrags(c, kb)):
            if fr < 36:
                slot = (10 + fr // 6) % NSLOT
                k, o = slot >> 1, (slot & 1) * SLOT + 4096 * (fr % 6)
                r = AT + 16 * (si & 1) + 4 * i
                a.lds(f'ds_read_b128 v[{r}:{r+3}], v{VA+k} offset:{o}', f'A{si}')

    def areg(si, i):
        c, kb = steps[si]
        fr = afrags(c, kb)[i]
        if fr < 36:
            return ('v', AT + 16 * (si & 1) + 4 * i)
        return (WREG[fr - 36][0], int(WREG[fr - 36][1:]))
    aread(0)
    for si, (c, kb) in enumerate(steps):
        if si + 1 < len(steps):
            aread(si + 1)
        if f'A{si}' in a.lg:
            a.wait_lg(f'A{si}')
        first = (si == 0)
        if kb < 3:
            for t in range(2):
                n = 7 * c + 3 * t + kb
                if f'H{n}' in a.vm:
                    a.wait_vm(f'H{n}')
                for tau in range(4):
                    k, r = areg(si, tau)
                    d = ACC3 + 16 * t + 4 * tau
                    cc = '0' if first else f'v[{d}:{d+3}]'
                    a.e(f'v_mfma_f32_16x16x32_bf16 v[{d}:{d+3}], {k}[{r}:{r+3}], {quad(BREG[n % 24])}, {cc}')
        else:
            n = 7 * c + 6
            if f'H{n}' in a.vm:
                a.wait_vm(f'H{n}')
            bk, br = BREG[n % 24][0], int(BREG[n % 24][1:])
            for t in range(2):
                for tau in range(4):
                    k, r = areg(si, tau >> 1)
                    r += 2 * (tau & 1)
                    d = ACC3 + 16 * t + 4 * tau
                    a.e(f'v_mfma_f32_16x16x16_bf16 v[{d}:{d+3}], {k}[{r}:{r+1}], {bk}[{br+2*t}:{br+2*t+1}], v[{d}:{d+3}]')
            if c == 0:
                for n2 in range(24, 28):
                    bload(n2)
                a.e('v_lshlrev_b32 v14, 5, v2')
                a.e('s_lshl_b32 s23, s34, 8')
                a.e('s_and_b32 s36, s15, 1')
                a.e('s_lshl_b32 s36, s36, 7')
                a.e('s_add_u32 s23, s23, s36')
                a.e(f's_add_u32 s23, s23, {WS_MOD + 5 * 2048}')
                a.vmem('buffer_load_dwordx4 v[8:11], v14, s[24:27], s23 offen', 'gb')
                a.vmem('buffer_load_dwordx4 v[12:15], v14, s[24:27], s23 offen offset:16', 'gb')
    stamp('down')
    a.e('s_mul_i32 s23, s33, 24576')
    a.e('v_add_u32 v5, s23, v4')
    a.e('v_bfe_u32 v6, v1, 2, 2')
    a.e('v_lshl_add_u32 v6, v2, 3, v6')
    a.e('v_lshlrev_b32 v6, 7, v6')
    a.e('v_and_b32 v7, 3, v1')
    a.e('v_lshl_add_u32 v6, v7, 3, v6')
    a.e('s_and_b32 s36, s15, 1')
    a.e('s_lshl_b32 s36, s36, 12')
    a.e('s_lshl_b32 s23, s33, 6')
    a.e('s_add_u32 s36, s36, s23')
    a.e('s_lshr_b32 s23, s15, 1')
    a.e('s_lshl_b32 s23, s23, 5')
    a.e('s_add_u32 s36, s36, s23')
    a.e(f's_add_u32 s36, s36, {X1L}')
    a.e('v_add_u32 v6, s36, v6')
    X = 16
    a.lds(f'ds_read_b64_tr_b16 v[{X}:{X+1}], v6', 'x')
    a.lds(f'ds_read_b64_tr_b16 v[{X+2}:{X+3}], v6 offset:512', 'x')
    a.e('v_lshlrev_b32 v7, 10, v3')
    a.e('v_lshl_add_u32 v7, v2, 4, v7')
    a.e('s_lshl_b32 s23, s32, 3')
    a.e('s_lshl_b32 s36, s35, 2')
    a.e('s_add_u32 s23, s23, s36')
    a.e('s_lshl_b32 s36, s33, 1')
    a.e('s_add_u32 s23, s23, s36')
    a.e('s_lshr_b32 s36, s15, 1')
    a.e('s_add_u32 s23, s23, s36')
    a.e('s_lshl_b32 s23, s23, 14')
    a.e('s_lshl_b32 s36, s34, 7')
    a.e('s_add_u32 s23, s23, s36')
    a.e('s_and_b32 s36, s15, 1')
    a.e('s_lshl_b32 s36, s36, 6')
    a.e('s_add_u32 s51, s23, s36')
    a.e('s_barrier')
    for kq in range(4):
        a.e(f's_cmp_eq_u32 s15, {kq}')
        a.e(f's_cbranch_scc0 K3_W{kq}')
        for j in range(4):
            if j == kq:
                continue
            idx = kq if kq < j else kq - 1
            for h in range(2):
                d = ACC3 + 8 * j + 4 * h
                a.e(f'ds_write_b128 v5, v[{d}:{d+3}] offset:{(j * 3 + idx) * 2048 + h * 1024}')
        if kq != 0:
            for r in range(8):
                a.e(f'v_mov_b32 v{ACC3+r}, v{ACC3+8*kq+r}')
        a.label(f'K3_W{kq}')
    a.e('s_mul_i32 s23, s15, 6144')
    a.e('v_add_u32 v5, s23, v5')
    a.wait_lg0()
    a.e('s_barrier')
    RD3 = 144
    for j in range(3):
        for h in range(2):
            a.lds(f'ds_read_b128 v[{RD3+8*j+4*h}:{RD3+8*j+4*h+3}], v5 offset:{j * 2048 + h * 1024}', f'r{j}')
    for r in range(0, 8, 2):
        a.unpack(24 + r, 25 + r, X + r // 2)
    for j in range(3):
        a.wait_lg(f'r{j}')
        for r in range(0, 8, 2):
            a.e(f'v_pk_add_f32 v[{ACC3+r}:{ACC3+r+1}], v[{ACC3+r}:{ACC3+r+1}], v[{RD3+8*j+r}:{RD3+8*j+r+1}]')
    a.wait_vm('gb')
    T = 32
    for r in range(0, 8, 2):
        a.rnd2(ACC3 + r, ACC3 + r + 1, ACC3 + r, ACC3 + r + 1, T + r // 2)
    for r in range(0, 8, 2):
        a.e(f'v_pk_mul_f32 v[{ACC3+r}:{ACC3+r+1}], v[{ACC3+r}:{ACC3+r+1}], v[{8+r}:{9+r}]')
    for r in range(0, 8, 2):
        a.rnd2(ACC3 + r, ACC3 + r + 1, ACC3 + r, ACC3 + r + 1, T + r // 2)
    for r in range(0, 8, 2):
        a.e(f'v_pk_add_f32 v[{ACC3+r}:{ACC3+r+1}], v[{ACC3+r}:{ACC3+r+1}], v[{24+r}:{25+r}]')
    for r in range(0, 8, 2):
        a.e(f'v_cvt_pk_bf16_f32 v{T + r // 2}, v{ACC3+r}, v{ACC3+r+1}')
    a.vmem(f'buffer_store_dwordx4 v[{T}:{T+3}], v7, s[28:31], s51 offen', 'o')
    stamp('end')
    if STAMPS:
        a.e('s_waitcnt vmcnt(0)')
    a.stamp_out(2, 24, 14, wshift=9)
    a.label('KM_END')
    a.e('s_endpgm')
    a.end_kernel(name, 256, 72, NV)
    return f'; @launch kernel={name} grid=({KM_WG},1,1) block=(512,1,1) lds={KM_LDS}'
```

```python
import sys, re

NAME = 'adaLN_cond__ssm_conv_h3__glu_gated_reglu__prompt'

MB = 1 << 20
WS_KVT = 0 * MB
WS_QT = 2 * MB
WS_X1T = 4 * MB
WS_X1R = 6 * MB
WS_WF = 8 * MB
WS_WDF = 12 * MB
WS_HF = 16 * MB
WS_NM = 24 * MB
WS_RS = 24 * MB + 8192
WS_MOD = 24 * MB + 65536
WS_UT = 24 * MB + 131072
WS_CNT = 24 * MB + 196608
WS_SIZE = 0x10000000
WS_DBG = 32 * MB
import os
STAMPS = bool(os.environ.get('STAMPS'))
PAGE = bool(os.environ.get('PAGE'))

KA_Q, KA_K, KA_V, KA_SHIFT, KA_SSMK, KA_SSMD, KA_BX, KA_WG, KA_WU, KA_WD, KA_C, KA_WMOD, KA_OUT, KA_DBG, KA_WS = [8 * i for i in range(15)]


def _regs(tok):
    tok = tok.strip()
    m = re.match(r'^-?\|?([vas])\[(\d+):(\d+)\]\|?$', tok)
    if m:
        return [f'{m.group(1)}{i}' for i in range(int(m.group(2)), int(m.group(3)) + 1)]
    m = re.match(r'^-?\|?([vas])(\d+)\|?$', tok)
    if m:
        return [f'{m.group(1)}{m.group(2)}']
    if tok in ('vcc', 'exec', 'm0'):
        return [tok]
    return []


TRANS = ('v_exp_f32', 'v_log_f32', 'v_rcp_f32', 'v_rsq_f32', 'v_sqrt_f32', 'v_sin_f32', 'v_cos_f32')


class Hazards:
    def __init__(self):
        self.pos = 0
        self.wr = {}
        self.crd = {}
        self.st = {}

    def flush(self, a):
        need = 0
        for r, (p, k, op) in self.wr.items():
            lim = {'mfma': 8, 'dot': 3, 'trans': 2, 'valu': 5 if r[0] in 's' or r in ('vcc', 'exec') else 2, 'salu_m0': 1}.get(k, 0)
            need = max(need, lim - (self.pos - p - 1))
        for r, p in self.crd.items():
            need = max(need, 3 - (self.pos - p - 1))
        for r, p in self.st.items():
            need = max(need, 2 - (self.pos - p - 1))
        self.nop(a, need)
        self.wr, self.crd, self.st = {}, {}, {}

    def nop(self, a, n):
        while n > 0:
            k = min(n, 16)
            a.lines.append(f'    s_nop {k - 1}')
            self.pos += k
            n -= k

    def emit(self, a, l):
        code = l.split(';')[0].strip()
        parts = code.split(None, 1)
        op = parts[0]
        ops = []
        if len(parts) > 1:
            for t in parts[1].split(','):
                ops.append(t.strip().split(' ')[0])
        if op.startswith(('s_cbranch', 's_branch')):
            self.flush(a)
        is_mfma = op.startswith('v_mfma')
        is_valu = op.startswith('v_') and not is_mfma
        is_ds = op.startswith('ds_')
        is_vmem = op.startswith('buffer_') or op.startswith('global_')
        is_dpp = is_valu and ('_dpp' in op or 'quad_perm' in code or 'row_' in code)
        dst, src, srcC, data = [], [], [], []
        if is_mfma:
            dst = _regs(ops[0]); src = _regs(ops[1]) + _regs(ops[2]); srcC = _regs(ops[3])
        elif is_valu:
            if op.startswith('v_permlane') and 'swap' in op:
                dst = _regs(ops[0]) + _regs(ops[1]); src = list(dst)
            elif op.startswith('v_swap'):
                dst = _regs(ops[0]) + _regs(ops[1]); src = list(dst)
            elif op.startswith('v_cmpx'):
                dst = ['exec']; src = sum((_regs(o) for o in ops), [])
            elif op in ('v_add_co_u32', 'v_sub_co_u32', 'v_addc_co_u32', 'v_subb_co_u32'):
                dst = _regs(ops[0]) + _regs(ops[1]); src = sum((_regs(o) for o in ops[2:]), [])
            else:
                dst = _regs(ops[0]); src = sum((_regs(o) for o in ops[1:]), [])
                if op.startswith(('v_fmac', 'v_dot2c', 'v_pk_fmac', 'v_mac')) or is_dpp or op.startswith('v_writelane'):
                    src += dst
                if op.startswith('v_cndmask') and len(ops) == 3:
                    src += ['vcc']
            if op.startswith('v_dot'):
                srcC = _regs(ops[3]) if len(ops) > 3 else list(dst)
        elif is_ds:
            if op.startswith('ds_read') or op.startswith('ds_bpermute') or op.startswith('ds_permute'):
                dst = _regs(ops[0]); src = sum((_regs(o) for o in ops[1:]), [])
            else:
                src = sum((_regs(o) for o in ops), [])
        elif is_vmem:
            if '_load' in op and ' lds' not in code:
                dst = _regs(ops[0]); src = sum((_regs(o) for o in ops[1:]), [])
            elif '_load' in op:
                src = sum((_regs(o) for o in ops), []) + ['m0']
            else:
                src = sum((_regs(o) for o in ops), [])
                if 'x3' in op or 'x4' in op:
                    data = _regs(ops[0] if op.startswith('buffer_') else ops[1])
        elif op.startswith('s_') and ops:
            if not op.startswith(('s_cmp', 's_cbranch', 's_branch', 's_waitcnt', 's_nop', 's_barrier', 's_setprio', 's_endpgm')):
                dst = _regs(ops[0]); src = sum((_regs(o) for o in ops[1:]), [])
                if 'saveexec' in op:
                    dst = dst + ['exec']
        need = 0

        def req(p, n):
            nonlocal need
            need = max(need, n - (self.pos - p - 1))
        for r in set(src + srcC):
            if r not in self.wr:
                continue
            p, k, pop = self.wr[r]
            if k == 'mfma':
                if is_mfma:
                    if r in src:
                        req(p, 8)
                    elif ops[3] != pop:
                        req(p, 6)
                elif is_valu or is_ds or is_vmem:
                    req(p, 8)
            elif k == 'dot':
                if op == pop and r in srcC and r not in _regs(ops[1]) + _regs(ops[2]):
                    pass
                elif is_valu or is_mfma or is_ds or is_vmem:
                    req(p, 3)
            elif k in ('valu', 'trans'):
                if r[0] == 'v' and r != 'vcc' or r[0] == 'a':
                    if is_mfma:
                        req(p, 2)
                    if is_dpp or op.startswith('v_permlane'):
                        req(p, 2)
                    if op.startswith(('v_readlane', 'v_readfirstlane')):
                        req(p, 1)
                    if k == 'trans' and is_valu and op not in TRANS:
                        req(p, 1)
                else:
                    if is_vmem:
                        req(p, 5)
                    if is_valu:
                        req(p, 4 if op.startswith(('v_readlane', 'v_writelane')) else 2)
            elif k == 'salu_m0':
                req(p, 1)
        if 'exec' in self.wr and self.wr['exec'][1] == 'valu':
            p = self.wr['exec'][0]
            if is_mfma or op.startswith(('v_readlane', 'v_readfirstlane', 'v_writelane', 'v_permlane')):
                req(p, 4)
            if is_dpp:
                req(p, 5)
        for r in dst:
            if r in self.wr:
                p, k, pop = self.wr[r]
                if k == 'mfma' and not is_mfma:
                    req(p, 8)
                if k == 'mfma' and is_mfma and ops[0] != pop:
                    req(p, 8)
                if k == 'dot' and op != pop:
                    req(p, 3)
            if is_valu and r in self.crd:
                req(self.crd[r], 3)
            if r in self.st:
                req(self.st[r], 2 if is_valu else 1)
        self.nop(a, need)
        a.lines.append('    ' + l)
        here = self.pos
        if op == 's_nop':
            self.pos += int(ops[0]) + 1
        else:
            self.pos += 1
        for r in dst:
            if is_mfma:
                self.wr[r] = (here, 'mfma', ops[0])
            elif op.startswith('v_dot'):
                self.wr[r] = (here, 'dot', op)
            elif op in TRANS:
                self.wr[r] = (here, 'trans', op)
            elif is_valu:
                self.wr[r] = (here, 'valu', op)
            elif r == 'm0':
                self.wr[r] = (here, 'salu_m0', op)
            else:
                self.wr.pop(r, None)
        if is_mfma:
            for r in srcC:
                self.crd[r] = here
        for r in data:
            self.st[r] = here
        if op.startswith(('s_cbranch', 's_branch')):
            pass


class Asm:
    def __init__(self):
        self.lines = []
        self.vm = []
        self.lg = []
        self.hz = Hazards()
        self.nvm = 0

    def e(self, s):
        for l in s.strip('\n').split('\n'):
            l = l.strip()
            if not l:
                continue
            self.hz.emit(self, l)

    def label(self, s):
        self.hz.flush(self)
        self.lines.append(s + ':')

    def raw(self, s):
        self.lines.append(s)

    def vmem(self, s, tag=None):
        self.e(s)
        self.vm.append(tag)
        self.nvm += 1

    def lds(self, s, tag=None):
        self.e(s)
        self.lg.append(tag)

    def wait_vm(self, tag):
        idx = max(i for i, t in enumerate(self.vm) if t == tag)
        n = len(self.vm) - 1 - idx
        assert n <= 63
        self.e(f's_waitcnt vmcnt({n})')
        self.vm = self.vm[idx + 1:]

    def wait_lg(self, tag):
        idx = max(i for i, t in enumerate(self.lg) if t == tag)
        n = len(self.lg) - 1 - idx
        if n > 15:
            n = 15
            idx = len(self.lg) - 1 - 15
            self.e(f's_waitcnt lgkmcnt({n})')
            self.lg = self.lg[idx + 1:]
            return self.wait_lg(tag) if tag in self.lg else None
        self.e(f's_waitcnt lgkmcnt({n})')
        self.lg = self.lg[idx + 1:]

    def wait_all(self):
        self.e('s_waitcnt vmcnt(0) lgkmcnt(0)')
        self.vm = []
        self.lg = []

    def wait_vm0(self):
        self.e('s_waitcnt vmcnt(0)')
        self.vm = []

    def wait_lg0(self):
        self.e('s_waitcnt lgkmcnt(0)')
        self.lg = []

    def srd(self, d, base, nbytes):
        self.e(f's_mov_b32 s{d}, s{base}')
        self.e(f's_and_b32 s{d+1}, s{base+1}, 0xffff')
        self.e(f's_mov_b32 s{d+2}, {nbytes}')
        self.e(f's_mov_b32 s{d+3}, 0x00020000')

    def rnd2(self, lo, hi, a, b, tmp):
        self.e(f'v_cvt_pk_bf16_f32 v{tmp}, v{a}, v{b}')
        self.e(f'v_lshlrev_b32 v{lo}, 16, v{tmp}')
        self.e(f'v_and_b32 v{hi}, 0xffff0000, v{tmp}')

    def unpack(self, lo, hi, src):
        self.e(f'v_lshlrev_b32 v{lo}, 16, v{src}')
        self.e(f'v_and_b32 v{hi}, 0xffff0000, v{src}')

    def stamp(self, k):
        if STAMPS:
            self.e(f's_memrealtime s[{70+2*k}:{71+2*k}]')

    def stamp_out(self, kern, srd, n, tid='v0', wshift=8):
        if not STAMPS:
            return
        self.stamp(n)
        self.e('s_mov_b64 exec, -1')
        self.e('s_waitcnt lgkmcnt(0)')
        self.e(f'v_lshrrev_b32 v1, 6, {tid}')
        self.e(f'v_and_b32 v2, 63, {tid}')
        self.e('v_lshlrev_b32 v1, 6, v1')
        self.e('v_lshl_add_u32 v1, v2, 2, v1')
        self.e('v_mov_b32 v3, 0')
        for k in range(n + 1):
            self.e(f'v_writelane_b32 v3, s{70+2*k}, {k}')
        self.e(f's_lshl_b32 s68, s2, {wshift}')
        self.e(f's_add_u32 s68, s68, {WS_DBG + kern * MB}')
        self.e('v_cmp_gt_u32 vcc, 16, v2')
        self.e('s_and_saveexec_b64 s[66:67], vcc')
        self.e(f'buffer_store_dword v3, v1, s[{srd}:{srd+3}], s68 offen')

    def begin_kernel(self, name, page=False):
        self.raw('.text')
        self.raw(f'.globl {name}')
        if page:
            self.raw('.p2align 12')
        self.raw('.p2align 8')
        self.raw(f'.type {name},@function')
        self.label(name)
        self.vm = []
        self.lg = []

    def end_kernel(self, name, vgpr, sgpr, accum):
        self.raw('.section .rodata,"a"')
        self.raw('.p2align 6')
        self.raw(f'.amdhsa_kernel {name}')
        self.raw(f'  .amdhsa_next_free_vgpr {vgpr}')
        self.raw(f'  .amdhsa_next_free_sgpr {102 if STAMPS else sgpr}')
        self.raw(f'  .amdhsa_accum_offset {accum}')
        self.raw('  .amdhsa_group_segment_fixed_size 0')
        self.raw('  .amdhsa_kernarg_size 120')
        self.raw('  .amdhsa_user_sgpr_count 2')
        self.raw('  .amdhsa_user_sgpr_kernarg_segment_ptr 1')
        self.raw('  .amdhsa_system_sgpr_workgroup_id_x 1')
        self.raw('  .amdhsa_float_denorm_mode_32 3')
        self.raw('.end_amdhsa_kernel')

    def text(self):
        return '\n'.join(self.lines) + '\n'


def row_reduce_add(a, regs):
    for mod in ('quad_perm:[1,0,3,2]', 'quad_perm:[2,3,0,1]', 'row_half_mirror', 'row_mirror'):
        for r in regs:
            a.e(f'v_add_f32_dpp v{r}, v{r}, v{r} {mod} row_mask:0xf bank_mask:0xf')
        if len(regs) < 3:
            a.e(f's_nop {2 - len(regs)}' if len(regs) < 2 else 's_nop 0')


def wave_total(a, regs, sbase):
    a.e('s_nop 0')
    for i, r in enumerate(regs):
        for k in range(4):
            a.e(f'v_readlane_b32 s{sbase + 4 * i + k}, v{r}, {16 * k}')
    a.e('s_nop 1')
    for i, r in enumerate(regs):
        a.e(f'v_mov_b32 v{r}, s{sbase + 4 * i}')
    for k in range(1, 4):
        for i, r in enumerate(regs):
            a.e(f'v_add_f32 v{r}, s{sbase + 4 * i + k}, v{r}')


K0_TILES = 256
K0_MODWG = 96
K0_WDWG = 64
K0_LDS = 28672


def gen_k0(a):
    name = 'k0_prep_kernel'
    a.begin_kernel(name, page=PAGE)
    a.e(f's_cmp_ge_u32 s2, {K0_TILES + K0_MODWG + K0_WDWG}')
    a.e('s_cbranch_scc1 K0_END')
    a.e(f's_cmp_ge_u32 s2, {K0_TILES + K0_MODWG}')
    a.e('s_cbranch_scc1 K0_WD')
    a.e(f's_cmp_ge_u32 s2, {K0_TILES}')
    a.e('s_cbranch_scc1 K0_MOD')
    a.stamp(0)
    a.e(f's_load_dwordx4 s[4:7], s[0:1], {KA_Q}')
    a.e(f's_load_dwordx4 s[8:11], s[0:1], {KA_V}')
    a.e(f's_load_dwordx2 s[12:13], s[0:1], {KA_WS}')
    a.e('s_lshr_b32 s14, s2, 3')
    a.e('s_and_b32 s15, s2, 7')
    a.e('v_and_b32 v1, 31, v0')
    a.e('v_lshrrev_b32 v2, 5, v0')
    a.e('s_lshl_b32 s16, s14, 6')
    a.e('v_lshlrev_b32 v3, 3, v2')
    a.e('v_add_u32 v3, s16, v3')
    a.e('s_lshl_b32 s17, s15, 7')
    a.e('v_lshlrev_b32 v4, 2, v1')
    a.e('v_add_u32 v4, s17, v4')
    a.e('v_lshl_add_u32 v5, v3, 10, v4')
    a.e('v_subrev_u32 v6, 3072, v5')
    a.e('v_subrev_u32 v7, 2048, v5')
    a.e('v_subrev_u32 v8, 1024, v5')
    a.e('v_add_u32 v9, 4096, v5')
    a.e('v_lshlrev_b32 v44, 2, v4')
    a.e('v_lshrrev_b32 v45, 6, v0')
    a.e('v_and_b32 v46, 63, v0')
    a.e('s_lshl_b32 s18, s2, 3')
    a.e('v_lshlrev_b32 v47, 1, v45')
    a.e('v_add_u32 v47, s18, v47')
    a.e('v_lshlrev_b32 v48, 4, v46')
    a.e('v_lshl_add_u32 v48, v47, 10, v48')
    a.e('s_waitcnt lgkmcnt(0)')
    a.srd(20, 4, 2097152)
    a.srd(24, 6, 2097152)
    a.srd(28, 8, 2097152)
    a.srd(32, 10, 4096)
    a.srd(36, 12, WS_SIZE)
    a.vmem('buffer_load_dwordx4 v[40:43], v44, s[32:35], 0 offen', 'sh')
    for i, r in enumerate((6, 7, 8)):
        a.vmem(f'buffer_load_dword v{10 + i}, v{r}, s[24:27], 0 offen', 'k')
    for i in range(8):
        a.vmem(f'buffer_load_dword v{13 + i}, v{5 if i < 4 else 9}, s[24:27], 0 offen offset:{1024 * (i & 3)}', 'k')
    for i in range(8):
        a.vmem(f'buffer_load_dword v{21 + i}, v{5 if i < 4 else 9}, s[28:31], 0 offen offset:{1024 * (i & 3)}', 'v')
    for i in range(8):
        a.vmem(f'buffer_load_dword v{29 + i}, v{5 if i < 4 else 9}, s[20:23], 0 offen offset:{1024 * (i & 3)}', 'q')
    a.vmem('buffer_load_dwordx4 v[52:55], v48, s[20:23], 0 offen', 'st')
    a.vmem('buffer_load_dwordx4 v[56:59], v48, s[20:23], 0 offen offset:1024', 'st')
    a.e('v_lshlrev_b32 v49, 11, v4')
    a.e('v_lshlrev_b32 v50, 1, v3')
    a.e('v_add_u32 v51, v49, v50')
    a.e(f'v_add_u32 v51, {WS_QT}, v51')
    a.e('v_sub_u32 v50, 4080, v50')
    a.e('v_add_u32 v49, v49, v50')
    a.wait_vm('sh')
    W0, W1 = 60, 64
    a.unpack(W0 + 0, W0 + 1, 40)
    a.unpack(W0 + 2, W0 + 3, 41)
    a.unpack(W1 + 0, W1 + 1, 42)
    a.unpack(W1 + 2, W1 + 3, 43)
    a.wait_vm('k')
    a.stamp(1)
    KL, KH = 70, 82
    for i in range(11):
        a.unpack(KL + i, KH + i, 10 + i)
    a.wait_vm('v')
    R = 100
    for i in range(8):
        A0, A1, P0, P1, T = 94, 95, 96, 97, 98
        a.e(f'v_mul_f32 v{P0}, v{KL + i}, v{W0 + 3}')
        a.e(f'v_mul_f32 v{P1}, v{KH + i}, v{W1 + 3}')
        a.rnd2(A0, A1, P0, P1, T)
        for t in range(1, 4):
            a.e(f'v_mul_f32 v{P0}, v{KL + i + t}, v{W0 + 3 - t}')
            a.e(f'v_mul_f32 v{P1}, v{KH + i + t}, v{W1 + 3 - t}')
            a.rnd2(P0, P1, P0, P1, T)
            a.e(f'v_add_f32 v{A0}, v{A0}, v{P0}')
            a.e(f'v_add_f32 v{A1}, v{A1}, v{P1}')
            a.rnd2(A0, A1, A0, A1, T)
        a.unpack(P0, P1, 21 + i)
        a.e(f'v_mul_f32 v{P0}, v{A0}, v{P0}')
        a.e(f'v_mul_f32 v{P1}, v{A1}, v{P1}')
        a.e(f'v_cvt_pk_bf16_f32 v{R + i}, v{P0}, v{P1}')
    a.e('s_mov_b32 s40, 0x05040100')
    a.e('s_mov_b32 s41, 0x07060302')
    O = 108
    for j in range(4):
        a.e(f'v_perm_b32 v{O + j}, v{R + 6 - 2 * j}, v{R + 7 - 2 * j}, s40')
        a.e(f'v_perm_b32 v{O + 4 + j}, v{R + 6 - 2 * j}, v{R + 7 - 2 * j}, s41')
    a.vmem(f'buffer_store_dwordx4 v[{O}:{O + 3}], v49, s[36:39], 0 offen', 'o')
    a.e('v_add_u32 v50, 4096, v49')
    a.vmem(f'buffer_store_dwordx4 v[{O + 4}:{O + 7}], v50, s[36:39], 0 offen', 'o')
    a.wait_vm('q')
    O2 = 116
    for j in range(4):
        a.e(f'v_perm_b32 v{O2 + j}, v{29 + 2 * j + 1}, v{29 + 2 * j}, s40')
        a.e(f'v_perm_b32 v{O2 + 4 + j}, v{29 + 2 * j + 1}, v{29 + 2 * j}, s41')
    a.vmem(f'buffer_store_dwordx4 v[{O2}:{O2 + 3}], v51, s[36:39], 0 offen', 'o')
    a.e('v_add_u32 v50, 4096, v51')
    a.vmem(f'buffer_store_dwordx4 v[{O2 + 4}:{O2 + 7}], v50, s[36:39], 0 offen', 'o')
    a.wait_vm('st')
    X = 70
    for r in range(2):
        for j in range(4):
            a.unpack(X + 8 * r + 2 * j, X + 8 * r + 2 * j + 1, 52 + 4 * r + j)
    S0, S1 = 90, 91
    for r, S in ((0, S0), (1, S1)):
        a.e(f'v_add_f32 v{S}, v{X + 8 * r}, v{X + 8 * r + 1}')
        for j in range(2, 8):
            a.e(f'v_add_f32 v{S}, v{S}, v{X + 8 * r + j}')
    a.e('s_nop 1')
    row_reduce_add(a, [S0, S1])
    wave_total(a, [S0, S1], 44)
    a.e(f'v_mul_f32 v{S0}, 0x3b000000, v{S0}')
    a.e(f'v_mul_f32 v{S1}, 0x3b000000, v{S1}')
    Q0, Q1 = 92, 93
    for r, S, Q in ((0, S0, Q0), (1, S1, Q1)):
        for j in range(8):
            a.e(f'v_sub_f32 v{X + 8 * r + j}, v{X + 8 * r + j}, v{S}')
        a.e(f'v_mul_f32 v{Q}, v{X + 8 * r}, v{X + 8 * r}')
        for j in range(1, 8):
            a.e(f'v_fmac_f32 v{Q}, v{X + 8 * r + j}, v{X + 8 * r + j}')
    a.e('s_nop 1')
    row_reduce_add(a, [Q0, Q1])
    wave_total(a, [Q0, Q1], 44)
    a.e(f'v_mul_f32 v{Q0}, 0x3b000000, v{Q0}')
    a.e(f'v_mul_f32 v{Q1}, 0x3b000000, v{Q1}')
    a.rnd2(Q0, Q1, Q0, Q1, 94)
    a.e(f'v_add_f32 v{Q0}, 0x3727c5ac, v{Q0}')
    a.e(f'v_add_f32 v{Q1}, 0x3727c5ac, v{Q1}')
    a.rnd2(Q0, Q1, Q0, Q1, 94)
    a.e(f'v_sqrt_f32 v{Q0}, v{Q0}')
    a.e(f'v_sqrt_f32 v{Q1}, v{Q1}')
    a.rnd2(Q0, Q1, Q0, Q1, 94)
    a.rnd2(S0, S1, S0, S1, 94)
    a.e(f'v_rcp_f32 v94, v{Q0}')
    a.e(f'v_rcp_f32 v95, v{Q1}')
    a.e(f'v_xor_b32 v{S0}, 0x80000000, v{S0}')
    a.e(f'v_xor_b32 v{S1}, 0x80000000, v{S1}')
    a.e(f'v_fma_f32 v{Q0}, -v{Q0}, v94, 1.0')
    a.e(f'v_fma_f32 v{Q1}, -v{Q1}, v95, 1.0')
    a.e(f'v_fmac_f32 v94, v{Q0}, v94')
    a.e(f'v_fmac_f32 v95, v{Q1}, v95')
    a.e('v_lshlrev_b32 v96, 2, v47')
    a.e(f'v_add_u32 v96, {WS_NM}, v96')
    a.e(f'v_add_u32 v97, {WS_RS - WS_NM}, v96')
    a.e('v_cmp_eq_u32 vcc, 0, v46')
    a.e('s_and_saveexec_b64 s[42:43], vcc')
    a.vmem(f'buffer_store_dwordx2 v[{S0}:{S1}], v96, s[36:39], 0 offen', 'o')
    a.vmem('buffer_store_dwordx2 v[94:95], v97, s[36:39], 0 offen', 'o')
    a.stamp(2)
    if STAMPS:
        a.e('s_waitcnt vmcnt(0)')
    a.stamp_out(0, 36, 3)
    a.e('s_endpgm')
    a.label('K0_MOD')
    a.vm = []
    a.e(f's_load_dwordx4 s[4:7], s[0:1], {KA_C}')
    a.e(f's_load_dwordx2 s[12:13], s[0:1], {KA_WS}')
    a.e(f's_sub_u32 s14, s2, {K0_TILES}')
    a.e('s_and_b32 s15, s14, 7')
    a.e('s_lshr_b32 s16, s14, 3')
    a.e('s_mul_i32 s15, s15, 12')
    a.e('s_add_u32 s15, s15, s16')
    a.e('s_lshl_b32 s17, s15, 6')
    a.e('v_and_b32 v1, 63, v0')
    a.e('v_lshrrev_b32 v2, 6, v0')
    a.e('v_lshrrev_b32 v3, 2, v1')
    a.e('v_and_b32 v4, 3, v1')
    a.e('v_lshl_add_u32 v5, v2, 7, v3')
    a.e('s_movk_i32 s18, 6144')
    a.e('v_mul_lo_u32 v6, v5, s18')
    a.e('v_lshl_add_u32 v6, v4, 4, v6')
    a.e('v_add_u32 v6, s17, v6')
    a.e('v_lshlrev_b32 v7, 1, v5')
    a.e('s_waitcnt lgkmcnt(0)')
    a.srd(20, 4, 1024)
    a.srd(24, 6, 3145728)
    a.srd(36, 12, WS_SIZE)
    for i in range(8):
        a.vmem(f'buffer_load_ushort v{10 + i}, v7, s[20:23], 0 offen offset:{32 * i}', 'c')
    for i in range(8):
        a.e(f's_mov_b32 s{44 + i}, {98304 * i}')
    for i in range(8):
        a.vmem(f'buffer_load_dwordx4 v[{20 + 4 * i}:{23 + 4 * i}], v6, s[24:27], s{44 + i} offen', f'w{i}')
    a.wait_vm('c')
    for i in range(8):
        a.e(f'v_lshlrev_b32 v{10 + i}, 16, v{10 + i}')
        a.e(f'v_mul_f32 v{60 + i}, 0xbfb8aa3b, v{10 + i}')
    for i in range(8):
        a.e(f'v_exp_f32 v{60 + i}, v{60 + i}')
    a.e('s_nop 0')
    for i in range(8):
        a.e(f'v_add_f32 v{60 + i}, 1.0, v{60 + i}')
    for i in range(8):
        a.e(f'v_rcp_f32 v{60 + i}, v{60 + i}')
    a.e('s_nop 0')
    for i in range(8):
        a.e(f'v_mul_f32 v{60 + i}, v{10 + i}, v{60 + i}')
    for i in range(0, 8, 2):
        a.rnd2(60 + i, 61 + i, 60 + i, 61 + i, 68)
    ACC = 72
    for i in range(8):
        a.wait_vm(f'w{i}')
        for j in range(4):
            a.unpack(80, 81, 20 + 4 * i + j)
            if i == 0:
                a.e(f'v_mul_f32 v{ACC + 2 * j}, v80, v60')
                a.e(f'v_mul_f32 v{ACC + 2 * j + 1}, v81, v60')
            else:
                a.e(f'v_fmac_f32 v{ACC + 2 * j}, v80, v{60 + i}')
                a.e(f'v_fmac_f32 v{ACC + 2 * j + 1}, v81, v{60 + i}')
    a.e('s_nop 1')
    for mod in ('row_ror:4', 'row_ror:8'):
        for j in range(8):
            a.e(f'v_add_f32_dpp v{ACC + j}, v{ACC + j}, v{ACC + j} {mod} row_mask:0xf bank_mask:0xf')
    a.e('v_lshrrev_b32 v8, 4, v1')
    a.e('v_lshl_add_u32 v8, v2, 2, v8')
    a.e('v_lshl_add_u32 v8, v8, 2, v4')
    a.e('v_lshlrev_b32 v8, 5, v8')
    a.e('v_and_b32 v9, 12, v1')
    a.e('v_cmp_eq_u32 vcc, 0, v9')
    a.e('s_and_saveexec_b64 s[42:43], vcc')
    a.e(f'ds_write_b128 v8, v[{ACC}:{ACC + 3}]')
    a.e(f'ds_write_b128 v8, v[{ACC + 4}:{ACC + 7}] offset:16')
    a.e('s_mov_b64 exec, s[42:43]')
    a.e('s_waitcnt lgkmcnt(0)')
    a.e('s_barrier')
    a.e('v_cmp_gt_u32 vcc, 32, v0')
    a.e('s_and_saveexec_b64 s[42:43], vcc')
    a.e('s_cbranch_execz K0_END')
    a.e('v_lshlrev_b32 v8, 2, v0')
    for i in range(16):
        a.e(f'ds_read_b32 v{20 + i}, v8 offset:{128 * i}')
    a.e('s_waitcnt lgkmcnt(0)')
    for i in range(1, 16):
        a.e(f'v_add_f32 v20, v20, v{20 + i}')
    a.rnd2(20, 21, 20, 20, 22)
    a.e('s_lshl_b32 s17, s15, 7')
    a.e(f's_add_u32 s17, s17, {WS_MOD}')
    a.e('buffer_store_dword v20, v8, s[36:39], s17 offen')
    a.e('s_endpgm')
    a.label('K0_WD')
    a.vm, a.lg = [], []
    a.e(f's_load_dwordx2 s[4:5], s[0:1], {KA_WD}')
    a.e(f's_load_dwordx2 s[8:9], s[0:1], {KA_WS}')
    a.e(f's_sub_u32 s10, s2, {K0_TILES + K0_MODWG}')
    a.e('s_lshr_b32 s11, s10, 2')
    a.e('s_and_b32 s12, s10, 3')
    a.e('v_lshrrev_b32 v2, 6, v0')
    a.e('v_and_b32 v1, 63, v0')
    a.e('v_readfirstlane_b32 s13, v2')
    a.e('v_lshrrev_b32 v3, 4, v1')
    a.e('v_and_b32 v4, 15, v1')
    a.e('v_lshlrev_b32 v5, 4, v4')
    a.e('v_lshl_add_u32 v5, v3, 10, v5')
    a.e('v_lshlrev_b32 v18, 4, v1')
    a.e('s_mul_i32 s14, s11, 114688')
    a.e('s_lshl_b32 s15, s12, 8')
    a.e('s_add_u32 s14, s14, s15')
    a.e('s_mul_i32 s15, s13, 28672')
    a.e('s_add_u32 s14, s14, s15')
    a.e('s_mul_i32 s16, s13, 7168')
    a.e('s_waitcnt lgkmcnt(0)')
    a.srd(20, 4, 1792 * 512 * 2)
    a.srd(24, 8, WS_SIZE)
    for i in range(7):
        a.e(f's_add_u32 m0, s16, {1024 * i}')
        a.e(f's_add_u32 s17, s14, {4096 * i}')
        a.vmem('buffer_load_dwordx4 v5, s[20:23], s17 offen lds', 'w')
    a.e('s_cmp_lg_u32 s10, 0')
    a.e('s_cbranch_scc1 K0_WD1')
    a.e('v_lshlrev_b32 v6, 4, v0')
    for i in range(4):
        a.e(f'v_mov_b32 v{20+i}, 0')
    a.e(f's_mov_b32 s17, {WS_CNT}')
    for i in range(3):
        a.e(f's_mov_b32 s17, {WS_CNT + 4096 * i}')
        a.e('buffer_store_dwordx4 v[20:23], v6, s[24:27], s17 offen')
    a.label('K0_WD1')
    a.e('v_bfe_u32 v6, v1, 2, 2')
    a.e('v_and_b32 v7, 3, v1')
    a.e('v_lshl_add_u32 v6, v3, 2, v6')
    a.e('v_lshlrev_b32 v6, 8, v6')
    a.e('v_lshl_add_u32 v6, v7, 4, v6')
    a.e('s_lshr_b32 s15, s13, 1')
    a.e('s_and_b32 s16, s13, 1')
    a.e('s_lshl_b32 s17, s15, 6')
    a.e('s_lshl_b32 s18, s16, 3')
    a.e('s_add_u32 s17, s17, s18')
    a.e('v_add_u32 v8, s17, v6')
    a.e('s_lshl_b32 s17, s15, 7')
    a.e('s_lshl_b32 s18, s16, 6')
    a.e('s_add_u32 s17, s17, s18')
    a.e('v_add_u32 v9, s17, v6')
    a.e('s_lshl_b32 s17, s12, 5')
    a.e('s_add_u32 s17, s17, s11')
    a.e('s_mul_i32 s17, s17, 14336')
    a.e(f's_add_u32 s17, s17, {WS_WDF}')
    a.e('s_lshl_b32 s18, s13, 10')
    a.e('s_add_u32 s18, s18, s17')
    a.e('s_mul_i32 s19, s15, 229376')
    a.e('s_add_u32 s19, s19, s17')
    a.e('s_lshl_b32 s28, s16, 10')
    a.e('s_add_u32 s19, s19, s28')
    a.e('s_add_u32 s19, s19, 12288')
    a.wait_vm0()
    a.e('s_barrier')
    n = 0
    for dbl in range(2):
        for kb in range(3):
            for half in range(2):
                a.lds(f'ds_read_b64_tr_b16 v[{32+4*n+2*half}:{33+4*n+2*half}], v8 offset:{(32*kb+16*half)*256 + 128*dbl}', f't{n}')
            n += 1
    for half in range(2):
        a.lds(f'ds_read_b64_tr_b16 v[{32+4*n+2*half}:{33+4*n+2*half}], v9 offset:{96*256 + 8*half}', f't{n}')
    n = 0
    for dbl in range(2):
        for kb in range(3):
            a.e(f's_add_u32 s28, s18, {dbl * 229376 + kb * 4096}')
            a.wait_lg(f't{n}')
            a.vmem(f'buffer_store_dwordx4 v[{32+4*n}:{35+4*n}], v18, s[24:27], s28 offen', 'o')
            n += 1
    a.wait_lg(f't{n}')
    a.vmem(f'buffer_store_dwordx4 v[{32+4*n}:{35+4*n}], v18, s[24:27], s19 offen', 'o')
    a.label('K0_END')
    a.e('s_endpgm')
    a.end_kernel(name, 128, 64, 128)
    return f'; @launch kernel={name} grid=({K0_TILES + K0_MODWG + K0_WDWG},1,1) block=(256,1,1) lds={K0_LDS}'


HEADER = open('cdna_kernels/' + NAME + '.s.ref').read().split('; Override launch')[0]


def _sizes(text):
    import subprocess, tempfile
    body = '.amdgcn_target "amdgcn-amd-amdhsa--gfx950"\n' + text
    open('_sz.s', 'w').write(body)
    r = subprocess.run(['llvm-mc', '-triple=amdgcn-amd-amdhsa', '-mcpu=gfx950', '-show-encoding', '_sz.s'],
                       capture_output=True, text=True)
    assert r.returncode == 0, r.stderr[:2000]
    return [l.split('encoding: [')[1].count(',') + 1 for l in r.stdout.split('\n') if 'encoding: [' in l]


def page_stubs(lines, kernel, link, nmax):
    tmp = list(lines) + ['.text'] + [f'PGS{i}:' for i in range(1, nmax + 1)]
    sz = _sizes('\n'.join(tmp) + '\n')
    out, k, off, inside, n = [], 0, 0, False, 0
    for l in lines:
        if l == kernel + ':':
            inside, off = True, 0
        elif l.startswith('.section'):
            if inside:
                out.append('.text')
                while n < nmax:
                    n += 1
                    out.append(f'PGS{n}:')
                out.append(f'    s_setpc_b64 {link}')
            inside = False
        if l.startswith('    '):
            s_ = sz[k]
            k += 1
            if inside:
                nb = (off // 4096 + 1) * 4096
                if off + s_ + 4 > nb:
                    n += 1
                    assert n <= nmax
                    out += [f'    s_branch PGJ{n}', '.p2align 12', f'PGS{n}:', f'    s_setpc_b64 {link}', f'PGJ{n}:']
                    off = nb + 4
                off += s_
        out.append(l)
    assert k == len(sz), (k, len(sz))
    return out


def build(kernels, stubs=None):
    a = Asm()
    launches = [k(a) for k in kernels]
    if stubs:
        a.lines = page_stubs(a.lines, *stubs)
    return HEADER + '\n'.join(launches) + '\n.amdgcn_target "amdgcn-amd-amdhsa--gfx950"\n' + a.text()


if __name__ == '__main__':
    ks = [gen_k0]
    out = sys.argv[1] if len(sys.argv) > 1 else 'cur.s'
    open(out, 'w').write(build(ks))
```

```python
from gen import *
from k1 import KC_STRIDE, KC_OFFS, KC_NIB, R_OFF, K1_CH, interleave
import os

KM_WG = 256
SLOT = 24576
NSLOT = 6
B_OFF = 14336
UTL = NSLOT * SLOT
X1L = UTL + 2048
LCNT = X1L + 8192
KM_LDS = LCNT + 256
PART = 2 * K1_CH
STG = PART + 32768
HX = STG
SPIN = 400000
NSTUB = 8
NV = 176
BARS = [0, 1, 2, 3, 4, 6, 8, 10, 12, 14, 15]
ISSUE = {0: [4, 5], 1: [6], 2: [7], 3: [8], 4: [9, 10], 6: [11, 12], 8: [13, 14], 10: [15]}
XBCHK = 3
WDR = {6: 4, 8: 4, 10: 8, 12: 4}
PSLEEP = int(os.environ.get('PSLEEP', '1'))
WS_UTP = WS_X1R
HMC, HMG, XAC, XAR, XBC, XBR = [WS_CNT + 128 * i for i in (0, 16, 32, 40, 56, 64)]


def quad(r):
    k, n = r[0], int(r[1:])
    return f'{k}[{n}:{n+3}]'


STN = os.environ.get('STN', 'start,B1,cA,B3,B4,B5,B0,k8,lend,join,drain,hoff,down,end').split(',')


def gen_km(a):
    def stamp(n):
        if n in STN:
            a.stamp(STN.index(n))
    name = 'k1_main_kernel'
    a.begin_kernel(name, page=PAGE)

    def touch(first, tag):
        if not PAGE:
            return
        a.e('s_waitcnt lgkmcnt(0)')
        for w in range(4):
            if first + w > NSTUB:
                continue
            a.e(f's_cmp_lg_u32 s15, {w}')
            a.e(f's_cbranch_scc1 KM_T{tag}{w}')
            a.e(f's_call_b64 s[68:69], PGS{first + w}')
            a.label(f'KM_T{tag}{w}')
    a.e(f's_cmp_ge_u32 s2, {KM_WG}')
    a.e('s_cbranch_scc1 KM_END')
    stamp('start')
    a.e(f's_load_dwordx2 s[8:9], s[0:1], {KA_WS}')
    a.e(f's_load_dwordx4 s[40:43], s[0:1], {KA_SSMK}')
    a.e(f's_load_dwordx4 s[44:47], s[0:1], {KA_WG}')
    a.e(f's_load_dwordx2 s[4:5], s[0:1], {KA_OUT}')
    a.e('v_lshrrev_b32 v15, 6, v0')
    a.e('v_and_b32 v1, 63, v0')
    a.e('v_readfirstlane_b32 s10, v15')
    a.e('s_and_b32 s11, s2, 7')
    a.e('s_lshr_b32 s12, s2, 3')
    a.e('s_lshr_b32 s13, s11, 1')
    a.e('s_lshl_b32 s13, s13, 2')
    a.e('s_and_b32 s14, s12, 3')
    a.e('s_add_u32 s13, s13, s14')
    a.e('s_and_b32 s14, s11, 1')
    a.e('s_lshl_b32 s14, s14, 3')
    a.e('s_lshr_b32 s15, s12, 2')
    a.e('s_add_u32 s14, s14, s15')
    if os.environ.get('BADMAP'):
        a.e('s_and_b32 s13, s12, 15')
        a.e('s_lshr_b32 s14, s2, 7')
        a.e('s_add_u32 s14, s14, s13')
        a.e('s_lshl_b32 s15, s11, 1')
        a.e('s_add_u32 s14, s14, s15')
        a.e('s_and_b32 s14, s14, 15')
    a.e('s_and_b32 s15, s10, 3')
    a.e('v_lshlrev_b32 v6, 4, v1')
    a.e('v_and_b32 v7, 15, v1')
    a.e('v_lshrrev_b32 v8, 4, v1')
    a.e('s_lshl_b32 s16, s2, 12')
    a.e('s_lshl_b32 s17, s15, 10')
    a.e('s_add_u32 s18, s16, s17')
    a.e('s_cmp_ge_u32 s10, 4')
    a.e('s_cbranch_scc1 KM_AUX')

    NM, RS, QS, KV, QF, KVD = 64, 72, [80, 84], 88, 96, 104
    cGL, cGH, cAL, cAH, cDL, cDH, cSA = 20, 21, 22, 23, 24, 25, 26
    T = [112, 116, 120, 124]
    items = [(n, k) for n in range(2) for k in range(2)]

    def pre(c):
        Q = QS[c]
        for n in range(2):
            a.lds(f'ds_read_b64 v[{KV+2*n}:{KV+2*n+1}], v5 offset:{512 * (1 - n) + K1_CH * c}', 'kv')
        sa, ca, ga, dd = [56 + 4 * c + k for k in range(4)]
        a.e(f'v_mov_b32 v{cSA}, s{sa}')
        a.e(f'v_mov_b32 v19, s{ca}')
        a.e('v_add_f32 v19, 1.0, v19')
        a.e(f'v_cvt_pk_bf16_f32 v{cGL}, v19, 0')
        a.e(f'v_lshlrev_b32 v{cGH}, 16, v{cGL}')
        a.e(f'v_mov_b32 v{cAH}, s{ga}')
        a.e(f'v_lshrrev_b32 v{cAL}, 16, v{cAH}')
        a.e(f's_lshr_b32 s36, s{dd}, 16')
        a.e(f's_and_b32 s39, s{dd}, 0xffff')
        a.e('s_bitcmp1_b32 s2, 0')
        a.e('s_cselect_b32 s36, s36, s39')
        a.e(f'v_mov_b32 v{cDL}, s36')
        a.e(f'v_lshlrev_b32 v{cDH}, 16, v{cDL}')
        if 'ep' in a.vm:
            a.wait_vm('ep')

        def each(fn):
            for s, (n, k) in enumerate(items):
                fn(T[s], n, k)
        each(lambda t, n, k: a.e(f'v_dot2_f32_bf16 v{t}, v{Q+2*n+k}, s34, v{NM+4*n+2*k}'))
        each(lambda t, n, k: a.e(f'v_dot2_f32_bf16 v{t+1}, v{Q+2*n+k}, s35, v{NM+4*n+2*k+1}'))
        each(lambda t, n, k: a.e(f'v_lshlrev_b32 v{QF+4*n+2*k}, 16, v{Q+2*n+k}'))
        each(lambda t, n, k: a.e(f'v_and_b32 v{QF+4*n+2*k+1}, 0xffff0000, v{Q+2*n+k}'))
        each(lambda t, n, k: a.e(f'v_cvt_pk_bf16_f32 v{t+2}, v{t}, v{t+1}'))
        each(lambda t, n, k: a.e(f'v_lshlrev_b32 v{t}, 16, v{t+2}'))
        each(lambda t, n, k: a.e(f'v_and_b32 v{t+1}, 0xffff0000, v{t+2}'))
        each(lambda t, n, k: a.e(f'v_mul_f32 v{t}, v{t}, v{RS+4*n+2*k}'))
        each(lambda t, n, k: a.e(f'v_mul_f32 v{t+1}, v{t+1}, v{RS+4*n+2*k+1}'))
        each(lambda t, n, k: a.e(f'v_cvt_pk_bf16_f32 v{t+2}, v{t}, v{t+1}'))
        each(lambda t, n, k: a.e(f'v_dot2_f32_bf16 v{t}, v{t+2}, v{cGL}, 0'))
        each(lambda t, n, k: a.e(f'v_dot2_f32_bf16 v{t+1}, v{t+2}, v{cGH}, 0'))
        a.wait_lg('kv')
        each(lambda t, n, k: a.e(f'v_dot2_f32_bf16 v{KVD+4*n+2*k}, v{KV+2*n+1-k}, v{cDH}, 0'))
        each(lambda t, n, k: a.e(f'v_cvt_pk_bf16_f32 v{t+2}, v{t}, v{t+1}'))
        each(lambda t, n, k: a.e(f'v_dot2_f32_bf16 v{t}, v{t+2}, s34, v{cSA}'))
        each(lambda t, n, k: a.e(f'v_dot2_f32_bf16 v{t+1}, v{t+2}, s35, v{cSA}'))
        each(lambda t, n, k: a.e(f'v_dot2_f32_bf16 v{KVD+4*n+2*k+1}, v{KV+2*n+1-k}, v{cDL}, 0'))
        each(lambda t, n, k: a.e(f'v_cvt_pk_bf16_f32 v{Q+2*n+k}, v{t}, v{t+1}'))

    RD, TP, XO = 128, 160, 112

    def post(c):
        H = QS[c]
        for q in range(4):
            for n in range(2):
                a.lds(f'ds_read_b128 v[{RD+16*n+4*q}:{RD+16*n+4*q+3}], v4 offset:{4096 * n + 1024 * q}', f'p{q}')
        a.wait_lg('p1')
        for n in range(2):
            for k in range(4):
                a.e(f'v_add_f32 v{RD+16*n+k}, v{RD+16*n+k}, v{RD+16*n+4+k}')
        a.wait_lg('p3')
        for n in range(2):
            for k in range(4):
                a.e(f'v_add_f32 v{RD+16*n+8+k}, v{RD+16*n+8+k}, v{RD+16*n+12+k}')
        for n in range(2):
            for k in range(4):
                a.e(f'v_add_f32 v{RD+16*n+k}, v{RD+16*n+k}, v{RD+16*n+8+k}')

        def allp(fn):
            for s, (n, k) in enumerate(items):
                fn(TP + 4 * s, n, k, RD + 16 * n + 2 * k)
        allp(lambda t, n, k, y: a.e(f'v_cvt_pk_bf16_f32 v{t}, v{y}, v{KVD+4*n+2*k}'))
        allp(lambda t, n, k, y: a.e(f'v_cvt_pk_bf16_f32 v{t+1}, v{y+1}, v{KVD+4*n+2*k+1}'))
        allp(lambda t, n, k, y: a.e(f'v_dot2_f32_bf16 v{t+2}, v{t}, s33, 0'))
        allp(lambda t, n, k, y: a.e(f'v_dot2_f32_bf16 v{t+3}, v{t+1}, s33, 0'))
        allp(lambda t, n, k, y: a.e(f'v_cvt_pk_bf16_f32 v{t}, v{t+2}, 0'))
        allp(lambda t, n, k, y: a.e(f'v_cvt_pk_bf16_f32 v{t+1}, 0, v{t+3}'))
        allp(lambda t, n, k, y: a.e(f'v_dot2_f32_bf16 v{t+2}, v{H+2*n+k}, v{t}, 0'))
        allp(lambda t, n, k, y: a.e(f'v_dot2_f32_bf16 v{t+3}, v{H+2*n+k}, v{t+1}, 0'))
        allp(lambda t, n, k, y: a.e(f'v_cvt_pk_bf16_f32 v{t}, v{t+2}, v{t+3}'))
        allp(lambda t, n, k, y: a.e(f'v_dot2_f32_bf16 v{t+2}, v{t}, v{cAL}, 0'))
        allp(lambda t, n, k, y: a.e(f'v_dot2_f32_bf16 v{t+3}, v{t}, v{cAH}, 0'))
        allp(lambda t, n, k, y: a.e(f'v_cvt_pk_bf16_f32 v{t}, v{t+2}, v{t+3}'))
        allp(lambda t, n, k, y: a.e(f'v_dot2_f32_bf16 v{t+2}, v{t}, s34, v{QF+4*n+2*k}'))
        allp(lambda t, n, k, y: a.e(f'v_dot2_f32_bf16 v{t+3}, v{t}, s35, v{QF+4*n+2*k+1}'))
        xo = XO + 4 * c
        allp(lambda t, n, k, y: a.e(f'v_cvt_pk_bf16_f32 v{xo+2*n+k}, v{t+2}, v{t+3}'))
        a.e(f'v_permlane16_swap_b32 v{xo}, v{xo+2}')
        a.e(f'v_permlane16_swap_b32 v{xo+1}, v{xo+3}')
        a.e(f's_add_u32 s36, s18, {WS_X1T + 0x100000 * c}')
        a.vmem(f'buffer_store_dwordx4 v[{xo}:{xo+3}], v14, s[24:27], s36 offen sc1', f'x{c}')

    def arrive1(cbase):
        a.e('s_lshr_b32 s36, s2, 5')
        a.e('s_lshl_b32 s36, s36, 7')
        a.e(f's_add_u32 s36, s36, {cbase}')
        a.e('v_mov_b32 v16, 0')
        a.e('v_mov_b32 v27, 1')
        a.e('buffer_atomic_add v27, v16, s[24:27], s36 offen sc0 sc1')

    def arrive2(rbase, lab):
        a.e('s_waitcnt vmcnt(0)')
        a.e('v_readfirstlane_b32 s36, v27')
        a.e('s_cmp_lg_u32 s36, 31')
        a.e(f's_cbranch_scc1 {lab}')
        a.e('v_lshlrev_b32 v16, 7, v1')
        a.e('v_mov_b32 v17, 1')
        a.e(f's_mov_b32 s36, {rbase}')
        a.e('s_mov_b64 exec, 0xffff')
        a.e('buffer_atomic_add v17, v16, s[24:27], s36 offen sc1')
        a.e('s_mov_b64 exec, -1')
        a.label(lab)


    def epi_addr():
        a.e('s_lshl_b32 s36, s15, 13')
        a.e(f's_add_u32 s36, s36, {PART}')
        a.e('v_add_u32 v4, s36, v6')
        a.e('v_and_b32 v14, 1, v8')
        a.e('v_lshlrev_b32 v14, 9, v14')
        a.e('v_lshl_add_u32 v14, v7, 5, v14')
        a.e('v_lshrrev_b32 v15, 1, v8')
        a.e('v_lshl_add_u32 v14, v15, 4, v14')
        a.e('s_mul_i32 s36, s15, 5120')
        a.e(f's_add_u32 s36, s36, {HX}')
        a.e('v_add_u32 v12, s36, v6')
        a.e('s_mov_b32 s33, 0x3f803f80')
        a.e('s_mov_b32 s34, 0x00003f80')
        a.e('s_mov_b32 s35, 0x3f800000')

    def lds_arrive(sreg):
        a.e(f'v_mov_b32 v16, {LCNT}')
        a.e('v_mov_b32 v17, 1')
        a.e('s_mov_b64 exec, 1')
        a.e('ds_add_rtn_u32 v19, v16, v17')
        a.wait_lg0()
        a.e(f'v_readfirstlane_b32 {sreg}, v19')

    a.e('v_lshlrev_b32 v4, 4, v0')
    a.e('v_subrev_u32 v5, 16, v4')
    a.e('s_waitcnt lgkmcnt(0)')
    a.e('s_add_u32 s40, s40, s16')
    a.e('s_addc_u32 s41, s41, 0')
    a.srd(48, 40, 4096)
    a.e('s_add_u32 s40, s40, 0x100000')
    a.e('s_addc_u32 s41, s41, 0')
    a.srd(52, 40, 4096)
    a.srd(24, 8, WS_SIZE)
    LR = [32, 64]
    a.vmem(f'buffer_load_dwordx4 v[{LR[0]}:{LR[0]+3}], v5, s[48:51], 0 offen', 'k0')
    a.vmem(f'buffer_load_dwordx4 v[{LR[0]+4}:{LR[0]+7}], v4, s[48:51], 0 offen', 'k0')
    a.e(f's_add_u32 m0, s17, {R_OFF}')
    a.vmem('buffer_load_dwordx4 v6, s[24:27], s18 offen lds', 'r0')

    def loads_b():
        a.vmem(f'buffer_load_dwordx4 v[{LR[1]}:{LR[1]+3}], v5, s[52:55], 0 offen', 'k1')
        a.vmem(f'buffer_load_dwordx4 v[{LR[1]+4}:{LR[1]+7}], v4, s[52:55], 0 offen', 'k1')
        a.e(f's_add_u32 m0, s17, {R_OFF + K1_CH}')
        a.e('s_add_u32 s19, s18, 0x100000')
        a.vmem('buffer_load_dwordx4 v6, s[24:27], s19 offen lds', 'r1')
    a.e('s_lshl_b32 s19, s2, 2')
    a.e(f's_add_u32 s19, s19, {WS_MOD + 4096 + 1024}')
    a.e('s_load_dword s62, s[8:9], s19')
    a.srd(28, 4, 2048 * 512 * 2)
    Z = 28
    for i in range(4):
        a.e(f'v_mov_b32 v{Z+i}, 0')
    a.e('v_and_b32 v19, 7, v0')
    a.e('v_lshlrev_b32 v20, 2, v19')
    a.e(f's_mov_b32 s33, 0x{KC_NIB:08x}')
    a.e('v_lshrrev_b32 v20, v20, s33')
    a.e('v_and_b32 v20, 15, v20')
    a.e(f's_movk_i32 s34, {KC_STRIDE}')
    a.e('v_mul_lo_u32 v19, v19, s34')
    a.e('v_lshl_add_u32 v19, v20, 4, v19')
    a.e('v_lshrrev_b32 v20, 3, v0')
    a.e('v_lshl_add_u32 v19, v20, 4, v19')
    a.e('v_cmp_gt_u32 vcc, 9, v0')
    a.e('s_and_saveexec_b64 s[36:37], vcc')
    for c in range(2):
        a.lds(f'ds_write_b128 v19, v[{Z}:{Z+3}] offset:{K1_CH * c}')
    a.e('s_mov_b64 exec, s[36:37]')
    a.e('v_subrev_u32 v20, 64, v0')
    a.e(f'v_add_u32 v21, {K1_CH}, v4')
    a.e('v_cmp_gt_u32 vcc, 30, v20')
    a.e('s_and_saveexec_b64 s[36:37], vcc')
    a.lds(f'ds_write_b128 v4, v[{Z}:{Z+3}] offset:{R_OFF + 4096 - 1024}')
    a.lds(f'ds_write_b128 v21, v[{Z}:{Z+3}] offset:{R_OFF + 4096 - 1024}')
    a.e('s_mov_b64 exec, s[36:37]')
    a.e('v_add_u32 v19, 1, v7')
    a.e('v_and_b32 v20, 7, v19')
    a.e('v_lshlrev_b32 v22, 2, v20')
    a.e('v_lshrrev_b32 v22, v22, s33')
    a.e('v_and_b32 v22, 15, v22')
    a.e('v_mul_lo_u32 v20, v20, s34')
    a.e('v_lshl_add_u32 v20, v22, 4, v20')
    a.e('v_and_b32 v19, 0x18, v19')
    a.e('v_lshl_add_u32 v19, v8, 3, v19')
    a.e('v_lshl_add_u32 v20, v19, 1, v20')
    a.e('s_lshl_b32 s35, s15, 7')
    a.e('v_add_u32 v2, s35, v20')
    a.e('v_lshlrev_b32 v19, 5, v7')
    a.e('v_lshlrev_b32 v20, 4, v8')
    a.e('v_sub_u32 v19, v20, v19')
    a.e(f's_add_u32 s38, s35, {R_OFF + 480}')
    a.e('v_add_u32 v3, s38, v19')
    a.e(f'v_add_u32 v9, {K1_CH}, v2')
    a.e(f'v_add_u32 v10, {K1_CH}, v3')
    a.e(f's_add_u32 s38, s17, {PART}')
    a.e('v_add_u32 v11, s38, v6')

    def build(c):
        W = LR[c]
        X, O, O2 = 80, 86, 92
        vw = 4 if c == 0 else 21
        a.wait_vm(f'k{c}')
        if c == 0:
            loads_b()

        def wr(e, r, extra=0):
            a.lds(f'ds_write_b128 v{vw}, v[{r}:{r+3}] offset:{e * KC_STRIDE + KC_OFFS[e] * 16 + 16 + extra}')
        wr(0, W + 4, 16)
        wr(4, W + 2)
        for k in range(6):
            a.e(f'v_mov_b32 v{X + k}, v{W + k + 1}')
        wr(2, X)
        wr(6, X + 2)
        for k in range(6):
            a.e(f'v_alignbit_b32 v{O + k}, v{W + k + 1}, v{W + k}, 16')
        wr(1, O)
        wr(5, O + 2)
        for k in range(6):
            a.e(f'v_alignbit_b32 v{O2 + k}, v{W + k + 2}, v{W + k + 1}, 16')
        wr(3, O2)
        wr(7, O2 + 2)
        a.wait_vm(f'r{c}')
        a.wait_lg0()

    ACCC = 32

    def fq(q):
        return f'a[{4*q}:{4*q+3}]' if q < 20 else f'v[{128 + 4 * (q - 20)}:{131 + 4 * (q - 20)}]'

    def conv(c):
        va, vb = (2, 3) if c == 0 else (9, 10)

        def rd_a(r, i):
            return lambda: a.lds(f'ds_read_b128 {fq(16 * r + i)}, v{va} offset:{64 * (r + 8 * i)}', f'a{r}_{i}')

        def rd_b(r, j):
            return lambda: a.lds(f'ds_read_b128 {fq(16 * r + 8 + j)}, v{vb} offset:{64 * (r + 56 - 8 * j)}', f'b{r}_{j}')

        def reads(r):
            return [rd_a(r, 0)] + [rd_b(r, j) for j in range(8)] + [rd_a(r, i) for i in range(1, 8)]
        order = [(i, j) for i in range(8) for j in range(8 - i)]
        order.remove((7, 0))
        order.insert(order.index((5, 0)), (7, 0))

        def mfma(r, i, j, first):
            def f():
                for t in (f'a{r}_{i}', f'b{r}_{j}'):
                    if t in a.lg:
                        a.wait_lg(t)
                nb = i + j
                cc = '0' if first else f'v[{ACCC + 4 * nb}:{ACCC + 4 * nb + 3}]'
                a.e(f'v_mfma_f32_16x16x32_bf16 v[{ACCC + 4 * nb}:{ACCC + 4 * nb + 3}], {fq(16 * r + i)}, {fq(16 * r + 8 + j)}, {cc}')
            return f
        for f in reads(0):
            f()
        interleave(a, [mfma(0, i, j, i == 0) for (i, j) in order], reads(1), start=10, per=1)
        order2 = sorted(order, key=lambda p: (p[0] + p[1], p[0]))
        seq = []
        for lo in range(0, 8, 2):
            x = [p for p in order2 if p[0] + p[1] == lo]
            y = [p for p in order2 if p[0] + p[1] == lo + 1]
            while x or y:
                if y:
                    seq.append(y.pop(0))
                if x:
                    seq.append(x.pop(0))
        done = []
        for k, (i, j) in enumerate(seq):
            mfma(1, i, j, False)()
            for nb in range(8):
                last = max(q for q, p in enumerate(seq) if p[0] + p[1] == nb)
                if nb not in done and last + 3 <= k:
                    a.lds(f'ds_write_b128 v11, v[{ACCC+4*nb}:{ACCC+4*nb+3}] offset:{4096 * nb}', 'pw')
                    done.append(nb)
        for nb in range(8):
            if nb not in done:
                a.lds(f'ds_write_b128 v11, v[{ACCC+4*nb}:{ACCC+4*nb+3}] offset:{4096 * nb}', 'pw')
        a.wait_lg0()

    touch(5, 'c')
    build(0)
    a.e('s_barrier')
    stamp('B1')
    conv(0)
    stamp('cA')
    a.e('s_barrier')
    build(1)
    epi_addr()
    a.e(f'v_mov_b32 v{cAH}, s62')
    a.e(f'v_lshrrev_b32 v{cAL}, 16, v{cAH}')
    a.e('s_barrier')
    stamp('B3')
    conv(1)
    a.e('s_barrier')
    stamp('B4')
    for q, r in enumerate((QS[1], QF, QF + 4, KVD, KVD + 4)):
        a.lds(f'ds_read_b128 v[{r}:{r+3}], v12 offset:{1024 * q}', 'hx')
    post(1)
    a.e('s_branch KM_COMPUTE')

    a.label('KM_AUX')
    a.vm, a.lg = [], []
    a.e('v_lshlrev_b32 v9, 5, v7')
    a.e('v_lshl_add_u32 v9, v8, 3, v9')
    a.e('v_lshlrev_b32 v18, 1, v9')
    a.e('v_lshrrev_b32 v10, 1, v1')
    a.e('s_movk_i32 s19, 3584')
    a.e('v_mul_lo_u32 v10, v10, s19')
    a.e('v_and_b32 v11, 1, v1')
    a.e('v_lshl_add_u32 v10, v11, 4, v10')
    a.e('v_lshlrev_b32 v19, 5, v8')
    a.e('s_lshl_b32 s19, s2, 2')
    a.e(f's_add_u32 s19, s19, {WS_MOD}')
    a.e('s_lshl_b32 s20, s2, 1')
    a.e('s_and_b32 s20, s20, 0xfffffffc')
    a.e('s_mul_i32 s21, s13, 114688')
    a.e('s_mul_i32 s22, s14, 224')
    a.e('s_add_u32 s21, s21, s22')
    a.e('s_lshl_b32 s22, s15, 12')
    a.e(f's_add_u32 s22, s22, {STG}')
    a.e(f'v_mov_b32 v16, {LCNT}')
    a.e('v_mov_b32 v17, 0')
    a.e('ds_write_b32 v16, v17')
    a.e('s_waitcnt lgkmcnt(0)')
    a.srd(24, 8, WS_SIZE)
    for c in range(2):
        for k in range(3):
            a.e(f's_add_u32 s23, s19, {2048 * k + 1024 * c}')
            a.e(f's_load_dword s{56 + 4 * c + k}, s[8:9], s23')
        a.e(f's_add_u32 s23, s20, {512 * c}')
        a.e(f's_load_dword s{59 + 4 * c}, s[42:43], s23')
    for j in range(4):
        if j < 3:
            a.e(f's_add_u32 s{48+j}, s15, {4 * j}')
        else:
            a.e('s_and_b32 s51, s15, 1')
            a.e('s_add_u32 s51, s51, 12')
        a.e(f's_cmp_ge_u32 s{48+j}, 7')
        a.e('s_cselect_b32 s52, s46, s44')
        a.e('s_cselect_b32 s53, s47, s45')
        a.e('s_cselect_b32 s36, 7, 0')
        a.e(f's_sub_u32 s36, s{48+j}, s36')
        a.e('s_and_b32 s53, s53, 0xffff')
        a.e(f's_mov_b32 s54, {512 * 1792 * 2}')
        a.e('s_mov_b32 s55, 0x00020000')
        a.e('s_lshl_b32 s36, s36, 5')
        a.e('s_add_u32 s36, s36, s21')
        a.e(f's_add_u32 m0, s22, {1024 * j}')
        a.vmem('buffer_load_dwordx4 v10, s[52:55], s36 offen lds', 'wraw')
    CB, SBF, GL, GH, SBP = 32, 40, 48, 52, 56
    a.e('s_lshl_b32 s36, s13, 7')
    a.e(f's_add_u32 s36, s36, {WS_MOD + 3 * 2048}')
    a.vmem(f'buffer_load_dwordx4 v[{SBF}:{SBF+3}], v19, s[24:27], s36 offen', 'cb')
    a.vmem(f'buffer_load_dwordx4 v[{SBF+4}:{SBF+7}], v19, s[24:27], s36 offen offset:16', 'cb')
    a.vmem(f'buffer_load_dwordx4 v[{CB}:{CB+3}], v19, s[24:27], s36 offen offset:2048', 'cb')
    a.vmem(f'buffer_load_dwordx4 v[{CB+4}:{CB+7}], v19, s[24:27], s36 offen offset:2064', 'cb')
    a.e(f's_add_u32 s36, s18, {WS_QT}')
    a.e('s_lshl_b32 s37, s15, 11')
    a.e(f's_add_u32 s38, s37, {WS_NM}')
    a.e(f's_add_u32 s39, s37, {WS_RS}')
    for n in range(2):
        a.vmem(f'buffer_load_dwordx2 v[{QS[0]+2*n}:{QS[0]+2*n+1}], v9, s[24:27], s36 offen offset:{512*n}', 'ep')
        a.vmem(f'buffer_load_dwordx4 v[{NM+4*n}:{NM+4*n+3}], v18, s[24:27], s38 offen offset:{1024*n}', 'ep')
        a.vmem(f'buffer_load_dwordx4 v[{RS+4*n}:{RS+4*n+3}], v18, s[24:27], s39 offen offset:{1024*n}', 'ep')
    a.e('s_add_u32 s65, s36, 0x100000')
    a.srd(28, 4, 2048 * 512 * 2)
    a.e('v_bfe_u32 v11, v1, 2, 2')
    a.e('v_lshl_add_u32 v11, v8, 3, v11')
    a.e('v_lshlrev_b32 v11, 5, v11')
    a.e('v_and_b32 v13, 3, v1')
    a.e('v_lshl_add_u32 v11, v13, 3, v11')
    a.e('v_add_u32 v11, s22, v11')
    a.e('v_lshrrev_b32 v13, 5, v1')
    a.e('s_movk_i32 s36, 448')
    a.e('v_mul_lo_u32 v13, v13, s36')
    a.e('v_lshl_add_u32 v13, v7, 2, v13')
    a.e(f's_sub_u32 s36, {R_OFF + 4088 - 512}, s17')
    a.e('v_sub_u32 v5, s36, v9')
    epi_addr()
    a.e('s_lshl_b32 s36, s14, 4')
    a.e('s_add_u32 s36, s36, s13')
    a.e('s_mul_i32 s37, s36, 14336')
    a.e(f's_add_u32 s37, s37, {WS_WF}')
    a.e('s_mul_i32 s38, s36, 1792')
    a.e(f's_add_u32 s38, s38, {WS_UTP}')
    touch(1, 'a')
    a.e('s_barrier')
    stamp('B1')
    a.wait_vm('cb')
    a.wait_lg0()
    WR, P, O, U = 128, 144, 152, 168
    for j in range(4):
        for half in range(2):
            a.lds(f'ds_read_b64_tr_b16 v[{WR+4*j+2*half}:{WR+4*j+2*half+1}], v11 offset:{1024 * j + 128 * half}', f'w{j}')
    for k in range(8):
        a.e(f'v_add_f32 v{CB+k}, 1.0, v{CB+k}')
    for k in range(4):
        a.e(f'v_cvt_pk_bf16_f32 v{GL+k}, v{CB+2*k}, 0')
        a.e(f'v_cvt_pk_bf16_f32 v{GH+k}, 0, v{CB+2*k+1}')
        a.e(f'v_cvt_pk_bf16_f32 v{SBP+k}, v{SBF+2*k}, v{SBF+2*k+1}')
    for j in range(4):
        a.wait_lg(f'w{j}')
        for k in range(4):
            a.e(f'v_dot2_f32_bf16 v{P+2*k}, v{WR+4*j+k}, v{GL+k}, 0')
            a.e(f'v_dot2_f32_bf16 v{P+2*k+1}, v{WR+4*j+k}, v{GH+k}, 0')
        for k in range(4):
            a.e(f'v_cvt_pk_bf16_f32 v{O+4*j+k}, v{P+2*k}, v{P+2*k+1}')
        a.e(f's_lshl_b32 s36, s{48+j}, 10')
        a.e('s_add_u32 s36, s36, s37')
        a.vmem(f'buffer_store_dwordx4 v[{O+4*j}:{O+4*j+3}], v6, s[24:27], s36 offen sc1', 'wo')
    for k in range(16):
        a.e(f'v_accvgpr_write_b32 a{k}, v{WR+k}')
        a.e(f'v_accvgpr_write_b32 a{16+k}, v{O+k}')
    for n in range(2):
        a.vmem(f'buffer_load_dwordx2 v[{QS[1]+2*n}:{QS[1]+2*n+1}], v9, s[24:27], s65 offen offset:{512*n}', 'qb')
    pre(0)
    stamp('cA')
    a.e('s_barrier')
    post(0)
    stamp('B3')
    a.e('s_barrier')
    a.wait_vm0()
    lds_arrive('s64')
    a.e('s_cmp_lg_u32 s64, 3')
    a.e('s_cbranch_scc1 KM_S1')
    arrive1(XAC)
    a.label('KM_S1')
    a.e('s_mov_b64 exec, -1')
    pre(1)
    for q, r in enumerate((QS[1], QF, QF + 4, KVD, KVD + 4)):
        a.lds(f'ds_write_b128 v12, v[{r}:{r+3}] offset:{1024 * q}')
    a.e('s_cmp_lg_u32 s64, 3')
    a.e('s_cbranch_scc1 KM_S1B')
    arrive2(XAR, 'KM_S1B')
    a.wait_lg0()
    a.e('s_barrier')
    stamp('B4')
    for k in range(16):
        a.e(f'v_accvgpr_read_b32 v{WR+k}, a{k}')
        a.e(f'v_accvgpr_read_b32 v{O+k}, a{16+k}')
    for k in range(4):
        for j in range(4):
            cc = '0' if k == 0 else f'v{U+2*j+1}'
            a.e(f'v_dot2_f32_bf16 v{U+2*j+1}, v{WR+4*j+k}, v{SBP+k}, {cc}')
        for j in range(4):
            cc = '0' if k == 0 else f'v{U+2*j}'
            a.e(f'v_dot2_f32_bf16 v{U+2*j}, v{O+4*j+k}, s33, {cc}')
    for j in range(4):
        a.e(f'v_permlane32_swap_b32 v{U+2*j}, v{U+2*j+1}')
    for j in range(4):
        a.e(f'v_add_f32 v{U+2*j}, v{U+2*j}, v{U+2*j+1}')
    for j in range(4):
        a.e(f'v_mov_b32 v{U+2*j+1}, v{U+2*j}')
    for j in range(4):
        a.e(f'v_permlane16_swap_b32 v{U+2*j}, v{U+2*j+1}')
    for j in range(4):
        a.e(f'v_add_f32 v{U+2*j}, v{U+2*j}, v{U+2*j+1}')
    a.e('s_mov_b32 s64, 0xffff')
    a.e('s_mov_b32 s65, 0xffff')
    a.e('s_mov_b64 exec, s[64:65]')
    for j in range(4):
        a.e(f's_cmp_ge_u32 s{48+j}, 7')
        a.e('s_cselect_b32 s36, 448, 0')
        a.e(f's_lshl_b32 s39, s{48+j}, 6')
        a.e('s_add_u32 s36, s36, s39')
        a.e('s_add_u32 s36, s36, s38')
        a.vmem(f'buffer_store_dword v{U+2*j}, v13, s[24:27], s36 offen sc1', 'ut')
    a.e('s_mov_b64 exec, -1')

    def mlp_setup():
        a.e('v_lshrrev_b32 v2, 4, v1')
        a.e('v_and_b32 v3, 15, v1')
        a.e('v_lshlrev_b32 v4, 4, v1')
        a.e('s_lshr_b32 s34, s14, 1')
        a.e('s_and_b32 s35, s14, 1')
        a.e('s_mov_b32 s32, s13')
        a.e('s_mul_i32 s37, s34, 229376')
        a.e(f's_add_u32 s37, s37, {WS_WDF}')
        a.e('s_mul_i32 s38, s15, 57344')
        a.e('s_add_u32 s38, s38, s37')
        a.e(f'v_mov_b32 v{VA}, v4')
        for k in (1, 2):
            a.e(f'v_add_u32 v{VA+k}, {2 * SLOT * k}, v4')

    VA, VB0, VB1 = 5, 8, 11
    WREG = [f'a{r}' for r in range(0, 80, 4)]

    def wd_reg(n):
        fr = 36 + n
        if n % 4 == 0:
            a.e(f's_add_u32 s45, s38, {fr * 1024}')
        a.vmem(f'buffer_load_dwordx4 {quad(WREG[n])}, v4, s[24:27], s45 offen offset:{1024 * (n % 4)}', 'wdr')

    mlp_setup()
    a.e('s_mul_i32 s16, s14, 229376')
    a.e(f's_add_u32 s16, s16, {WS_WF}')
    a.e('s_and_b32 s23, s15, 1')
    a.e('s_lshl_b32 s23, s23, 2')
    a.e('v_add_u32 v16, s23, v2')
    a.e('v_lshlrev_b32 v16, 1, v16')
    a.e('v_xor_b32 v16, v16, v3')
    a.e('v_lshlrev_b32 v16, 4, v16')
    a.e('v_lshl_add_u32 v14, v2, 12, v16')
    a.e('s_lshl_b32 s17, s13, 8')
    a.e('s_lshl_b32 s23, s15, 15')
    a.e('s_add_u32 s17, s17, s23')
    a.e(f's_add_u32 s17, s17, {WS_X1T}')
    a.e('s_lshl_b32 s18, s15, 11')
    a.e(f's_add_u32 s18, s18, {B_OFF}')
    a.e('s_mul_i32 s19, s15, 3072')
    a.e('s_add_u32 s20, s16, s19')
    a.e('s_lshr_b32 s21, s15, 1')
    a.e('s_lshl_b32 s21, s21, 10')
    a.e('s_add_u32 s21, s21, 12288')
    a.e('s_add_u32 s22, s16, s21')
    a.e('s_bitcmp1_b32 s15, 0')
    a.e('s_cselect_b32 s46, 0, -1')
    a.e('s_cselect_b32 s47, -1, 0')
    a.e('s_lshl_b32 s39, s15, 10')

    def dma(ks):
        slot = ks % NSLOT
        a.e(f's_add_u32 m0, s18, {slot * SLOT}')
        a.e(f's_add_u32 s23, s17, {ks * 131072}')
        a.vmem('buffer_load_dwordx4 v14, s[24:27], s23 offen sc1 lds', f'D{ks}')
        a.e(f's_add_u32 s23, s17, {ks * 131072 + 16384 - 1024}')
        a.vmem('buffer_load_dwordx4 v14, s[24:27], s23 offen offset:1024 sc1 lds', f'D{ks}')
        a.e(f's_add_u32 m0, s19, {slot * SLOT}')
        a.e(f's_add_u32 s23, s20, {ks * 14336}')
        for e in range(3):
            a.vmem(f'buffer_load_dwordx4 v4, s[24:27], s23 offen offset:{1024 * e} sc1 lds', f'D{ks}')
        a.e(f's_add_u32 m0, s21, {slot * SLOT}')
        a.e(f's_add_u32 s23, s22, {ks * 14336}')
        a.e('s_mov_b64 exec, s[46:47]')
        a.vmem('buffer_load_dwordx4 v4, s[24:27], s23 offen sc1 lds', f'D{ks}')
        a.e('s_mov_b64 exec, -1')

    def wd_lds(it):
        slot = (10 + it) % NSLOT
        for jj in range(6):
            a.e(f's_add_u32 m0, s39, {slot * SLOT + jj * 4096}')
            a.e(f's_add_u32 s23, s38, {(6 * it + jj) * 1024}')
            a.vmem('buffer_load_dwordx4 v4, s[24:27], s23 offen lds', 'wdl')

    a.e('s_cmp_eq_u32 s10, 4')
    a.e('s_cbranch_scc1 KM_P1A')
    sv = list(a.vm)
    for n in range(20):
        wd_reg(n)
    a.wait_vm('ut')
    a.vm = sv
    a.e('s_branch KM_P1W')
    a.label('KM_P1A')
    a.e('s_and_b32 s23, s2, 15')
    a.e('s_lshl_b32 s23, s23, 7')
    a.e(f's_add_u32 s23, s23, {XAR}')
    a.e('v_mov_b32 v16, 0')
    a.e('s_mov_b64 exec, 1')
    a.e(f's_mov_b32 s50, {SPIN}')
    a.label('KM_P1')
    a.e('buffer_load_dword v18, v16, s[24:27], s23 offen sc1')
    a.e('s_waitcnt vmcnt(0)')
    a.e('v_readfirstlane_b32 s36, v18')
    a.e('s_cmp_ge_u32 s36, 8')
    a.e('s_cbranch_scc1 KM_P1R')
    a.e(f's_sleep {PSLEEP}')
    a.e('s_sub_u32 s50, s50, 1')
    a.e('s_cmp_lg_u32 s50, 0')
    a.e('s_cbranch_scc1 KM_P1')
    a.label('KM_P1R')
    a.e('s_mov_b64 exec, -1')
    a.label('KM_P1W')
    a.vm = []
    a.e('s_barrier')
    stamp('B5')
    for ks in range(3):
        dma(ks)
    a.wait_vm('D0')
    a.e('s_barrier')
    stamp('B0')
    dma(3)
    UP = 32

    def utp_loads():
        a.e('s_mul_i32 s23, s14, 28672')
        a.e('s_mul_i32 s36, s15, 448')
        a.e('s_add_u32 s23, s23, s36')
        a.e(f's_add_u32 s23, s23, {WS_UTP}')
        a.e('s_mov_b64 exec, 0xfffffff')
        for k in range(16):
            if k % 2 == 0 and k:
                a.e('s_add_u32 s23, s23, 3584')
            a.vmem(f'buffer_load_dwordx4 v[{UP+4*k}:{UP+4*k+3}], v4, s[24:27], s23 offen offset:{1792 * (k & 1)} sc1', 'utp')
        a.e('s_mov_b64 exec, -1')

    def side():
        a.e('v_lshrrev_b32 v16, 3, v1')
        a.e('v_and_b32 v17, 7, v1')
        a.e('v_lshlrev_b32 v17, 4, v17')
        a.e('v_lshl_add_u32 v16, v16, 12, v17')
        a.e('s_lshl_b32 s23, s34, 2')
        a.e('s_add_u32 s23, s23, s15')
        a.e('s_lshl_b32 s23, s23, 16')
        a.e('s_lshl_b32 s36, s32, 8')
        a.e('s_add_u32 s23, s23, s36')
        a.e('s_lshl_b32 s36, s35, 7')
        a.e('s_add_u32 s23, s23, s36')
        a.e(f's_add_u32 s23, s23, {WS_X1T}')
        a.e('s_lshl_b32 s36, s15, 11')
        a.e(f's_add_u32 m0, s36, {X1L}')
        a.vmem('buffer_load_dwordx4 v16, s[24:27], s23 offen sc1 lds', 'side')
        a.e(f's_add_u32 s23, s23, {32768 - 1024}')
        a.vmem('buffer_load_dwordx4 v16, s[24:27], s23 offen offset:1024 sc1 lds', 'side')

    nreg = 0
    mark = 0
    for bi, ks in enumerate(BARS):
        need = BARS[bi + 1] if bi + 1 < len(BARS) else 15
        if f'D{need}' in a.vm:
            a.wait_vm(f'D{need}')
        if ks == XBCHK:
            a.e('s_cmp_lg_u32 s10, 4')
            a.e('s_cbranch_scc1 KM_P2W')
            a.e(f's_mov_b32 s50, {SPIN}')
            a.e('s_mov_b64 exec, 1')
            a.e(f's_waitcnt vmcnt({a.nvm - mark})')
            a.label('KM_P2')
            a.e('v_readfirstlane_b32 s36, v21')
            a.e('s_cmp_ge_u32 s36, 8')
            a.e('s_cbranch_scc1 KM_P2R')
            a.e('buffer_load_dword v21, v20, s[24:27], s64 offen sc1')
            a.e('s_waitcnt vmcnt(0)')
            a.e('s_sub_u32 s50, s50, 1')
            a.e('s_cmp_lg_u32 s50, 0')
            a.e('s_cbranch_scc1 KM_P2')
            a.label('KM_P2R')
            a.e('s_mov_b64 exec, -1')
            a.label('KM_P2W')
        if ks == 10:
            a.wait_lg0()
        a.e('s_barrier')
        stamp(f'k{ks}')
        if ks == XBCHK - 1:
            a.e('s_cmp_lg_u32 s10, 4')
            a.e('s_cbranch_scc1 KM_P2A')
            a.e('s_and_b32 s64, s2, 15')
            a.e('s_lshl_b32 s64, s64, 7')
            a.e(f's_add_u32 s64, s64, {XBR}')
            a.e('v_mov_b32 v20, 0')
            a.e('s_mov_b64 exec, 1')
            a.e('buffer_load_dword v21, v20, s[24:27], s64 offen sc1')
            a.e('s_mov_b64 exec, -1')
            a.label('KM_P2A')
            mark = a.nvm
        for st in ISSUE.get(ks, ()):
            dma(st)
        if ks == 4:
            side()
            utp_loads()
        if ks == 8:
            a.wait_vm('utp')
            for step in (8, 4, 2, 1):
                for k in range(step):
                    for r in range(4):
                        a.e(f'v_add_f32 v{UP+4*k+r}, v{UP+4*k+r}, v{UP+4*(k+step)+r}')
            a.e('s_lshl_b32 s36, s15, 9')
            a.e(f's_add_u32 s36, s36, {UTL}')
            a.e('v_add_u32 v16, s36, v4')
            a.e('s_mov_b64 exec, 0xfffffff')
            a.lds(f'ds_write_b128 v16, v[{UP}:{UP+3}]')
            a.e('s_mov_b64 exec, -1')
        if ks in WDR:
            a.e('s_cmp_lg_u32 s10, 4')
            a.e(f's_cbranch_scc1 KM_WR{ks}')
            sv, sn = list(a.vm), a.nvm
            for _ in range(WDR[ks]):
                wd_reg(nreg)
                nreg += 1
            a.vm, a.nvm = sv, sn
            a.label(f'KM_WR{ks}')
        for it in {10: (0,), 12: (1, 2), 14: (3, 4), 15: (5,)}.get(ks, ()):
            wd_lds(it)
    assert nreg == 20
    stamp('lend')
    a.e('s_branch K2_JOIN')

    a.label('KM_COMPUTE')
    a.vm, a.lg = [], []
    mlp_setup()
    BF, ONES, ACC, S, Q, MR = 32, 16, 48, 160, 168, 28
    a.e('v_bfe_u32 v16, v1, 2, 2')
    a.e('v_and_b32 v17, 3, v1')
    a.e('v_and_b32 v18, 1, v2')
    a.e('v_lshl_add_u32 v18, v18, 2, v16')
    a.e('v_lshl_add_u32 v16, v2, 3, v16')
    a.e('v_lshlrev_b32 v16, 8, v16')
    a.e('v_lshl_add_u32 v16, v17, 3, v16')
    a.e(f'v_add_u32 v16, {B_OFF}, v16')
    a.e('s_lshl_b32 s22, s15, 1')
    for t, vb in ((0, VB0), (1, VB1)):
        a.e(f's_add_u32 s23, s22, {t}')
        a.e('v_xor_b32 v17, s23, v18')
        a.e(f'v_lshl_add_u32 v{vb}, v17, 5, v16')
        for k in (1, 2):
            a.e(f'v_add_u32 v{vb+k}, {2 * SLOT * k}, v{vb}')
    for k in range(4):
        a.e(f'v_mov_b32 v{ONES+k}, 0x3f803f80')
    a.e('v_lshlrev_b32 v14, 4, v2')
    a.e(f'v_add_u32 v14, {UTL}, v14')
    a.e('s_lshl_b32 s23, s13, 2')
    a.e('s_add_u32 s23, s23, s15')
    a.e('s_lshl_b32 s23, s23, 4')
    a.e('s_add_u32 s23, s23, s14')
    a.e('s_mul_i32 s23, s23, 7168')
    a.e(f's_add_u32 s48, s23, {WS_HF}')
    a.e('s_add_u32 s49, s48, 4096')
    a.e('s_barrier')
    stamp('B5')
    a.e('s_waitcnt vmcnt(0)')
    lds_arrive('s64')
    a.e('s_cmp_lg_u32 s64, 7')
    a.e('s_cbranch_scc1 KM_S2')
    arrive1(XBC)
    a.e('s_mov_b64 exec, -1')
    arrive2(XBR, 'KM_S2')
    a.e('s_mov_b64 exec, -1')
    for k in range(4):
        a.e(f'v_mov_b32 v{ONES+k}, 0x3f803f80')

    RING = 20

    def rd_b(ks):
        slot = ks % NSLOT
        k, o = slot >> 1, (slot & 1) * SLOT
        return [(lambda r=BF + 8 * (ks & 1) + 4 * t + 2 * half, vb=vb, half=half:
                 a.lds(f'ds_read_b64_tr_b16 v[{r}:{r+1}], v{vb+k} offset:{o + half * 1024}', f'B{ks}'))
                for t, vb in ((0, VB0), (1, VB1)) for half in range(2)]

    def stats_ops():
        L = []

        def e(x):
            L.append(lambda x=x: a.e(x))

        def rnd2(lo, hi, tmp):
            e(f'v_cvt_pk_bf16_f32 v{tmp}, v{lo}, v{hi}')
            e(f'v_lshlrev_b32 v{lo}, 16, v{tmp}')
            e(f'v_and_b32 v{hi}, 0xffff0000, v{tmp}')
        e('v_and_b32 v24, 3, v3')
        e('v_lshrrev_b32 v25, 2, v3')
        for t in range(2):
            e(f'v_mov_b32 v{MR+2*t+1}, v{Q+4*t}')
        for k in range(1, 4):
            e(f'v_cmp_eq_u32 vcc, {k}, v24')
            for t in range(2):
                e(f'v_cndmask_b32 v{MR+2*t+1}, v{MR+2*t+1}, v{Q+4*t+k}, vcc')
        e('v_cmp_eq_u32 vcc, v25, v2')
        for t in range(2):
            e(f'v_cndmask_b32 v{MR+2*t+1}, 0, v{MR+2*t+1}, vcc')
        for step in ('v_permlane32_swap_b32', 'v_permlane16_swap_b32'):
            for t in range(2):
                e(f'v_mov_b32 v{26+t}, v{MR+2*t+1}')
            for t in range(2):
                e(f'{step} v{MR+2*t+1}, v{26+t}')
            for t in range(2):
                e(f'v_add_f32 v{MR+2*t+1}, v{MR+2*t+1}, v{26+t}')
        for t in range(2):
            e(f'v_mul_f32 v{MR+2*t}, 0x3b000000, v{S+4*t}')
            e(f'v_mul_f32 v{MR+2*t+1}, 0x3b000000, v{MR+2*t+1}')
        for t in range(2):
            e(f'v_fma_f32 v{MR+2*t+1}, -v{MR+2*t}, v{MR+2*t}, v{MR+2*t+1}')
        for t in range(2):
            e(f'v_max_f32 v{MR+2*t+1}, 0, v{MR+2*t+1}')
        rnd2(MR + 1, MR + 3, 26)
        rnd2(MR + 0, MR + 2, 27)
        for t in range(2):
            e(f'v_add_f32 v{MR+2*t+1}, 0x3727c5ac, v{MR+2*t+1}')
        rnd2(MR + 1, MR + 3, 26)
        for t in range(2):
            e(f'v_sqrt_f32 v{MR+2*t+1}, v{MR+2*t+1}')
        rnd2(MR + 1, MR + 3, 26)
        for t in range(2):
            e(f'v_rcp_f32 v{26+t}, v{MR+2*t+1}')
        for t in range(2):
            e(f'v_fma_f32 v{MR+2*t+1}, -v{MR+2*t+1}, v{26+t}, 1.0')
        for t in range(2):
            e(f'v_fma_f32 v{MR+2*t+1}, v{MR+2*t+1}, v{26+t}, v{26+t}')
        for t in range(2):
            e(f'v_mul_f32 v{MR+2*t}, -v{MR+2*t}, v{MR+2*t+1}')
        return L

    morder = [x for fl in range(7) for x in (fl, 7 + fl)]
    a.e('s_barrier')
    stamp('B0')
    for f in rd_b(0):
        f()
    for j in range(14):
        a.lds(f'ds_read_b128 a[{4*j}:{4*j+3}], v{VA} offset:{morder[j] * 1024}', f'A{j}')

    def rd(n):
        ks, j = divmod(n, 14)
        slot = ks % NSLOT
        k, o = slot >> 1, (slot & 1) * SLOT
        r = 4 * (n % RING)
        a.lds(f'ds_read_b128 a[{r}:{r+3}], v{VA+k} offset:{o + morder[j] * 1024}', f'A{n}')
    for ks in range(16):
        if ks in BARS:
            a.wait_lg0()
            a.e('s_barrier')
            stamp(f'k{ks}')
        pend = []
        if ks + 1 < 16:
            pend = rd_b(ks + 1) + [(lambda n=14 * (ks + 1) + j: rd(n)) for j in range(6)]
        if f'B{ks}' in a.lg:
            a.wait_lg(f'B{ks}')
        st_ops = stats_ops() if ks == 15 else []
        for t in range(2):
            br = BF + 8 * (ks & 1) + 4 * t
            for d, A in ((S + 4 * t, f'v[{ONES}:{ONES+3}]'), (Q + 4 * t, f'v[{br}:{br+3}]')):
                c = '0' if ks == 0 else f'v[{d}:{d+3}]'
                a.e(f'v_mfma_f32_16x16x32_bf16 v[{d}:{d+3}], {A}, v[{br}:{br+3}], {c}')
                if pend:
                    pend.pop(0)()
        for j in range(14):
            n = 14 * ks + j
            if f'A{n}' in a.lg:
                a.wait_lg(f'A{n}')
            ar = 4 * (n % RING)
            for t in range(2):
                br = BF + 8 * (ks & 1) + 4 * t
                d = ACC + 56 * t + 4 * morder[j]
                c = '0' if ks == 0 else f'v[{d}:{d+3}]'
                a.e(f'v_mfma_f32_16x16x32_bf16 v[{d}:{d+3}], a[{ar}:{ar+3}], v[{br}:{br+3}], {c}')
                if pend:
                    pend.pop(0)()
                elif j >= 2:
                    for _ in range(2):
                        if st_ops:
                            st_ops.pop(0)()
            if ks + 1 < 16 and j < 8:
                pend.append(lambda n2=n + RING: rd(n2))
        while pend:
            pend.pop(0)()
        while st_ops:
            st_ops.pop(0)()
    stamp('lend')
    UTR, T, OUT = 32, 16, 160

    def utread(fl):
        for arr in range(4):
            a.lds(f'ds_read_b128 v[{UTR+4*arr}:{UTR+4*arr+3}], v14 offset:{arr * 512 + fl * 64}', f'ut{fl}')
    utread(0)
    for n in range(20):
        wd_reg(n)
    for i in range(7):
        a.wait_lg0()
        for t in range(2):
            mu = MR + 2 * t
            for mat in range(2):
                for p in range(2):
                    tt = UTR + 8 * mat + 4 + 2 * p
                    ac = ACC + 56 * t + 4 * (mat * 7 + i) + 2 * p
                    a.e(f'v_pk_fma_f32 v[{ac}:{ac+1}], v[{mu}:{mu+1}], v[{ac}:{ac+1}], v[{tt}:{tt+1}] op_sel:[1,0,0] op_sel_hi:[1,1,1]')
        for t in range(2):
            mu = MR + 2 * t
            for mat in range(2):
                for p in range(2):
                    u = UTR + 8 * mat + 2 * p
                    ac = ACC + 56 * t + 4 * (mat * 7 + i) + 2 * p
                    a.e(f'v_pk_fma_f32 v[{ac}:{ac+1}], v[{mu}:{mu+1}], v[{u}:{u+1}], v[{ac}:{ac+1}] op_sel_hi:[0,1,1]')
        if i + 1 < 7:
            utread(i + 1)
        for t in range(2):
            for p in range(2):
                g = ACC + 56 * t + 4 * i + 2 * p
                u = ACC + 56 * t + 4 * (7 + i) + 2 * p
                q = T + 3 * (2 * t + p)
                a.e(f'v_cvt_pk_bf16_f32 v{q}, v{g}, v{g+1}')
                a.e(f'v_cvt_pk_bf16_f32 v{q+1}, v{u}, 0')
                a.e(f'v_cvt_pk_bf16_f32 v{q+2}, 0, v{u+1}')
        for t in range(2):
            for p in range(2):
                q = T + 3 * (2 * t + p)
                a.e(f'v_pk_max_i16 v{q}, v{q}, 0')
        for t in range(2):
            for p in range(2):
                g = ACC + 56 * t + 4 * i + 2 * p
                q = T + 3 * (2 * t + p)
                a.e(f'v_dot2_f32_bf16 v{g}, v{q}, v{q+1}, 0')
                a.e(f'v_dot2_f32_bf16 v{g+1}, v{q}, v{q+2}, 0')
        last = (i == 6)
        O = OUT + 8 * ((i >> 1) & 1)
        for t in range(2):
            for p in range(2):
                g = ACC + 56 * t + 4 * i + 2 * p
                o = (O + 2 * t + p) if last else (O + 4 * t + 2 * (i & 1) + p)
                a.e(f'v_cvt_pk_bf16_f32 v{o}, v{g}, v{g+1}')
        if last:
            a.vmem(f'buffer_store_dwordx4 v[{O}:{O+3}], v4, s[24:27], s49 offen offset:{6 * 1024 - 4096} sc1', 'hs')
        elif i & 1:
            kbp = i >> 1
            for t in range(2):
                sl = 3 * t + kbp
                sreg, off = ('s48', sl * 1024) if sl < 4 else ('s49', sl * 1024 - 4096)
                a.vmem(f'buffer_store_dwordx4 v[{O+4*t}:{O+4*t+3}], v4, s[24:27], {sreg} offen offset:{off} sc1', 'hs')
    a.label('K2_JOIN')
    stamp('join')
    a.wait_vm0()
    a.e('s_barrier')
    stamp('drain')
    a.e('s_cmp_lg_u32 s10, 0')
    a.e('s_cbranch_scc1 K2_WAIT')
    a.e('s_lshl_b32 s23, s13, 7')
    a.e(f's_add_u32 s36, s23, {HMG}')
    a.e(f's_add_u32 s23, s23, {HMC}')
    a.e('v_mov_b32 v16, 0')
    a.e('v_mov_b32 v17, 1')
    a.e('v_mov_b32 v18, 1')
    a.e('s_mov_b64 exec, 1')
    a.e('buffer_atomic_add v18, v16, s[24:27], s23 offen sc0 sc1')
    a.e('s_waitcnt vmcnt(0)')
    a.e('v_readfirstlane_b32 s45, v18')
    a.e('s_cmp_lg_u32 s45, 15')
    a.e('s_cbranch_scc1 K2_NL')
    a.e('buffer_store_dword v17, v16, s[24:27], s36 offen sc1')
    a.e('s_branch K2_READY')
    a.label('K2_NL')
    a.e(f's_mov_b32 s50, {SPIN}')
    a.label('K2_POLL')
    a.e('buffer_load_dword v18, v16, s[24:27], s36 offen sc1')
    a.e('s_waitcnt vmcnt(0)')
    a.e('v_readfirstlane_b32 s45, v18')
    a.e('s_cmp_lg_u32 s45, 0')
    a.e('s_cbranch_scc1 K2_READY')
    a.e('s_sub_u32 s50, s50, 1')
    a.e('s_cmp_lg_u32 s50, 0')
    a.e('s_cbranch_scc1 K2_POLL')
    a.label('K2_READY')
    a.e('s_mov_b64 exec, -1')
    a.label('K2_WAIT')
    a.e('s_lshl_b32 s23, s32, 2')
    a.e('s_lshl_b32 s36, s35, 1')
    a.e('s_add_u32 s23, s23, s36')
    a.e('s_lshr_b32 s33, s10, 2')
    a.e('s_add_u32 s23, s23, s33')
    a.e('s_lshl_b32 s23, s23, 4')
    a.e('s_lshl_b32 s36, s15, 2')
    a.e('s_add_u32 s23, s23, s36')
    a.e('s_mul_i32 s23, s23, 7168')
    a.e(f's_add_u32 s48, s23, {WS_HF}')
    a.e('s_lshl_b32 s23, s15, 10')
    for k in range(3):
        a.e(f'v_add_u32 v{VA+k}, s23, v{VA+k}')
    a.e('s_barrier')
    stamp('hoff')
    a.vm, a.lg = [], []
    BREG = [f'v{r}' for r in range(16, 112, 4)]
    ACC3, AT = 112, 144

    def bload(n):
        if n % 4 == 0:
            a.e(f's_add_u32 s49, s48, {n * 1024}')
        a.vmem(f'buffer_load_dwordx4 {quad(BREG[n % 24])}, v4, s[24:27], s49 offen offset:{1024 * (n % 4)} sc1', f'H{n}')
    for n in range(24):
        bload(n)
    steps = [(c, kb) for c in range(4) for kb in range(4)]

    def afrags(c, kb):
        return [14 * c + 4 * kb + tau for tau in range(4)] if kb < 3 else [14 * c + 12, 14 * c + 13]

    def aread(si):
        c, kb = steps[si]
        for i, fr in enumerate(afrags(c, kb)):
            if fr < 36:
                slot = (10 + fr // 6) % NSLOT
                k, o = slot >> 1, (slot & 1) * SLOT + 4096 * (fr % 6)
                r = AT + 16 * (si & 1) + 4 * i
                a.lds(f'ds_read_b128 v[{r}:{r+3}], v{VA+k} offset:{o}', f'A{si}')

    def areg(si, i):
        c, kb = steps[si]
        fr = afrags(c, kb)[i]
        if fr < 36:
            return ('v', AT + 16 * (si & 1) + 4 * i)
        return (WREG[fr - 36][0], int(WREG[fr - 36][1:]))
    aread(0)
    for si, (c, kb) in enumerate(steps):
        if si + 1 < len(steps):
            aread(si + 1)
        if f'A{si}' in a.lg:
            a.wait_lg(f'A{si}')
        first = (si == 0)
        if kb < 3:
            for t in range(2):
                n = 7 * c + 3 * t + kb
                if f'H{n}' in a.vm:
                    a.wait_vm(f'H{n}')
                for tau in range(4):
                    k, r = areg(si, tau)
                    d = ACC3 + 16 * t + 4 * tau
                    cc = '0' if first else f'v[{d}:{d+3}]'
                    a.e(f'v_mfma_f32_16x16x32_bf16 v[{d}:{d+3}], {k}[{r}:{r+3}], {quad(BREG[n % 24])}, {cc}')
        else:
            n = 7 * c + 6
            if f'H{n}' in a.vm:
                a.wait_vm(f'H{n}')
            bk, br = BREG[n % 24][0], int(BREG[n % 24][1:])
            for t in range(2):
                for tau in range(4):
                    k, r = areg(si, tau >> 1)
                    r += 2 * (tau & 1)
                    d = ACC3 + 16 * t + 4 * tau
                    a.e(f'v_mfma_f32_16x16x16_bf16 v[{d}:{d+3}], {k}[{r}:{r+1}], {bk}[{br+2*t}:{br+2*t+1}], v[{d}:{d+3}]')
            if c == 0:
                for n2 in range(24, 28):
                    bload(n2)
                a.e('v_lshlrev_b32 v14, 5, v2')
                a.e('s_lshl_b32 s23, s34, 8')
                a.e('s_and_b32 s36, s15, 1')
                a.e('s_lshl_b32 s36, s36, 7')
                a.e('s_add_u32 s23, s23, s36')
                a.e(f's_add_u32 s23, s23, {WS_MOD + 5 * 2048}')
                a.vmem('buffer_load_dwordx4 v[8:11], v14, s[24:27], s23 offen', 'gb')
                a.vmem('buffer_load_dwordx4 v[12:15], v14, s[24:27], s23 offen offset:16', 'gb')
    stamp('down')
    a.e('s_mul_i32 s23, s33, 24576')
    a.e('v_add_u32 v5, s23, v4')
    a.e('v_bfe_u32 v6, v1, 2, 2')
    a.e('v_lshl_add_u32 v6, v2, 3, v6')
    a.e('v_lshlrev_b32 v6, 7, v6')
    a.e('v_and_b32 v7, 3, v1')
    a.e('v_lshl_add_u32 v6, v7, 3, v6')
    a.e('s_and_b32 s36, s15, 1')
    a.e('s_lshl_b32 s36, s36, 12')
    a.e('s_lshl_b32 s23, s33, 6')
    a.e('s_add_u32 s36, s36, s23')
    a.e('s_lshr_b32 s23, s15, 1')
    a.e('s_lshl_b32 s23, s23, 5')
    a.e('s_add_u32 s36, s36, s23')
    a.e(f's_add_u32 s36, s36, {X1L}')
    a.e('v_add_u32 v6, s36, v6')
    X = 16
    a.lds(f'ds_read_b64_tr_b16 v[{X}:{X+1}], v6', 'x')
    a.lds(f'ds_read_b64_tr_b16 v[{X+2}:{X+3}], v6 offset:512', 'x')
    a.e('v_lshlrev_b32 v7, 10, v3')
    a.e('v_lshl_add_u32 v7, v2, 4, v7')
    a.e('s_lshl_b32 s23, s32, 3')
    a.e('s_lshl_b32 s36, s35, 2')
    a.e('s_add_u32 s23, s23, s36')
    a.e('s_lshl_b32 s36, s33, 1')
    a.e('s_add_u32 s23, s23, s36')
    a.e('s_lshr_b32 s36, s15, 1')
    a.e('s_add_u32 s23, s23, s36')
    a.e('s_lshl_b32 s23, s23, 14')
    a.e('s_lshl_b32 s36, s34, 7')
    a.e('s_add_u32 s23, s23, s36')
    a.e('s_and_b32 s36, s15, 1')
    a.e('s_lshl_b32 s36, s36, 6')
    a.e('s_add_u32 s51, s23, s36')
    a.e('s_barrier')
    for kq in range(4):
        a.e(f's_cmp_eq_u32 s15, {kq}')
        a.e(f's_cbranch_scc0 K3_W{kq}')
        for j in range(4):
            if j == kq:
                continue
            idx = kq if kq < j else kq - 1
            for h in range(2):
                d = ACC3 + 8 * j + 4 * h
                a.e(f'ds_write_b128 v5, v[{d}:{d+3}] offset:{(j * 3 + idx) * 2048 + h * 1024}')
        if kq != 0:
            for r in range(8):
                a.e(f'v_mov_b32 v{ACC3+r}, v{ACC3+8*kq+r}')
        a.label(f'K3_W{kq}')
    a.e('s_mul_i32 s23, s15, 6144')
    a.e('v_add_u32 v5, s23, v5')
    a.wait_lg0()
    a.e('s_barrier')
    RD3 = 144
    for j in range(3):
        for h in range(2):
            a.lds(f'ds_read_b128 v[{RD3+8*j+4*h}:{RD3+8*j+4*h+3}], v5 offset:{j * 2048 + h * 1024}', f'r{j}')
    for r in range(0, 8, 2):
        a.unpack(24 + r, 25 + r, X + r // 2)
    for j in range(3):
        a.wait_lg(f'r{j}')
        for r in range(0, 8, 2):
            a.e(f'v_pk_add_f32 v[{ACC3+r}:{ACC3+r+1}], v[{ACC3+r}:{ACC3+r+1}], v[{RD3+8*j+r}:{RD3+8*j+r+1}]')
    a.wait_vm('gb')
    T = 32
    for r in range(0, 8, 2):
        a.rnd2(ACC3 + r, ACC3 + r + 1, ACC3 + r, ACC3 + r + 1, T + r // 2)
    for r in range(0, 8, 2):
        a.e(f'v_pk_mul_f32 v[{ACC3+r}:{ACC3+r+1}], v[{ACC3+r}:{ACC3+r+1}], v[{8+r}:{9+r}]')
    for r in range(0, 8, 2):
        a.rnd2(ACC3 + r, ACC3 + r + 1, ACC3 + r, ACC3 + r + 1, T + r // 2)
    for r in range(0, 8, 2):
        a.e(f'v_pk_add_f32 v[{ACC3+r}:{ACC3+r+1}], v[{ACC3+r}:{ACC3+r+1}], v[{24+r}:{25+r}]')
    for r in range(0, 8, 2):
        a.e(f'v_cvt_pk_bf16_f32 v{T + r // 2}, v{ACC3+r}, v{ACC3+r+1}')
    a.vmem(f'buffer_store_dwordx4 v[{T}:{T+3}], v7, s[28:31], s51 offen', 'o')
    stamp('end')
    if STAMPS:
        a.e('s_waitcnt vmcnt(0)')
    a.stamp_out(2, 24, 14, wshift=9)
    a.label('KM_END')
    a.e('s_endpgm')
    a.end_kernel(name, 256, 72, NV)
    return f'; @launch kernel={name} grid=({KM_WG},1,1) block=(512,1,1) lds={KM_LDS}'
```

```python
import sys
import gen
from km import gen_km, NSTUB
ks = [gen.gen_k0, gen_km]
out = sys.argv[1] if len(sys.argv) > 1 else 'cur.s'
open(out, 'w').write(gen.build(ks, stubs=('k1_main_kernel', 's[68:69]', NSTUB) if gen.PAGE else None))
```

```python
import sys, re

NAME = 'adaLN_cond__ssm_conv_h3__glu_gated_reglu__prompt'

MB = 1 << 20
WS_KVT = 0 * MB
WS_QT = 2 * MB
WS_X1T = 4 * MB
WS_X1R = 6 * MB
WS_WF = 8 * MB
WS_WDF = 12 * MB
WS_HF = 16 * MB
WS_NM = 24 * MB
WS_RS = 24 * MB + 8192
WS_MOD = 24 * MB + 65536
WS_UT = 24 * MB + 131072
WS_CNT = 24 * MB + 196608
WS_SIZE = 0x10000000
WS_DBG = 32 * MB
import os
STAMPS = bool(os.environ.get('STAMPS'))
PAGE = bool(os.environ.get('PAGE'))

KA_Q, KA_K, KA_V, KA_SHIFT, KA_SSMK, KA_SSMD, KA_BX, KA_WG, KA_WU, KA_WD, KA_C, KA_WMOD, KA_OUT, KA_DBG, KA_WS = [8 * i for i in range(15)]


def _regs(tok):
    tok = tok.strip()
    m = re.match(r'^-?\|?([vas])\[(\d+):(\d+)\]\|?$', tok)
    if m:
        return [f'{m.group(1)}{i}' for i in range(int(m.group(2)), int(m.group(3)) + 1)]
    m = re.match(r'^-?\|?([vas])(\d+)\|?$', tok)
    if m:
        return [f'{m.group(1)}{m.group(2)}']
    if tok in ('vcc', 'exec', 'm0'):
        return [tok]
    return []


TRANS = ('v_exp_f32', 'v_log_f32', 'v_rcp_f32', 'v_rsq_f32', 'v_sqrt_f32', 'v_sin_f32', 'v_cos_f32')


class Hazards:
    def __init__(self):
        self.pos = 0
        self.wr = {}
        self.crd = {}
        self.st = {}

    def flush(self, a):
        need = 0
        for r, (p, k, op) in self.wr.items():
            lim = {'mfma': 8, 'dot': 3, 'trans': 2, 'valu': 5 if r[0] in 's' or r in ('vcc', 'exec') else 2, 'salu_m0': 1}.get(k, 0)
            need = max(need, lim - (self.pos - p - 1))
        for r, p in self.crd.items():
            need = max(need, 3 - (self.pos - p - 1))
        for r, p in self.st.items():
            need = max(need, 2 - (self.pos - p - 1))
        self.nop(a, need)
        self.wr, self.crd, self.st = {}, {}, {}

    def nop(self, a, n):
        while n > 0:
            k = min(n, 16)
            a.lines.append(f'    s_nop {k - 1}')
            self.pos += k
            n -= k

    def emit(self, a, l):
        code = l.split(';')[0].strip()
        parts = code.split(None, 1)
        op = parts[0]
        ops = []
        if len(parts) > 1:
            for t in parts[1].split(','):
                ops.append(t.strip().split(' ')[0])
        if op.startswith(('s_cbranch', 's_branch')):
            self.flush(a)
        is_mfma = op.startswith('v_mfma')
        is_valu = op.startswith('v_') and not is_mfma
        is_ds = op.startswith('ds_')
        is_vmem = op.startswith('buffer_') or op.startswith('global_')
        is_dpp = is_valu and ('_dpp' in op or 'quad_perm' in code or 'row_' in code)
        dst, src, srcC, data = [], [], [], []
        if is_mfma:
            dst = _regs(ops[0]); src = _regs(ops[1]) + _regs(ops[2]); srcC = _regs(ops[3])
        elif is_valu:
            if op.startswith('v_permlane') and 'swap' in op:
                dst = _regs(ops[0]) + _regs(ops[1]); src = list(dst)
            elif op.startswith('v_swap'):
                dst = _regs(ops[0]) + _regs(ops[1]); src = list(dst)
            elif op.startswith('v_cmpx'):
                dst = ['exec']; src = sum((_regs(o) for o in ops), [])
            elif op in ('v_add_co_u32', 'v_sub_co_u32', 'v_addc_co_u32', 'v_subb_co_u32'):
                dst = _regs(ops[0]) + _regs(ops[1]); src = sum((_regs(o) for o in ops[2:]), [])
            else:
                dst = _regs(ops[0]); src = sum((_regs(o) for o in ops[1:]), [])
                if op.startswith(('v_fmac', 'v_dot2c', 'v_pk_fmac', 'v_mac')) or is_dpp or op.startswith('v_writelane'):
                    src += dst
                if op.startswith('v_cndmask') and len(ops) == 3:
                    src += ['vcc']
            if op.startswith('v_dot'):
                srcC = _regs(ops[3]) if len(ops) > 3 else list(dst)
        elif is_ds:
            if op.startswith('ds_read') or op.startswith('ds_bpermute') or op.startswith('ds_permute'):
                dst = _regs(ops[0]); src = sum((_regs(o) for o in ops[1:]), [])
            else:
                src = sum((_regs(o) for o in ops), [])
        elif is_vmem:
            if '_load' in op and ' lds' not in code:
                dst = _regs(ops[0]); src = sum((_regs(o) for o in ops[1:]), [])
            elif '_load' in op:
                src = sum((_regs(o) for o in ops), []) + ['m0']
            else:
                src = sum((_regs(o) for o in ops), [])
                if 'x3' in op or 'x4' in op:
                    data = _regs(ops[0] if op.startswith('buffer_') else ops[1])
        elif op.startswith('s_') and ops:
            if not op.startswith(('s_cmp', 's_cbranch', 's_branch', 's_waitcnt', 's_nop', 's_barrier', 's_setprio', 's_endpgm')):
                dst = _regs(ops[0]); src = sum((_regs(o) for o in ops[1:]), [])
                if 'saveexec' in op:
                    dst = dst + ['exec']
        need = 0

        def req(p, n):
            nonlocal need
            need = max(need, n - (self.pos - p - 1))
        for r in set(src + srcC):
            if r not in self.wr:
                continue
            p, k, pop = self.wr[r]
            if k == 'mfma':
                if is_mfma:
                    if r in src:
                        req(p, 8)
                    elif ops[3] != pop:
                        req(p, 6)
                elif is_valu or is_ds or is_vmem:
                    req(p, 8)
            elif k == 'dot':
                if op == pop and r in srcC and r not in _regs(ops[1]) + _regs(ops[2]):
                    pass
                elif is_valu or is_mfma or is_ds or is_vmem:
                    req(p, 3)
            elif k in ('valu', 'trans'):
                if r[0] == 'v' and r != 'vcc' or r[0] == 'a':
                    if is_mfma:
                        req(p, 2)
                    if is_dpp or op.startswith('v_permlane'):
                        req(p, 2)
                    if op.startswith(('v_readlane', 'v_readfirstlane')):
                        req(p, 1)
                    if k == 'trans' and is_valu and op not in TRANS:
                        req(p, 1)
                else:
                    if is_vmem:
                        req(p, 5)
                    if is_valu:
                        req(p, 4 if op.startswith(('v_readlane', 'v_writelane')) else 2)
            elif k == 'salu_m0':
                req(p, 1)
        if 'exec' in self.wr and self.wr['exec'][1] == 'valu':
            p = self.wr['exec'][0]
            if is_mfma or op.startswith(('v_readlane', 'v_readfirstlane', 'v_writelane', 'v_permlane')):
                req(p, 4)
            if is_dpp:
                req(p, 5)
        for r in dst:
            if r in self.wr:
                p, k, pop = self.wr[r]
                if k == 'mfma' and not is_mfma:
                    req(p, 8)
                if k == 'mfma' and is_mfma and ops[0] != pop:
                    req(p, 8)
                if k == 'dot' and op != pop:
                    req(p, 3)
            if is_valu and r in self.crd:
                req(self.crd[r], 3)
            if r in self.st:
                req(self.st[r], 2 if is_valu else 1)
        self.nop(a, need)
        a.lines.append('    ' + l)
        here = self.pos
        if op == 's_nop':
            self.pos += int(ops[0]) + 1
        else:
            self.pos += 1
        for r in dst:
            if is_mfma:
                self.wr[r] = (here, 'mfma', ops[0])
            elif op.startswith('v_dot'):
                self.wr[r] = (here, 'dot', op)
            elif op in TRANS:
                self.wr[r] = (here, 'trans', op)
            elif is_valu:
                self.wr[r] = (here, 'valu', op)
            elif r == 'm0':
                self.wr[r] = (here, 'salu_m0', op)
            else:
                self.wr.pop(r, None)
        if is_mfma:
            for r in srcC:
                self.crd[r] = here
        for r in data:
            self.st[r] = here
        if op.startswith(('s_cbranch', 's_branch')):
            pass


class Asm:
    def __init__(self):
        self.lines = []
        self.vm = []
        self.lg = []
        self.hz = Hazards()
        self.nvm = 0

    def e(self, s):
        for l in s.strip('\n').split('\n'):
            l = l.strip()
            if not l:
                continue
            self.hz.emit(self, l)

    def label(self, s):
        self.hz.flush(self)
        self.lines.append(s + ':')

    def raw(self, s):
        self.lines.append(s)

    def vmem(self, s, tag=None):
        self.e(s)
        self.vm.append(tag)
        self.nvm += 1

    def lds(self, s, tag=None):
        self.e(s)
        self.lg.append(tag)

    def wait_vm(self, tag):
        idx = max(i for i, t in enumerate(self.vm) if t == tag)
        n = len(self.vm) - 1 - idx
        assert n <= 63
        self.e(f's_waitcnt vmcnt({n})')
        self.vm = self.vm[idx + 1:]

    def wait_lg(self, tag):
        idx = max(i for i, t in enumerate(self.lg) if t == tag)
        n = len(self.lg) - 1 - idx
        if n > 15:
            n = 15
            idx = len(self.lg) - 1 - 15
            self.e(f's_waitcnt lgkmcnt({n})')
            self.lg = self.lg[idx + 1:]
            return self.wait_lg(tag) if tag in self.lg else None
        self.e(f's_waitcnt lgkmcnt({n})')
        self.lg = self.lg[idx + 1:]

    def wait_all(self):
        self.e('s_waitcnt vmcnt(0) lgkmcnt(0)')
        self.vm = []
        self.lg = []

    def wait_vm0(self):
        self.e('s_waitcnt vmcnt(0)')
        self.vm = []

    def wait_lg0(self):
        self.e('s_waitcnt lgkmcnt(0)')
        self.lg = []

    def srd(self, d, base, nbytes):
        self.e(f's_mov_b32 s{d}, s{base}')
        self.e(f's_and_b32 s{d+1}, s{base+1}, 0xffff')
        self.e(f's_mov_b32 s{d+2}, {nbytes}')
        self.e(f's_mov_b32 s{d+3}, 0x00020000')

    def rnd2(self, lo, hi, a, b, tmp):
        self.e(f'v_cvt_pk_bf16_f32 v{tmp}, v{a}, v{b}')
        self.e(f'v_lshlrev_b32 v{lo}, 16, v{tmp}')
        self.e(f'v_and_b32 v{hi}, 0xffff0000, v{tmp}')

    def unpack(self, lo, hi, src):
        self.e(f'v_lshlrev_b32 v{lo}, 16, v{src}')
        self.e(f'v_and_b32 v{hi}, 0xffff0000, v{src}')

    def stamp(self, k):
        if STAMPS:
            self.e(f's_memrealtime s[{70+2*k}:{71+2*k}]')

    def stamp_out(self, kern, srd, n, tid='v0', wshift=8):
        if not STAMPS:
            return
        self.stamp(n)
        self.e('s_mov_b64 exec, -1')
        self.e('s_waitcnt lgkmcnt(0)')
        self.e(f'v_lshrrev_b32 v1, 6, {tid}')
        self.e(f'v_and_b32 v2, 63, {tid}')
        self.e('v_lshlrev_b32 v1, 6, v1')
        self.e('v_lshl_add_u32 v1, v2, 2, v1')
        self.e('v_mov_b32 v3, 0')
        for k in range(n + 1):
            self.e(f'v_writelane_b32 v3, s{70+2*k}, {k}')
        self.e(f's_lshl_b32 s68, s2, {wshift}')
        self.e(f's_add_u32 s68, s68, {WS_DBG + kern * MB}')
        self.e('v_cmp_gt_u32 vcc, 16, v2')
        self.e('s_and_saveexec_b64 s[66:67], vcc')
        self.e(f'buffer_store_dword v3, v1, s[{srd}:{srd+3}], s68 offen')

    def touch(self, wreg, tag, targets, link='s[68:69]'):
        if not PAGE:
            return
        self.e('s_waitcnt lgkmcnt(0)')
        self.lg = []
        self.e('s_mov_b64 exec, 0')
        for w, t in enumerate(targets):
            if t is None:
                continue
            self.e(f's_cmp_lg_u32 {wreg}, {w}')
            self.e(f's_cbranch_scc1 TCH{tag}{w}')
            self.e(f's_call_b64 {link}, {t}')
            self.label(f'TCH{tag}{w}')
        self.e('s_mov_b64 exec, -1')
        lo = int(link[2:].split(':')[0])
        self.e(f'v_readfirstlane_b32 s{lo}, v0')

    def begin_kernel(self, name, page=False):
        self.raw('.text')
        self.raw(f'.globl {name}')
        if page:
            self.raw('.p2align 12')
        self.raw('.p2align 8')
        self.raw(f'.type {name},@function')
        self.hz = Hazards()
        self.label(name)
        self.vm = []
        self.lg = []

    def end_kernel(self, name, vgpr, sgpr, accum):
        self.raw('.section .rodata,"a"')
        self.raw('.p2align 6')
        self.raw(f'.amdhsa_kernel {name}')
        self.raw(f'  .amdhsa_next_free_vgpr {vgpr}')
        self.raw(f'  .amdhsa_next_free_sgpr {102 if STAMPS else sgpr}')
        self.raw(f'  .amdhsa_accum_offset {accum}')
        self.raw('  .amdhsa_group_segment_fixed_size 0')
        self.raw('  .amdhsa_kernarg_size 120')
        self.raw('  .amdhsa_user_sgpr_count 2')
        self.raw('  .amdhsa_user_sgpr_kernarg_segment_ptr 1')
        self.raw('  .amdhsa_system_sgpr_workgroup_id_x 1')
        self.raw('  .amdhsa_float_denorm_mode_32 3')
        self.raw('.end_amdhsa_kernel')

    def text(self):
        return '\n'.join(self.lines) + '\n'


def row_reduce_add(a, regs):
    for mod in ('quad_perm:[1,0,3,2]', 'quad_perm:[2,3,0,1]', 'row_half_mirror', 'row_mirror'):
        for r in regs:
            a.e(f'v_add_f32_dpp v{r}, v{r}, v{r} {mod} row_mask:0xf bank_mask:0xf')
        if len(regs) < 3:
            a.e(f's_nop {2 - len(regs)}' if len(regs) < 2 else 's_nop 0')


def wave_total(a, regs, sbase):
    a.e('s_nop 0')
    for i, r in enumerate(regs):
        for k in range(4):
            a.e(f'v_readlane_b32 s{sbase + 4 * i + k}, v{r}, {16 * k}')
    a.e('s_nop 1')
    for i, r in enumerate(regs):
        a.e(f'v_mov_b32 v{r}, s{sbase + 4 * i}')
    for k in range(1, 4):
        for i, r in enumerate(regs):
            a.e(f'v_add_f32 v{r}, s{sbase + 4 * i + k}, v{r}')


K0_TILES = 256
K0_MODWG = 96
K0_WDWG = 64
K0_LDS = 28672
K0_TW = 16 if PAGE and not os.environ.get('NOTW') else 0


def gen_k0(a):
    name = 'k0_prep_kernel'
    a.begin_kernel(name, page=PAGE)
    a.e(f's_cmp_ge_u32 s2, {K0_TILES + K0_MODWG + K0_WDWG}')
    a.e('s_cbranch_scc1 K0_TWG')
    a.e(f's_cmp_ge_u32 s2, {K0_TILES + K0_MODWG}')
    a.e('s_cbranch_scc1 K0_WD')
    a.e(f's_cmp_ge_u32 s2, {K0_TILES}')
    a.e('s_cbranch_scc1 K0_MOD')
    a.stamp(0)
    a.e(f's_load_dwordx4 s[4:7], s[0:1], {KA_Q}')
    a.e(f's_load_dwordx4 s[8:11], s[0:1], {KA_V}')
    a.e(f's_load_dwordx2 s[12:13], s[0:1], {KA_WS}')
    a.e('s_lshr_b32 s14, s2, 3')
    a.e('s_and_b32 s15, s2, 7')
    a.e('v_and_b32 v1, 31, v0')
    a.e('v_lshrrev_b32 v2, 5, v0')
    a.e('s_lshl_b32 s16, s14, 6')
    a.e('v_lshlrev_b32 v3, 3, v2')
    a.e('v_add_u32 v3, s16, v3')
    a.e('s_lshl_b32 s17, s15, 7')
    a.e('v_lshlrev_b32 v4, 2, v1')
    a.e('v_add_u32 v4, s17, v4')
    a.e('v_lshl_add_u32 v5, v3, 10, v4')
    a.e('v_subrev_u32 v6, 3072, v5')
    a.e('v_subrev_u32 v7, 2048, v5')
    a.e('v_subrev_u32 v8, 1024, v5')
    a.e('v_add_u32 v9, 4096, v5')
    a.e('v_lshlrev_b32 v44, 2, v4')
    a.e('v_lshrrev_b32 v45, 6, v0')
    a.e('v_and_b32 v46, 63, v0')
    a.e('s_lshl_b32 s18, s2, 3')
    a.e('v_lshlrev_b32 v47, 1, v45')
    a.e('v_add_u32 v47, s18, v47')
    a.e('v_lshlrev_b32 v48, 4, v46')
    a.e('v_lshl_add_u32 v48, v47, 10, v48')
    a.e('s_waitcnt lgkmcnt(0)')
    a.srd(20, 4, 2097152)
    a.srd(24, 6, 2097152)
    a.srd(28, 8, 2097152)
    a.srd(32, 10, 4096)
    a.srd(36, 12, WS_SIZE)
    a.vmem('buffer_load_dwordx4 v[40:43], v44, s[32:35], 0 offen', 'sh')
    for i, r in enumerate((6, 7, 8)):
        a.vmem(f'buffer_load_dword v{10 + i}, v{r}, s[24:27], 0 offen', 'k')
    for i in range(8):
        a.vmem(f'buffer_load_dword v{13 + i}, v{5 if i < 4 else 9}, s[24:27], 0 offen offset:{1024 * (i & 3)}', 'k')
    for i in range(8):
        a.vmem(f'buffer_load_dword v{21 + i}, v{5 if i < 4 else 9}, s[28:31], 0 offen offset:{1024 * (i & 3)}', 'v')
    for i in range(8):
        a.vmem(f'buffer_load_dword v{29 + i}, v{5 if i < 4 else 9}, s[20:23], 0 offen offset:{1024 * (i & 3)}', 'q')
    a.vmem('buffer_load_dwordx4 v[52:55], v48, s[20:23], 0 offen', 'st')
    a.vmem('buffer_load_dwordx4 v[56:59], v48, s[20:23], 0 offen offset:1024', 'st')
    a.e('v_lshlrev_b32 v49, 11, v4')
    a.e('v_lshlrev_b32 v50, 1, v3')
    a.e('v_add_u32 v51, v49, v50')
    a.e(f'v_add_u32 v51, {WS_QT}, v51')
    a.e('v_sub_u32 v50, 4080, v50')
    a.e('v_add_u32 v49, v49, v50')
    if PAGE:
        a.e('v_readfirstlane_b32 s19, v45')
    a.touch('s19', 't', [f'@N{w}' for w in range(4)])
    a.wait_vm('sh')
    W0, W1 = 60, 64
    a.unpack(W0 + 0, W0 + 1, 40)
    a.unpack(W0 + 2, W0 + 3, 41)
    a.unpack(W1 + 0, W1 + 1, 42)
    a.unpack(W1 + 2, W1 + 3, 43)
    a.wait_vm('k')
    a.stamp(1)
    KL, KH = 70, 82
    for i in range(11):
        a.unpack(KL + i, KH + i, 10 + i)
    a.wait_vm('v')
    R = 100
    for i in range(8):
        A0, A1, P0, P1, T = 94, 95, 96, 97, 98
        a.e(f'v_mul_f32 v{P0}, v{KL + i}, v{W0 + 3}')
        a.e(f'v_mul_f32 v{P1}, v{KH + i}, v{W1 + 3}')
        a.rnd2(A0, A1, P0, P1, T)
        for t in range(1, 4):
            a.e(f'v_mul_f32 v{P0}, v{KL + i + t}, v{W0 + 3 - t}')
            a.e(f'v_mul_f32 v{P1}, v{KH + i + t}, v{W1 + 3 - t}')
            a.rnd2(P0, P1, P0, P1, T)
            a.e(f'v_add_f32 v{A0}, v{A0}, v{P0}')
            a.e(f'v_add_f32 v{A1}, v{A1}, v{P1}')
            a.rnd2(A0, A1, A0, A1, T)
        a.unpack(P0, P1, 21 + i)
        a.e(f'v_mul_f32 v{P0}, v{A0}, v{P0}')
        a.e(f'v_mul_f32 v{P1}, v{A1}, v{P1}')
        a.e(f'v_cvt_pk_bf16_f32 v{R + i}, v{P0}, v{P1}')
    a.e('s_mov_b32 s40, 0x05040100')
    a.e('s_mov_b32 s41, 0x07060302')
    O = 108
    for j in range(4):
        a.e(f'v_perm_b32 v{O + j}, v{R + 6 - 2 * j}, v{R + 7 - 2 * j}, s40')
        a.e(f'v_perm_b32 v{O + 4 + j}, v{R + 6 - 2 * j}, v{R + 7 - 2 * j}, s41')
    a.vmem(f'buffer_store_dwordx4 v[{O}:{O + 3}], v49, s[36:39], 0 offen', 'o')
    a.e('v_add_u32 v50, 4096, v49')
    a.vmem(f'buffer_store_dwordx4 v[{O + 4}:{O + 7}], v50, s[36:39], 0 offen', 'o')
    a.wait_vm('q')
    O2 = 116
    for j in range(4):
        a.e(f'v_perm_b32 v{O2 + j}, v{29 + 2 * j + 1}, v{29 + 2 * j}, s40')
        a.e(f'v_perm_b32 v{O2 + 4 + j}, v{29 + 2 * j + 1}, v{29 + 2 * j}, s41')
    a.vmem(f'buffer_store_dwordx4 v[{O2}:{O2 + 3}], v51, s[36:39], 0 offen', 'o')
    a.e('v_add_u32 v50, 4096, v51')
    a.vmem(f'buffer_store_dwordx4 v[{O2 + 4}:{O2 + 7}], v50, s[36:39], 0 offen', 'o')
    a.wait_vm('st')
    X = 70
    for r in range(2):
        for j in range(4):
            a.unpack(X + 8 * r + 2 * j, X + 8 * r + 2 * j + 1, 52 + 4 * r + j)
    S0, S1 = 90, 91
    for r, S in ((0, S0), (1, S1)):
        a.e(f'v_add_f32 v{S}, v{X + 8 * r}, v{X + 8 * r + 1}')
        for j in range(2, 8):
            a.e(f'v_add_f32 v{S}, v{S}, v{X + 8 * r + j}')
    a.e('s_nop 1')
    row_reduce_add(a, [S0, S1])
    wave_total(a, [S0, S1], 44)
    a.e(f'v_mul_f32 v{S0}, 0x3b000000, v{S0}')
    a.e(f'v_mul_f32 v{S1}, 0x3b000000, v{S1}')
    Q0, Q1 = 92, 93
    for r, S, Q in ((0, S0, Q0), (1, S1, Q1)):
        for j in range(8):
            a.e(f'v_sub_f32 v{X + 8 * r + j}, v{X + 8 * r + j}, v{S}')
        a.e(f'v_mul_f32 v{Q}, v{X + 8 * r}, v{X + 8 * r}')
        for j in range(1, 8):
            a.e(f'v_fmac_f32 v{Q}, v{X + 8 * r + j}, v{X + 8 * r + j}')
    a.e('s_nop 1')
    row_reduce_add(a, [Q0, Q1])
    wave_total(a, [Q0, Q1], 44)
    a.e(f'v_mul_f32 v{Q0}, 0x3b000000, v{Q0}')
    a.e(f'v_mul_f32 v{Q1}, 0x3b000000, v{Q1}')
    a.rnd2(Q0, Q1, Q0, Q1, 94)
    a.e(f'v_add_f32 v{Q0}, 0x3727c5ac, v{Q0}')
    a.e(f'v_add_f32 v{Q1}, 0x3727c5ac, v{Q1}')
    a.rnd2(Q0, Q1, Q0, Q1, 94)
    a.e(f'v_sqrt_f32 v{Q0}, v{Q0}')
    a.e(f'v_sqrt_f32 v{Q1}, v{Q1}')
    a.rnd2(Q0, Q1, Q0, Q1, 94)
    a.rnd2(S0, S1, S0, S1, 94)
    a.e(f'v_rcp_f32 v94, v{Q0}')
    a.e(f'v_rcp_f32 v95, v{Q1}')
    a.e(f'v_xor_b32 v{S0}, 0x80000000, v{S0}')
    a.e(f'v_xor_b32 v{S1}, 0x80000000, v{S1}')
    a.e(f'v_fma_f32 v{Q0}, -v{Q0}, v94, 1.0')
    a.e(f'v_fma_f32 v{Q1}, -v{Q1}, v95, 1.0')
    a.e(f'v_fmac_f32 v94, v{Q0}, v94')
    a.e(f'v_fmac_f32 v95, v{Q1}, v95')
    a.e('v_lshlrev_b32 v96, 2, v47')
    a.e(f'v_add_u32 v96, {WS_NM}, v96')
    a.e(f'v_add_u32 v97, {WS_RS - WS_NM}, v96')
    a.e('v_cmp_eq_u32 vcc, 0, v46')
    a.e('s_and_saveexec_b64 s[42:43], vcc')
    a.vmem(f'buffer_store_dwordx2 v[{S0}:{S1}], v96, s[36:39], 0 offen', 'o')
    a.vmem('buffer_store_dwordx2 v[94:95], v97, s[36:39], 0 offen', 'o')
    a.stamp(2)
    if STAMPS:
        a.e('s_waitcnt vmcnt(0)')
    a.stamp_out(0, 36, 3)
    a.e('s_endpgm')
    a.label('K0_MOD')
    a.vm = []
    a.e(f's_load_dwordx4 s[4:7], s[0:1], {KA_C}')
    a.e(f's_load_dwordx2 s[12:13], s[0:1], {KA_WS}')
    a.e(f's_sub_u32 s14, s2, {K0_TILES}')
    a.e('s_and_b32 s15, s14, 7')
    a.e('s_lshr_b32 s16, s14, 3')
    a.e('s_mul_i32 s15, s15, 12')
    a.e('s_add_u32 s15, s15, s16')
    a.e('s_lshl_b32 s17, s15, 6')
    a.e('v_and_b32 v1, 63, v0')
    a.e('v_lshrrev_b32 v2, 6, v0')
    a.e('v_lshrrev_b32 v3, 2, v1')
    a.e('v_and_b32 v4, 3, v1')
    a.e('v_lshl_add_u32 v5, v2, 7, v3')
    a.e('s_movk_i32 s18, 6144')
    a.e('v_mul_lo_u32 v6, v5, s18')
    a.e('v_lshl_add_u32 v6, v4, 4, v6')
    a.e('v_add_u32 v6, s17, v6')
    a.e('v_lshlrev_b32 v7, 1, v5')
    a.e('s_waitcnt lgkmcnt(0)')
    a.srd(20, 4, 1024)
    a.srd(24, 6, 3145728)
    a.srd(36, 12, WS_SIZE)
    for i in range(8):
        a.vmem(f'buffer_load_ushort v{10 + i}, v7, s[20:23], 0 offen offset:{32 * i}', 'c')
    for i in range(8):
        a.e(f's_mov_b32 s{44 + i}, {98304 * i}')
    for i in range(8):
        a.vmem(f'buffer_load_dwordx4 v[{20 + 4 * i}:{23 + 4 * i}], v6, s[24:27], s{44 + i} offen', f'w{i}')
    if PAGE:
        a.e('v_readfirstlane_b32 s19, v2')
    a.touch('s19', 'm', [f'@N{w}' for w in range(2)])
    a.wait_vm('c')
    for i in range(8):
        a.e(f'v_lshlrev_b32 v{10 + i}, 16, v{10 + i}')
        a.e(f'v_mul_f32 v{60 + i}, 0xbfb8aa3b, v{10 + i}')
    for i in range(8):
        a.e(f'v_exp_f32 v{60 + i}, v{60 + i}')
    a.e('s_nop 0')
    for i in range(8):
        a.e(f'v_add_f32 v{60 + i}, 1.0, v{60 + i}')
    for i in range(8):
        a.e(f'v_rcp_f32 v{60 + i}, v{60 + i}')
    a.e('s_nop 0')
    for i in range(8):
        a.e(f'v_mul_f32 v{60 + i}, v{10 + i}, v{60 + i}')
    for i in range(0, 8, 2):
        a.rnd2(60 + i, 61 + i, 60 + i, 61 + i, 68)
    ACC = 72
    for i in range(8):
        a.wait_vm(f'w{i}')
        for j in range(4):
            a.unpack(80, 81, 20 + 4 * i + j)
            if i == 0:
                a.e(f'v_mul_f32 v{ACC + 2 * j}, v80, v60')
                a.e(f'v_mul_f32 v{ACC + 2 * j + 1}, v81, v60')
            else:
                a.e(f'v_fmac_f32 v{ACC + 2 * j}, v80, v{60 + i}')
                a.e(f'v_fmac_f32 v{ACC + 2 * j + 1}, v81, v{60 + i}')
    a.e('s_nop 1')
    for mod in ('row_ror:4', 'row_ror:8'):
        for j in range(8):
            a.e(f'v_add_f32_dpp v{ACC + j}, v{ACC + j}, v{ACC + j} {mod} row_mask:0xf bank_mask:0xf')
    a.e('v_lshrrev_b32 v8, 4, v1')
    a.e('v_lshl_add_u32 v8, v2, 2, v8')
    a.e('v_lshl_add_u32 v8, v8, 2, v4')
    a.e('v_lshlrev_b32 v8, 5, v8')
    a.e('v_and_b32 v9, 12, v1')
    a.e('v_cmp_eq_u32 vcc, 0, v9')
    a.e('s_and_saveexec_b64 s[42:43], vcc')
    a.e(f'ds_write_b128 v8, v[{ACC}:{ACC + 3}]')
    a.e(f'ds_write_b128 v8, v[{ACC + 4}:{ACC + 7}] offset:16')
    a.e('s_mov_b64 exec, s[42:43]')
    a.e('s_waitcnt lgkmcnt(0)')
    a.e('s_barrier')
    a.e('v_cmp_gt_u32 vcc, 32, v0')
    a.e('s_and_saveexec_b64 s[42:43], vcc')
    a.e('s_cbranch_execz K0_END')
    a.e('v_lshlrev_b32 v8, 2, v0')
    for i in range(16):
        a.e(f'ds_read_b32 v{20 + i}, v8 offset:{128 * i}')
    a.e('s_waitcnt lgkmcnt(0)')
    for i in range(1, 16):
        a.e(f'v_add_f32 v20, v20, v{20 + i}')
    a.rnd2(20, 21, 20, 20, 22)
    a.e('s_lshl_b32 s17, s15, 7')
    a.e(f's_add_u32 s17, s17, {WS_MOD}')
    a.e('buffer_store_dword v20, v8, s[36:39], s17 offen')
    a.e('s_endpgm')
    a.label('K0_WD')
    a.vm, a.lg = [], []
    a.e(f's_load_dwordx2 s[4:5], s[0:1], {KA_WD}')
    a.e(f's_load_dwordx2 s[8:9], s[0:1], {KA_WS}')
    a.e(f's_sub_u32 s10, s2, {K0_TILES + K0_MODWG}')
    a.e('s_lshr_b32 s11, s10, 2')
    a.e('s_and_b32 s12, s10, 3')
    a.e('v_lshrrev_b32 v2, 6, v0')
    a.e('v_and_b32 v1, 63, v0')
    a.e('v_readfirstlane_b32 s13, v2')
    a.e('v_lshrrev_b32 v3, 4, v1')
    a.e('v_and_b32 v4, 15, v1')
    a.e('v_lshlrev_b32 v5, 4, v4')
    a.e('v_lshl_add_u32 v5, v3, 10, v5')
    a.e('v_lshlrev_b32 v18, 4, v1')
    a.e('s_mul_i32 s14, s11, 114688')
    a.e('s_lshl_b32 s15, s12, 8')
    a.e('s_add_u32 s14, s14, s15')
    a.e('s_mul_i32 s15, s13, 28672')
    a.e('s_add_u32 s14, s14, s15')
    a.e('s_mul_i32 s16, s13, 7168')
    a.e('s_waitcnt lgkmcnt(0)')
    a.srd(20, 4, 1792 * 512 * 2)
    a.srd(24, 8, WS_SIZE)
    for i in range(7):
        a.e(f's_add_u32 m0, s16, {1024 * i}')
        a.e(f's_add_u32 s17, s14, {4096 * i}')
        a.vmem('buffer_load_dwordx4 v5, s[20:23], s17 offen lds', 'w')
    a.e('s_cmp_lg_u32 s10, 0')
    a.e('s_cbranch_scc1 K0_WD1')
    a.e('v_lshlrev_b32 v6, 4, v0')
    for i in range(4):
        a.e(f'v_mov_b32 v{20+i}, 0')
    a.e(f's_mov_b32 s17, {WS_CNT}')
    for i in range(3):
        a.e(f's_mov_b32 s17, {WS_CNT + 4096 * i}')
        a.e('buffer_store_dwordx4 v[20:23], v6, s[24:27], s17 offen')
    a.label('K0_WD1')
    a.e('v_bfe_u32 v6, v1, 2, 2')
    a.e('v_and_b32 v7, 3, v1')
    a.e('v_lshl_add_u32 v6, v3, 2, v6')
    a.e('v_lshlrev_b32 v6, 8, v6')
    a.e('v_lshl_add_u32 v6, v7, 4, v6')
    a.e('s_lshr_b32 s15, s13, 1')
    a.e('s_and_b32 s16, s13, 1')
    a.e('s_lshl_b32 s17, s15, 6')
    a.e('s_lshl_b32 s18, s16, 3')
    a.e('s_add_u32 s17, s17, s18')
    a.e('v_add_u32 v8, s17, v6')
    a.e('s_lshl_b32 s17, s15, 7')
    a.e('s_lshl_b32 s18, s16, 6')
    a.e('s_add_u32 s17, s17, s18')
    a.e('v_add_u32 v9, s17, v6')
    a.e('s_lshl_b32 s17, s12, 5')
    a.e('s_add_u32 s17, s17, s11')
    a.e('s_mul_i32 s17, s17, 14336')
    a.e(f's_add_u32 s17, s17, {WS_WDF}')
    a.e('s_lshl_b32 s18, s13, 10')
    a.e('s_add_u32 s18, s18, s17')
    a.e('s_mul_i32 s19, s15, 229376')
    a.e('s_add_u32 s19, s19, s17')
    a.e('s_lshl_b32 s28, s16, 10')
    a.e('s_add_u32 s19, s19, s28')
    a.e('s_add_u32 s19, s19, 12288')
    a.touch('s13', 'w', ['@N0'])
    a.wait_vm0()
    a.e('s_barrier')
    n = 0
    for dbl in range(2):
        for kb in range(3):
            for half in range(2):
                a.lds(f'ds_read_b64_tr_b16 v[{32+4*n+2*half}:{33+4*n+2*half}], v8 offset:{(32*kb+16*half)*256 + 128*dbl}', f't{n}')
            n += 1
    for half in range(2):
        a.lds(f'ds_read_b64_tr_b16 v[{32+4*n+2*half}:{33+4*n+2*half}], v9 offset:{96*256 + 8*half}', f't{n}')
    n = 0
    for dbl in range(2):
        for kb in range(3):
            a.e(f's_add_u32 s28, s18, {dbl * 229376 + kb * 4096}')
            a.wait_lg(f't{n}')
            a.vmem(f'buffer_store_dwordx4 v[{32+4*n}:{35+4*n}], v18, s[24:27], s28 offen', 'o')
            n += 1
    a.wait_lg(f't{n}')
    a.vmem(f'buffer_store_dwordx4 v[{32+4*n}:{35+4*n}], v18, s[24:27], s19 offen', 'o')
    a.label('K0_END')
    a.e('s_endpgm')
    a.label('K0_TWG')
    if K0_TW:
        a.e(f's_cmp_ge_u32 s2, {K0_TILES + K0_MODWG + K0_WDWG + K0_TW}')
        a.e('s_cbranch_scc1 K0_END')
        a.e('v_lshrrev_b32 v2, 6, v0')
        a.e('v_readfirstlane_b32 s13, v2')
        a.e('s_lshr_b32 s10, s2, 1')
        a.e('s_and_b32 s10, s10, 4')
        a.e('s_add_u32 s13, s13, s10')
        a.touch('s13', 'k', [f'KMPG{w}' for w in range(8)])
    a.e('s_endpgm')
    a.end_kernel(name, 128, 72, 128)
    return f'; @launch kernel={name} grid=({K0_TILES + K0_MODWG + K0_WDWG + K0_TW},1,1) block=(256,1,1) lds={K0_LDS}'


HEADER = open('cdna_kernels/' + NAME + '.s.ref').read().split('; Override launch')[0]


def _sizes(text):
    import subprocess, tempfile
    body = '.amdgcn_target "amdgcn-amd-amdhsa--gfx950"\n' + text
    open('_sz.s', 'w').write(body)
    r = subprocess.run(['llvm-mc', '-triple=amdgcn-amd-amdhsa', '-mcpu=gfx950', '-show-encoding', '_sz.s'],
                       capture_output=True, text=True)
    assert r.returncode == 0, r.stderr[:2000]
    return [l.split('encoding: [')[1].count(',') + 1 for l in r.stdout.split('\n') if 'encoding: [' in l]


PROMO = ('v_mov_b32', 'v_add_f32', 'v_mul_f32', 'v_sub_f32', 'v_lshlrev_b32', 'v_lshrrev_b32', 'v_and_b32', 'v_add_u32',
         'v_sub_u32', 'v_subrev_u32', 'v_xor_b32', 'v_or_b32', 'v_max_f32', 'v_fmac_f32', 'v_exp_f32', 'v_rcp_f32', 'v_sqrt_f32',
         'v_cmp_eq_u32', 'v_cmp_gt_u32', 'v_cndmask_b32')


def layout(lines, kernels, link, align=True):
    names = set()
    for l in lines:
        m = re.search(r'(@N\d+|[A-Z0-9]+PG\d+)\b', l)
        if m and l.startswith('    '):
            names.add(m.group(1))
    tmp = [re.sub(r'@N(\d+)', r'XXN\1', l) for l in lines] + ['.text'] + [n.replace('@N', 'XXN') + ':' for n in names]
    sz = _sizes('\n'.join(tmp) + '\n')
    ins = [i for i, l in enumerate(lines) if l.startswith('    ')]
    assert len(ins) == len(sz)
    size = dict(zip(ins, sz))
    out = []
    cur, off, nstub, unsafe = None, 0, 0, False
    run = []
    nst = {}

    def close():
        pre, stride = kernels[cur]
        nst[cur] = nstub
        out.append(['.text', 0])
        for k in range(nstub, 64):
            out.append([f'{pre}PG{k}:', 0])
        out.append([f'{pre}RET:', 0])
        out.append([f'    s_setpc_b64 {link}', 4])
    for i, l in enumerate(lines):
        if l[:-1] in kernels and l.endswith(':'):
            cur, off, nstub, unsafe, run = l[:-1], 0, 0, False, []
            out.append([l, 0])
            continue
        if l.startswith('.section') and cur:
            close()
            cur = None
        if not l.startswith('    ') or cur is None:
            out.append([l, 0])
            continue
        pre, stride = kernels[cur]
        op = l.split()[0]
        s_ = size[i]
        if off >= 1024 * nstub + (8 if nstub == 0 else 0) and not unsafe:
            nxt = f'{pre}PG{nstub + stride}' if stride else f'{pre}RET'
            out.append([f'{pre}PG{nstub}:', 0])
            out.append([f'    s_cbranch_execz {nxt}', 4])
            run.append((len(out) - 1, off, False))
            off += 4
            nstub += 1
        if s_ == 8 and off % 8 == 4 and align:
            cand = [r for r in run if r[2] and r[1] % 8 == 0]
            if cand:
                j = cand[-1][0]
                t = out[j][0]
                o = t.split()[0]
                out[j][0] = t.replace(o, o + '_e64', 1)
                off += 4
            else:
                n, k = 0, i
                while k < len(lines) and (not lines[k].startswith('    ') or size[k] == 8):
                    n += lines[k].startswith('    v_')
                    if 'v_mfma' in lines[k]:
                        n = -100
                    k += 1
                if n >= 4:
                    out.append(['    s_nop 0', 4])
                    off += 4
        l2 = re.sub(r'@N(\d+)', lambda m: f'{pre}PG{off // 1024 + 1 + int(m.group(1))}', l)
        out.append([l2, s_])
        if s_ == 4:
            promo = op in PROMO and 'dpp' not in l and 'sdwa' not in l
            run.append((len(out) - 1, off, promo))
        else:
            run = []
        off += s_
        wex = op.startswith('s_') and len(l.split()) > 1 and l.split()[1].startswith('exec')
        if 'saveexec' in op or (wex and not re.search(r'exec, (-1|0x[0-9a-f]+|[1-9][0-9]*|s\[(36:37|42:43|46:47|64:65)\])$', l.strip())):
            unsafe = True
        elif wex:
            unsafe = False
        if op == 's_endpgm':
            unsafe = False
    return [o[0] for o in out], nst


def build(kernels, stubs=None):
    a = Asm()
    launches = [k(a) for k in kernels]
    if stubs:
        a.lines, nst = layout(a.lines, *stubs)
        print('stubs', nst)
    return HEADER + '\n'.join(launches) + '\n.amdgcn_target "amdgcn-amd-amdhsa--gfx950"\n' + a.text()


if __name__ == '__main__':
    ks = [gen_k0]
    out = sys.argv[1] if len(sys.argv) > 1 else 'cur.s'
    open(out, 'w').write(build(ks))
```

```python
from gen import *
from k1 import KC_STRIDE, KC_OFFS, KC_NIB, R_OFF, K1_CH, interleave
import os

KM_WG = 256
SLOT = 24576
NSLOT = 6
B_OFF = 14336
UTL = NSLOT * SLOT
X1L = UTL + 2048
LCNT = X1L + 8192
KM_LDS = LCNT + 256
PART = 2 * K1_CH
STG = PART + 32768
HX = STG
SPIN = 400000
NSTUB = 8
NV = 176
BARS = [0, 1, 2, 3, 4, 6, 8, 10, 12, 14, 15]
ISSUE = {0: [4, 5], 1: [6], 2: [7], 3: [8], 4: [9, 10], 6: [11, 12], 8: [13, 14], 10: [15]}
XBCHK = 3
WDR = {6: 4, 8: 4, 10: 8, 12: 4}
PSLEEP = int(os.environ.get('PSLEEP', '1'))
WS_UTP = WS_X1R
HMC, HMG, XAC, XAR, XBC, XBR = [WS_CNT + 128 * i for i in (0, 16, 32, 40, 56, 64)]


def quad(r):
    k, n = r[0], int(r[1:])
    return f'{k}[{n}:{n+3}]'


STN = os.environ.get('STN', 'start,B1,cA,B3,B4,B5,B0,k8,lend,join,drain,hoff,down,end').split(',')


def gen_km(a):
    def stamp(n):
        if n in STN:
            a.stamp(STN.index(n))
        if STAMPS and n + 'c' in STN:
            k = STN.index(n + 'c')
            a.e(f's_memtime s[{70+2*k}:{71+2*k}]')
    name = 'k1_main_kernel'
    a.begin_kernel(name, page=PAGE)

    a.e(f's_cmp_ge_u32 s2, {KM_WG}')
    a.e('s_cbranch_scc1 KM_END')
    stamp('start')
    a.e(f's_load_dwordx2 s[8:9], s[0:1], {KA_WS}')
    a.e(f's_load_dwordx4 s[40:43], s[0:1], {KA_SSMK}')
    a.e(f's_load_dwordx4 s[44:47], s[0:1], {KA_WG}')
    a.e(f's_load_dwordx2 s[4:5], s[0:1], {KA_OUT}')
    a.e('v_lshrrev_b32 v15, 6, v0')
    a.e('v_and_b32 v1, 63, v0')
    a.e('v_readfirstlane_b32 s10, v15')
    a.e('s_and_b32 s11, s2, 7')
    a.e('s_lshr_b32 s12, s2, 3')
    a.e('s_lshr_b32 s13, s11, 1')
    a.e('s_lshl_b32 s13, s13, 2')
    a.e('s_and_b32 s14, s12, 3')
    a.e('s_add_u32 s13, s13, s14')
    a.e('s_and_b32 s14, s11, 1')
    a.e('s_lshl_b32 s14, s14, 3')
    a.e('s_lshr_b32 s15, s12, 2')
    a.e('s_add_u32 s14, s14, s15')
    if os.environ.get('BADMAP'):
        a.e('s_and_b32 s13, s12, 15')
        a.e('s_lshr_b32 s14, s2, 7')
        a.e('s_add_u32 s14, s14, s13')
        a.e('s_lshl_b32 s15, s11, 1')
        a.e('s_add_u32 s14, s14, s15')
        a.e('s_and_b32 s14, s14, 15')
    a.e('s_and_b32 s15, s10, 3')
    a.e('v_lshlrev_b32 v6, 4, v1')
    a.e('v_and_b32 v7, 15, v1')
    a.e('v_lshrrev_b32 v8, 4, v1')
    a.e('s_lshl_b32 s16, s2, 12')
    a.e('s_lshl_b32 s17, s15, 10')
    a.e('s_add_u32 s18, s16, s17')
    a.e('s_cmp_ge_u32 s10, 4')
    a.e('s_cbranch_scc1 KM_AUX')

    NM, RS, QS, KV, QF, KVD = 64, 72, [80, 84], 88, 96, 104
    cGL, cGH, cAL, cAH, cDL, cDH, cSA = 20, 21, 22, 23, 24, 25, 26
    T = [112, 116, 120, 124]
    items = [(n, k) for n in range(2) for k in range(2)]

    def pre(c):
        Q = QS[c]
        for n in range(2):
            a.lds(f'ds_read_b64 v[{KV+2*n}:{KV+2*n+1}], v5 offset:{512 * (1 - n) + K1_CH * c}', 'kv')
        sa, ca, ga, dd = [56 + 4 * c + k for k in range(4)]
        a.e(f'v_mov_b32 v{cSA}, s{sa}')
        a.e(f'v_mov_b32 v19, s{ca}')
        a.e('v_add_f32 v19, 1.0, v19')
        a.e(f'v_cvt_pk_bf16_f32 v{cGL}, v19, 0')
        a.e(f'v_lshlrev_b32 v{cGH}, 16, v{cGL}')
        a.e(f'v_mov_b32 v{cAH}, s{ga}')
        a.e(f'v_lshrrev_b32 v{cAL}, 16, v{cAH}')
        a.e(f's_lshr_b32 s36, s{dd}, 16')
        a.e(f's_and_b32 s39, s{dd}, 0xffff')
        a.e('s_bitcmp1_b32 s2, 0')
        a.e('s_cselect_b32 s36, s36, s39')
        a.e(f'v_mov_b32 v{cDL}, s36')
        a.e(f'v_lshlrev_b32 v{cDH}, 16, v{cDL}')
        if 'ep' in a.vm:
            a.wait_vm('ep')

        def each(fn):
            for s, (n, k) in enumerate(items):
                fn(T[s], n, k)
        each(lambda t, n, k: a.e(f'v_dot2_f32_bf16 v{t}, v{Q+2*n+k}, s34, v{NM+4*n+2*k}'))
        each(lambda t, n, k: a.e(f'v_dot2_f32_bf16 v{t+1}, v{Q+2*n+k}, s35, v{NM+4*n+2*k+1}'))
        each(lambda t, n, k: a.e(f'v_lshlrev_b32 v{QF+4*n+2*k}, 16, v{Q+2*n+k}'))
        each(lambda t, n, k: a.e(f'v_and_b32 v{QF+4*n+2*k+1}, 0xffff0000, v{Q+2*n+k}'))
        each(lambda t, n, k: a.e(f'v_cvt_pk_bf16_f32 v{t+2}, v{t}, v{t+1}'))
        each(lambda t, n, k: a.e(f'v_lshlrev_b32 v{t}, 16, v{t+2}'))
        each(lambda t, n, k: a.e(f'v_and_b32 v{t+1}, 0xffff0000, v{t+2}'))
        each(lambda t, n, k: a.e(f'v_mul_f32 v{t}, v{t}, v{RS+4*n+2*k}'))
        each(lambda t, n, k: a.e(f'v_mul_f32 v{t+1}, v{t+1}, v{RS+4*n+2*k+1}'))
        each(lambda t, n, k: a.e(f'v_cvt_pk_bf16_f32 v{t+2}, v{t}, v{t+1}'))
        each(lambda t, n, k: a.e(f'v_dot2_f32_bf16 v{t}, v{t+2}, v{cGL}, 0'))
        each(lambda t, n, k: a.e(f'v_dot2_f32_bf16 v{t+1}, v{t+2}, v{cGH}, 0'))
        a.wait_lg('kv')
        each(lambda t, n, k: a.e(f'v_dot2_f32_bf16 v{KVD+4*n+2*k}, v{KV+2*n+1-k}, v{cDH}, 0'))
        each(lambda t, n, k: a.e(f'v_cvt_pk_bf16_f32 v{t+2}, v{t}, v{t+1}'))
        each(lambda t, n, k: a.e(f'v_dot2_f32_bf16 v{t}, v{t+2}, s34, v{cSA}'))
        each(lambda t, n, k: a.e(f'v_dot2_f32_bf16 v{t+1}, v{t+2}, s35, v{cSA}'))
        each(lambda t, n, k: a.e(f'v_dot2_f32_bf16 v{KVD+4*n+2*k+1}, v{KV+2*n+1-k}, v{cDL}, 0'))
        each(lambda t, n, k: a.e(f'v_cvt_pk_bf16_f32 v{Q+2*n+k}, v{t}, v{t+1}'))

    RD, TP, XO = 128, 160, 112

    def post(c):
        H = QS[c]
        for q in range(4):
            for n in range(2):
                a.lds(f'ds_read_b128 v[{RD+16*n+4*q}:{RD+16*n+4*q+3}], v4 offset:{4096 * n + 1024 * q}', f'p{q}')
        a.wait_lg('p1')
        for n in range(2):
            for k in range(4):
                a.e(f'v_add_f32 v{RD+16*n+k}, v{RD+16*n+k}, v{RD+16*n+4+k}')
        a.wait_lg('p3')
        for n in range(2):
            for k in range(4):
                a.e(f'v_add_f32 v{RD+16*n+8+k}, v{RD+16*n+8+k}, v{RD+16*n+12+k}')
        for n in range(2):
            for k in range(4):
                a.e(f'v_add_f32 v{RD+16*n+k}, v{RD+16*n+k}, v{RD+16*n+8+k}')

        def allp(fn):
            for s, (n, k) in enumerate(items):
                fn(TP + 4 * s, n, k, RD + 16 * n + 2 * k)
        allp(lambda t, n, k, y: a.e(f'v_cvt_pk_bf16_f32 v{t}, v{y}, v{KVD+4*n+2*k}'))
        allp(lambda t, n, k, y: a.e(f'v_cvt_pk_bf16_f32 v{t+1}, v{y+1}, v{KVD+4*n+2*k+1}'))
        allp(lambda t, n, k, y: a.e(f'v_dot2_f32_bf16 v{t+2}, v{t}, s33, 0'))
        allp(lambda t, n, k, y: a.e(f'v_dot2_f32_bf16 v{t+3}, v{t+1}, s33, 0'))
        allp(lambda t, n, k, y: a.e(f'v_cvt_pk_bf16_f32 v{t}, v{t+2}, 0'))
        allp(lambda t, n, k, y: a.e(f'v_cvt_pk_bf16_f32 v{t+1}, 0, v{t+3}'))
        allp(lambda t, n, k, y: a.e(f'v_dot2_f32_bf16 v{t+2}, v{H+2*n+k}, v{t}, 0'))
        allp(lambda t, n, k, y: a.e(f'v_dot2_f32_bf16 v{t+3}, v{H+2*n+k}, v{t+1}, 0'))
        allp(lambda t, n, k, y: a.e(f'v_cvt_pk_bf16_f32 v{t}, v{t+2}, v{t+3}'))
        allp(lambda t, n, k, y: a.e(f'v_dot2_f32_bf16 v{t+2}, v{t}, v{cAL}, 0'))
        allp(lambda t, n, k, y: a.e(f'v_dot2_f32_bf16 v{t+3}, v{t}, v{cAH}, 0'))
        allp(lambda t, n, k, y: a.e(f'v_cvt_pk_bf16_f32 v{t}, v{t+2}, v{t+3}'))
        allp(lambda t, n, k, y: a.e(f'v_dot2_f32_bf16 v{t+2}, v{t}, s34, v{QF+4*n+2*k}'))
        allp(lambda t, n, k, y: a.e(f'v_dot2_f32_bf16 v{t+3}, v{t}, s35, v{QF+4*n+2*k+1}'))
        xo = XO + 4 * c
        allp(lambda t, n, k, y: a.e(f'v_cvt_pk_bf16_f32 v{xo+2*n+k}, v{t+2}, v{t+3}'))
        a.e(f'v_permlane16_swap_b32 v{xo}, v{xo+2}')
        a.e(f'v_permlane16_swap_b32 v{xo+1}, v{xo+3}')
        a.e(f's_add_u32 s36, s18, {WS_X1T + 0x100000 * c}')
        a.vmem(f'buffer_store_dwordx4 v[{xo}:{xo+3}], v14, s[24:27], s36 offen sc1', f'x{c}')

    def arrive1(cbase):
        a.e('s_lshr_b32 s36, s2, 5')
        a.e('s_lshl_b32 s36, s36, 7')
        a.e(f's_add_u32 s36, s36, {cbase}')
        a.e('v_mov_b32 v16, 0')
        a.e('v_mov_b32 v27, 1')
        a.e('buffer_atomic_add v27, v16, s[24:27], s36 offen sc0 sc1')

    def arrive2(rbase, lab):
        a.e('s_waitcnt vmcnt(0)')
        a.e('v_readfirstlane_b32 s36, v27')
        a.e('s_cmp_lg_u32 s36, 31')
        a.e(f's_cbranch_scc1 {lab}')
        a.e('v_lshlrev_b32 v16, 7, v1')
        a.e('v_mov_b32 v17, 1')
        a.e(f's_mov_b32 s36, {rbase}')
        a.e('s_mov_b64 exec, 0xffff')
        a.e('buffer_atomic_add v17, v16, s[24:27], s36 offen sc1')
        a.e('s_mov_b64 exec, -1')
        a.label(lab)


    def epi_addr():
        a.e('s_lshl_b32 s36, s15, 13')
        a.e(f's_add_u32 s36, s36, {PART}')
        a.e('v_add_u32 v4, s36, v6')
        a.e('v_and_b32 v14, 1, v8')
        a.e('v_lshlrev_b32 v14, 9, v14')
        a.e('v_lshl_add_u32 v14, v7, 5, v14')
        a.e('v_lshrrev_b32 v15, 1, v8')
        a.e('v_lshl_add_u32 v14, v15, 4, v14')
        a.e('s_mul_i32 s36, s15, 5120')
        a.e(f's_add_u32 s36, s36, {HX}')
        a.e('v_add_u32 v12, s36, v6')
        a.e('s_mov_b32 s33, 0x3f803f80')
        a.e('s_mov_b32 s34, 0x00003f80')
        a.e('s_mov_b32 s35, 0x3f800000')

    def lds_arrive(sreg):
        a.e(f'v_mov_b32 v16, {LCNT}')
        a.e('v_mov_b32 v17, 1')
        a.e('s_mov_b64 exec, 1')
        a.e('ds_add_rtn_u32 v19, v16, v17')
        a.wait_lg0()
        a.e(f'v_readfirstlane_b32 {sreg}, v19')

    a.e('v_lshlrev_b32 v4, 4, v0')
    a.e('v_subrev_u32 v5, 16, v4')
    a.e('s_waitcnt lgkmcnt(0)')
    a.e('s_add_u32 s40, s40, s16')
    a.e('s_addc_u32 s41, s41, 0')
    a.srd(48, 40, 4096)
    a.e('s_add_u32 s40, s40, 0x100000')
    a.e('s_addc_u32 s41, s41, 0')
    a.srd(52, 40, 4096)
    a.srd(24, 8, WS_SIZE)
    LR = [32, 64]
    a.vmem(f'buffer_load_dwordx4 v[{LR[0]}:{LR[0]+3}], v5, s[48:51], 0 offen', 'k0')
    a.vmem(f'buffer_load_dwordx4 v[{LR[0]+4}:{LR[0]+7}], v4, s[48:51], 0 offen', 'k0')
    a.e(f's_add_u32 m0, s17, {R_OFF}')
    a.vmem('buffer_load_dwordx4 v6, s[24:27], s18 offen lds', 'r0')

    def loads_b():
        a.vmem(f'buffer_load_dwordx4 v[{LR[1]}:{LR[1]+3}], v5, s[52:55], 0 offen', 'k1')
        a.vmem(f'buffer_load_dwordx4 v[{LR[1]+4}:{LR[1]+7}], v4, s[52:55], 0 offen', 'k1')
        a.e(f's_add_u32 m0, s17, {R_OFF + K1_CH}')
        a.e('s_add_u32 s19, s18, 0x100000')
        a.vmem('buffer_load_dwordx4 v6, s[24:27], s19 offen lds', 'r1')
    a.e('s_lshl_b32 s19, s2, 2')
    a.e(f's_add_u32 s19, s19, {WS_MOD + 4096 + 1024}')
    a.e('s_load_dword s62, s[8:9], s19')
    a.srd(28, 4, 2048 * 512 * 2)
    Z = 28
    for i in range(4):
        a.e(f'v_mov_b32 v{Z+i}, 0')
    a.e('v_and_b32 v19, 7, v0')
    a.e('v_lshlrev_b32 v20, 2, v19')
    a.e(f's_mov_b32 s33, 0x{KC_NIB:08x}')
    a.e('v_lshrrev_b32 v20, v20, s33')
    a.e('v_and_b32 v20, 15, v20')
    a.e(f's_movk_i32 s34, {KC_STRIDE}')
    a.e('v_mul_lo_u32 v19, v19, s34')
    a.e('v_lshl_add_u32 v19, v20, 4, v19')
    a.e('v_lshrrev_b32 v20, 3, v0')
    a.e('v_lshl_add_u32 v19, v20, 4, v19')
    a.e('v_cmp_gt_u32 vcc, 9, v0')
    a.e('s_and_saveexec_b64 s[36:37], vcc')
    for c in range(2):
        a.lds(f'ds_write_b128 v19, v[{Z}:{Z+3}] offset:{K1_CH * c}')
    a.e('s_mov_b64 exec, s[36:37]')
    a.e('v_subrev_u32 v20, 64, v0')
    a.e(f'v_add_u32 v21, {K1_CH}, v4')
    a.e('v_cmp_gt_u32 vcc, 30, v20')
    a.e('s_and_saveexec_b64 s[36:37], vcc')
    a.lds(f'ds_write_b128 v4, v[{Z}:{Z+3}] offset:{R_OFF + 4096 - 1024}')
    a.lds(f'ds_write_b128 v21, v[{Z}:{Z+3}] offset:{R_OFF + 4096 - 1024}')
    a.e('s_mov_b64 exec, s[36:37]')
    a.e('v_add_u32 v19, 1, v7')
    a.e('v_and_b32 v20, 7, v19')
    a.e('v_lshlrev_b32 v22, 2, v20')
    a.e('v_lshrrev_b32 v22, v22, s33')
    a.e('v_and_b32 v22, 15, v22')
    a.e('v_mul_lo_u32 v20, v20, s34')
    a.e('v_lshl_add_u32 v20, v22, 4, v20')
    a.e('v_and_b32 v19, 0x18, v19')
    a.e('v_lshl_add_u32 v19, v8, 3, v19')
    a.e('v_lshl_add_u32 v20, v19, 1, v20')
    a.e('s_lshl_b32 s35, s15, 7')
    a.e('v_add_u32 v2, s35, v20')
    a.e('v_lshlrev_b32 v19, 5, v7')
    a.e('v_lshlrev_b32 v20, 4, v8')
    a.e('v_sub_u32 v19, v20, v19')
    a.e(f's_add_u32 s38, s35, {R_OFF + 480}')
    a.e('v_add_u32 v3, s38, v19')
    a.e(f'v_add_u32 v9, {K1_CH}, v2')
    a.e(f'v_add_u32 v10, {K1_CH}, v3')
    a.e(f's_add_u32 s38, s17, {PART}')
    a.e('v_add_u32 v11, s38, v6')

    def build(c):
        W = LR[c]
        X, O, O2 = 80, 86, 92
        vw = 4 if c == 0 else 21
        a.wait_vm(f'k{c}')
        if c == 0:
            loads_b()

        def wr(e, r, extra=0):
            a.lds(f'ds_write_b128 v{vw}, v[{r}:{r+3}] offset:{e * KC_STRIDE + KC_OFFS[e] * 16 + 16 + extra}')
        wr(0, W + 4, 16)
        wr(4, W + 2)
        for k in range(6):
            a.e(f'v_mov_b32 v{X + k}, v{W + k + 1}')
        wr(2, X)
        wr(6, X + 2)
        for k in range(6):
            a.e(f'v_alignbit_b32 v{O + k}, v{W + k + 1}, v{W + k}, 16')
        wr(1, O)
        wr(5, O + 2)
        for k in range(6):
            a.e(f'v_alignbit_b32 v{O2 + k}, v{W + k + 2}, v{W + k + 1}, 16')
        wr(3, O2)
        wr(7, O2 + 2)
        a.wait_vm(f'r{c}')
        a.wait_lg0()

    ACCC = 32

    def fq(q):
        return f'a[{4*q}:{4*q+3}]' if q < 20 else f'v[{128 + 4 * (q - 20)}:{131 + 4 * (q - 20)}]'

    def conv(c):
        va, vb = (2, 3) if c == 0 else (9, 10)

        def rd_a(r, i):
            return lambda: a.lds(f'ds_read_b128 {fq(16 * r + i)}, v{va} offset:{64 * (r + 8 * i)}', f'a{r}_{i}')

        def rd_b(r, j):
            return lambda: a.lds(f'ds_read_b128 {fq(16 * r + 8 + j)}, v{vb} offset:{64 * (r + 56 - 8 * j)}', f'b{r}_{j}')

        def reads(r):
            return [rd_a(r, 0)] + [rd_b(r, j) for j in range(8)] + [rd_a(r, i) for i in range(1, 8)]
        order = [(i, j) for i in range(8) for j in range(8 - i)]
        order.remove((7, 0))
        order.insert(order.index((5, 0)), (7, 0))

        def mfma(r, i, j, first):
            def f():
                for t in (f'a{r}_{i}', f'b{r}_{j}'):
                    if t in a.lg:
                        a.wait_lg(t)
                nb = i + j
                cc = '0' if first else f'v[{ACCC + 4 * nb}:{ACCC + 4 * nb + 3}]'
                a.e(f'v_mfma_f32_16x16x32_bf16 v[{ACCC + 4 * nb}:{ACCC + 4 * nb + 3}], {fq(16 * r + i)}, {fq(16 * r + 8 + j)}, {cc}')
            return f
        for f in reads(0):
            f()
        interleave(a, [mfma(0, i, j, i == 0) for (i, j) in order], reads(1), start=10, per=1)
        order2 = sorted(order, key=lambda p: (p[0] + p[1], p[0]))
        seq = []
        for lo in range(0, 8, 2):
            x = [p for p in order2 if p[0] + p[1] == lo]
            y = [p for p in order2 if p[0] + p[1] == lo + 1]
            while x or y:
                if y:
                    seq.append(y.pop(0))
                if x:
                    seq.append(x.pop(0))
        done = []
        for k, (i, j) in enumerate(seq):
            mfma(1, i, j, False)()
            for nb in range(8):
                last = max(q for q, p in enumerate(seq) if p[0] + p[1] == nb)
                if nb not in done and last + 3 <= k:
                    a.lds(f'ds_write_b128 v11, v[{ACCC+4*nb}:{ACCC+4*nb+3}] offset:{4096 * nb}', 'pw')
                    done.append(nb)
        for nb in range(8):
            if nb not in done:
                a.lds(f'ds_write_b128 v11, v[{ACCC+4*nb}:{ACCC+4*nb+3}] offset:{4096 * nb}', 'pw')
        a.wait_lg0()

    a.touch('s15', 'c', [f'KMPG{1 + w}' for w in range(4)])
    build(0)
    a.e('s_barrier')
    stamp('B1')
    conv(0)
    stamp('cA')
    a.e('s_barrier')
    build(1)
    epi_addr()
    a.e(f'v_mov_b32 v{cAH}, s62')
    a.e(f'v_lshrrev_b32 v{cAL}, 16, v{cAH}')
    a.e('s_barrier')
    stamp('B3')
    conv(1)
    a.e('s_barrier')
    stamp('B4')
    for q, r in enumerate((QS[1], QF, QF + 4, KVD, KVD + 4)):
        a.lds(f'ds_read_b128 v[{r}:{r+3}], v12 offset:{1024 * q}', 'hx')
    post(1)
    a.e('s_branch KM_COMPUTE')

    a.label('KM_AUX')
    a.vm, a.lg = [], []
    a.e('v_lshlrev_b32 v9, 5, v7')
    a.e('v_lshl_add_u32 v9, v8, 3, v9')
    a.e('v_lshlrev_b32 v18, 1, v9')
    a.e('v_lshrrev_b32 v10, 1, v1')
    a.e('s_movk_i32 s19, 3584')
    a.e('v_mul_lo_u32 v10, v10, s19')
    a.e('v_and_b32 v11, 1, v1')
    a.e('v_lshl_add_u32 v10, v11, 4, v10')
    a.e('v_lshlrev_b32 v19, 5, v8')
    a.e('s_lshl_b32 s19, s2, 2')
    a.e(f's_add_u32 s19, s19, {WS_MOD}')
    a.e('s_lshl_b32 s20, s2, 1')
    a.e('s_and_b32 s20, s20, 0xfffffffc')
    a.e('s_mul_i32 s21, s13, 114688')
    a.e('s_mul_i32 s22, s14, 224')
    a.e('s_add_u32 s21, s21, s22')
    a.e('s_lshl_b32 s22, s15, 12')
    a.e(f's_add_u32 s22, s22, {STG}')
    a.e(f'v_mov_b32 v16, {LCNT}')
    a.e('v_mov_b32 v17, 0')
    a.e('ds_write_b32 v16, v17')
    a.e('s_waitcnt lgkmcnt(0)')
    a.srd(24, 8, WS_SIZE)
    for c in range(2):
        for k in range(3):
            a.e(f's_add_u32 s23, s19, {2048 * k + 1024 * c}')
            a.e(f's_load_dword s{56 + 4 * c + k}, s[8:9], s23')
        a.e(f's_add_u32 s23, s20, {512 * c}')
        a.e(f's_load_dword s{59 + 4 * c}, s[42:43], s23')
    for j in range(4):
        if j < 3:
            a.e(f's_add_u32 s{48+j}, s15, {4 * j}')
        else:
            a.e('s_and_b32 s51, s15, 1')
            a.e('s_add_u32 s51, s51, 12')
        a.e(f's_cmp_ge_u32 s{48+j}, 7')
        a.e('s_cselect_b32 s52, s46, s44')
        a.e('s_cselect_b32 s53, s47, s45')
        a.e('s_cselect_b32 s36, 7, 0')
        a.e(f's_sub_u32 s36, s{48+j}, s36')
        a.e('s_and_b32 s53, s53, 0xffff')
        a.e(f's_mov_b32 s54, {512 * 1792 * 2}')
        a.e('s_mov_b32 s55, 0x00020000')
        a.e('s_lshl_b32 s36, s36, 5')
        a.e('s_add_u32 s36, s36, s21')
        a.e(f's_add_u32 m0, s22, {1024 * j}')
        a.vmem('buffer_load_dwordx4 v10, s[52:55], s36 offen lds', 'wraw')
    CB, SBF, GL, GH, SBP = 32, 40, 48, 52, 56
    a.e('s_lshl_b32 s36, s13, 7')
    a.e(f's_add_u32 s36, s36, {WS_MOD + 3 * 2048}')
    a.vmem(f'buffer_load_dwordx4 v[{SBF}:{SBF+3}], v19, s[24:27], s36 offen', 'cb')
    a.vmem(f'buffer_load_dwordx4 v[{SBF+4}:{SBF+7}], v19, s[24:27], s36 offen offset:16', 'cb')
    a.vmem(f'buffer_load_dwordx4 v[{CB}:{CB+3}], v19, s[24:27], s36 offen offset:2048', 'cb')
    a.vmem(f'buffer_load_dwordx4 v[{CB+4}:{CB+7}], v19, s[24:27], s36 offen offset:2064', 'cb')
    a.e(f's_add_u32 s36, s18, {WS_QT}')
    a.e('s_lshl_b32 s37, s15, 11')
    a.e(f's_add_u32 s38, s37, {WS_NM}')
    a.e(f's_add_u32 s39, s37, {WS_RS}')
    for n in range(2):
        a.vmem(f'buffer_load_dwordx2 v[{QS[0]+2*n}:{QS[0]+2*n+1}], v9, s[24:27], s36 offen offset:{512*n}', 'ep')
        a.vmem(f'buffer_load_dwordx4 v[{NM+4*n}:{NM+4*n+3}], v18, s[24:27], s38 offen offset:{1024*n}', 'ep')
        a.vmem(f'buffer_load_dwordx4 v[{RS+4*n}:{RS+4*n+3}], v18, s[24:27], s39 offen offset:{1024*n}', 'ep')
    a.e('s_add_u32 s65, s36, 0x100000')
    a.srd(28, 4, 2048 * 512 * 2)
    a.e('v_bfe_u32 v11, v1, 2, 2')
    a.e('v_lshl_add_u32 v11, v8, 3, v11')
    a.e('v_lshlrev_b32 v11, 5, v11')
    a.e('v_and_b32 v13, 3, v1')
    a.e('v_lshl_add_u32 v11, v13, 3, v11')
    a.e('v_add_u32 v11, s22, v11')
    a.e('v_lshrrev_b32 v13, 5, v1')
    a.e('s_movk_i32 s36, 448')
    a.e('v_mul_lo_u32 v13, v13, s36')
    a.e('v_lshl_add_u32 v13, v7, 2, v13')
    a.e(f's_sub_u32 s36, {R_OFF + 4088 - 512}, s17')
    a.e('v_sub_u32 v5, s36, v9')
    epi_addr()
    a.e('s_lshl_b32 s36, s14, 4')
    a.e('s_add_u32 s36, s36, s13')
    a.e('s_mul_i32 s37, s36, 14336')
    a.e(f's_add_u32 s37, s37, {WS_WF}')
    a.e('s_mul_i32 s38, s36, 1792')
    a.e(f's_add_u32 s38, s38, {WS_UTP}')
    a.touch('s15', 'a', [f'KMPG{5 + w}' for w in range(4)])
    a.e('s_barrier')
    stamp('B1')
    a.wait_vm('cb')
    a.wait_lg0()
    WR, P, O, U = 128, 144, 152, 168
    for j in range(4):
        for half in range(2):
            a.lds(f'ds_read_b64_tr_b16 v[{WR+4*j+2*half}:{WR+4*j+2*half+1}], v11 offset:{1024 * j + 128 * half}', f'w{j}')
    for k in range(8):
        a.e(f'v_add_f32 v{CB+k}, 1.0, v{CB+k}')
    for k in range(4):
        a.e(f'v_cvt_pk_bf16_f32 v{GL+k}, v{CB+2*k}, 0')
        a.e(f'v_cvt_pk_bf16_f32 v{GH+k}, 0, v{CB+2*k+1}')
        a.e(f'v_cvt_pk_bf16_f32 v{SBP+k}, v{SBF+2*k}, v{SBF+2*k+1}')
    for j in range(4):
        a.wait_lg(f'w{j}')
        for k in range(4):
            a.e(f'v_dot2_f32_bf16 v{P+2*k}, v{WR+4*j+k}, v{GL+k}, 0')
            a.e(f'v_dot2_f32_bf16 v{P+2*k+1}, v{WR+4*j+k}, v{GH+k}, 0')
        for k in range(4):
            a.e(f'v_cvt_pk_bf16_f32 v{O+4*j+k}, v{P+2*k}, v{P+2*k+1}')
        a.e(f's_lshl_b32 s36, s{48+j}, 10')
        a.e('s_add_u32 s36, s36, s37')
        a.vmem(f'buffer_store_dwordx4 v[{O+4*j}:{O+4*j+3}], v6, s[24:27], s36 offen sc1', 'wo')
    for k in range(16):
        a.e(f'v_accvgpr_write_b32 a{k}, v{WR+k}')
        a.e(f'v_accvgpr_write_b32 a{16+k}, v{O+k}')
    for n in range(2):
        a.vmem(f'buffer_load_dwordx2 v[{QS[1]+2*n}:{QS[1]+2*n+1}], v9, s[24:27], s65 offen offset:{512*n}', 'qb')
    pre(0)
    stamp('cA')
    a.e('s_barrier')
    post(0)
    stamp('B3')
    a.e('s_barrier')
    a.wait_vm0()
    lds_arrive('s64')
    a.e('s_cmp_lg_u32 s64, 3')
    a.e('s_cbranch_scc1 KM_S1')
    arrive1(XAC)
    a.label('KM_S1')
    a.e('s_mov_b64 exec, -1')
    pre(1)
    for q, r in enumerate((QS[1], QF, QF + 4, KVD, KVD + 4)):
        a.lds(f'ds_write_b128 v12, v[{r}:{r+3}] offset:{1024 * q}')
    a.e('s_cmp_lg_u32 s64, 3')
    a.e('s_cbranch_scc1 KM_S1B')
    arrive2(XAR, 'KM_S1B')
    a.wait_lg0()
    a.e('s_barrier')
    stamp('B4')
    for k in range(16):
        a.e(f'v_accvgpr_read_b32 v{WR+k}, a{k}')
        a.e(f'v_accvgpr_read_b32 v{O+k}, a{16+k}')
    for k in range(4):
        for j in range(4):
            cc = '0' if k == 0 else f'v{U+2*j+1}'
            a.e(f'v_dot2_f32_bf16 v{U+2*j+1}, v{WR+4*j+k}, v{SBP+k}, {cc}')
        for j in range(4):
            cc = '0' if k == 0 else f'v{U+2*j}'
            a.e(f'v_dot2_f32_bf16 v{U+2*j}, v{O+4*j+k}, s33, {cc}')
    for j in range(4):
        a.e(f'v_permlane32_swap_b32 v{U+2*j}, v{U+2*j+1}')
    for j in range(4):
        a.e(f'v_add_f32 v{U+2*j}, v{U+2*j}, v{U+2*j+1}')
    for j in range(4):
        a.e(f'v_mov_b32 v{U+2*j+1}, v{U+2*j}')
    for j in range(4):
        a.e(f'v_permlane16_swap_b32 v{U+2*j}, v{U+2*j+1}')
    for j in range(4):
        a.e(f'v_add_f32 v{U+2*j}, v{U+2*j}, v{U+2*j+1}')
    a.e('s_mov_b32 s64, 0xffff')
    a.e('s_mov_b32 s65, 0xffff')
    a.e('s_mov_b64 exec, s[64:65]')
    for j in range(4):
        a.e(f's_cmp_ge_u32 s{48+j}, 7')
        a.e('s_cselect_b32 s36, 448, 0')
        a.e(f's_lshl_b32 s39, s{48+j}, 6')
        a.e('s_add_u32 s36, s36, s39')
        a.e('s_add_u32 s36, s36, s38')
        a.vmem(f'buffer_store_dword v{U+2*j}, v13, s[24:27], s36 offen sc1', 'ut')
    a.e('s_mov_b64 exec, -1')

    def mlp_setup():
        a.e('v_lshrrev_b32 v2, 4, v1')
        a.e('v_and_b32 v3, 15, v1')
        a.e('v_lshlrev_b32 v4, 4, v1')
        a.e('s_lshr_b32 s34, s14, 1')
        a.e('s_and_b32 s35, s14, 1')
        a.e('s_mov_b32 s32, s13')
        a.e('s_mul_i32 s37, s34, 229376')
        a.e(f's_add_u32 s37, s37, {WS_WDF}')
        a.e('s_mul_i32 s38, s15, 57344')
        a.e('s_add_u32 s38, s38, s37')
        a.e(f'v_mov_b32 v{VA}, v4')
        for k in (1, 2):
            a.e(f'v_add_u32 v{VA+k}, {2 * SLOT * k}, v4')

    VA, VB0, VB1 = 5, 8, 11
    WREG = [f'a{r}' for r in range(0, 80, 4)]

    def wd_reg(n):
        fr = 36 + n
        if n % 4 == 0:
            a.e(f's_add_u32 s45, s38, {fr * 1024}')
        a.vmem(f'buffer_load_dwordx4 {quad(WREG[n])}, v4, s[24:27], s45 offen offset:{1024 * (n % 4)}', 'wdr')

    mlp_setup()
    a.e('s_mul_i32 s16, s14, 229376')
    a.e(f's_add_u32 s16, s16, {WS_WF}')
    a.e('s_and_b32 s23, s15, 1')
    a.e('s_lshl_b32 s23, s23, 2')
    a.e('v_add_u32 v16, s23, v2')
    a.e('v_lshlrev_b32 v16, 1, v16')
    a.e('v_xor_b32 v16, v16, v3')
    a.e('v_lshlrev_b32 v16, 4, v16')
    a.e('v_lshl_add_u32 v14, v2, 12, v16')
    a.e('s_lshl_b32 s17, s13, 8')
    a.e('s_lshl_b32 s23, s15, 15')
    a.e('s_add_u32 s17, s17, s23')
    a.e(f's_add_u32 s17, s17, {WS_X1T}')
    a.e('s_lshl_b32 s18, s15, 11')
    a.e(f's_add_u32 s18, s18, {B_OFF}')
    a.e('s_mul_i32 s19, s15, 3072')
    a.e('s_add_u32 s20, s16, s19')
    a.e('s_lshr_b32 s21, s15, 1')
    a.e('s_lshl_b32 s21, s21, 10')
    a.e('s_add_u32 s21, s21, 12288')
    a.e('s_add_u32 s22, s16, s21')
    a.e('s_bitcmp1_b32 s15, 0')
    a.e('s_cselect_b32 s46, 0, -1')
    a.e('s_cselect_b32 s47, -1, 0')
    a.e('s_lshl_b32 s39, s15, 10')

    def dma(ks):
        slot = ks % NSLOT
        a.e(f's_add_u32 m0, s18, {slot * SLOT}')
        a.e(f's_add_u32 s23, s17, {ks * 131072}')
        a.vmem('buffer_load_dwordx4 v14, s[24:27], s23 offen sc1 lds', f'D{ks}')
        a.e(f's_add_u32 s23, s17, {ks * 131072 + 16384 - 1024}')
        a.vmem('buffer_load_dwordx4 v14, s[24:27], s23 offen offset:1024 sc1 lds', f'D{ks}')
        a.e(f's_add_u32 m0, s19, {slot * SLOT}')
        a.e(f's_add_u32 s23, s20, {ks * 14336}')
        for e in range(3):
            a.vmem(f'buffer_load_dwordx4 v4, s[24:27], s23 offen offset:{1024 * e} sc1 lds', f'D{ks}')
        a.e(f's_add_u32 m0, s21, {slot * SLOT}')
        a.e(f's_add_u32 s23, s22, {ks * 14336}')
        a.e('s_mov_b64 exec, s[46:47]')
        a.vmem('buffer_load_dwordx4 v4, s[24:27], s23 offen sc1 lds', f'D{ks}')
        a.e('s_mov_b64 exec, -1')

    def wd_lds(it):
        slot = (10 + it) % NSLOT
        for jj in range(6):
            a.e(f's_add_u32 m0, s39, {slot * SLOT + jj * 4096}')
            a.e(f's_add_u32 s23, s38, {(6 * it + jj) * 1024}')
            a.vmem('buffer_load_dwordx4 v4, s[24:27], s23 offen lds', 'wdl')

    a.e('s_cmp_eq_u32 s10, 4')
    a.e('s_cbranch_scc1 KM_P1A')
    sv = list(a.vm)
    for n in range(20):
        wd_reg(n)
    a.wait_vm('ut')
    a.vm = sv
    a.e('s_branch KM_P1W')
    a.label('KM_P1A')
    a.e('s_and_b32 s23, s2, 15')
    a.e('s_lshl_b32 s23, s23, 7')
    a.e(f's_add_u32 s23, s23, {XAR}')
    a.e('v_mov_b32 v16, 0')
    a.e('s_mov_b64 exec, 1')
    a.e(f's_mov_b32 s50, {SPIN}')
    a.label('KM_P1')
    a.e('buffer_load_dword v18, v16, s[24:27], s23 offen sc1')
    a.e('s_waitcnt vmcnt(0)')
    a.e('v_readfirstlane_b32 s36, v18')
    a.e('s_cmp_ge_u32 s36, 8')
    a.e('s_cbranch_scc1 KM_P1R')
    a.e(f's_sleep {PSLEEP}')
    a.e('s_sub_u32 s50, s50, 1')
    a.e('s_cmp_lg_u32 s50, 0')
    a.e('s_cbranch_scc1 KM_P1')
    a.label('KM_P1R')
    a.e('s_mov_b64 exec, -1')
    a.label('KM_P1W')
    a.vm = []
    a.e('s_barrier')
    stamp('B5')
    for ks in range(3):
        dma(ks)
    a.wait_vm('D0')
    a.e('s_barrier')
    stamp('B0')
    dma(3)
    UP = 32

    def utp_loads():
        a.e('s_mul_i32 s23, s14, 28672')
        a.e('s_mul_i32 s36, s15, 448')
        a.e('s_add_u32 s23, s23, s36')
        a.e(f's_add_u32 s23, s23, {WS_UTP}')
        a.e('s_mov_b64 exec, 0xfffffff')
        for k in range(16):
            if k % 2 == 0 and k:
                a.e('s_add_u32 s23, s23, 3584')
            a.vmem(f'buffer_load_dwordx4 v[{UP+4*k}:{UP+4*k+3}], v4, s[24:27], s23 offen offset:{1792 * (k & 1)} sc1', 'utp')
        a.e('s_mov_b64 exec, -1')

    def side():
        a.e('v_lshrrev_b32 v16, 3, v1')
        a.e('v_and_b32 v17, 7, v1')
        a.e('v_lshlrev_b32 v17, 4, v17')
        a.e('v_lshl_add_u32 v16, v16, 12, v17')
        a.e('s_lshl_b32 s23, s34, 2')
        a.e('s_add_u32 s23, s23, s15')
        a.e('s_lshl_b32 s23, s23, 16')
        a.e('s_lshl_b32 s36, s32, 8')
        a.e('s_add_u32 s23, s23, s36')
        a.e('s_lshl_b32 s36, s35, 7')
        a.e('s_add_u32 s23, s23, s36')
        a.e(f's_add_u32 s23, s23, {WS_X1T}')
        a.e('s_lshl_b32 s36, s15, 11')
        a.e(f's_add_u32 m0, s36, {X1L}')
        a.vmem('buffer_load_dwordx4 v16, s[24:27], s23 offen sc1 lds', 'side')
        a.e(f's_add_u32 s23, s23, {32768 - 1024}')
        a.vmem('buffer_load_dwordx4 v16, s[24:27], s23 offen offset:1024 sc1 lds', 'side')

    nreg = 0
    mark = 0
    for bi, ks in enumerate(BARS):
        need = BARS[bi + 1] if bi + 1 < len(BARS) else 15
        if f'D{need}' in a.vm:
            a.wait_vm(f'D{need}')
        if ks == XBCHK:
            a.e('s_cmp_lg_u32 s10, 4')
            a.e('s_cbranch_scc1 KM_P2W')
            a.e(f's_mov_b32 s50, {SPIN}')
            a.e('s_mov_b64 exec, 1')
            a.e(f's_waitcnt vmcnt({a.nvm - mark})')
            a.label('KM_P2')
            a.e('v_readfirstlane_b32 s36, v21')
            a.e('s_cmp_ge_u32 s36, 8')
            a.e('s_cbranch_scc1 KM_P2R')
            a.e('buffer_load_dword v21, v20, s[24:27], s64 offen sc1')
            a.e('s_waitcnt vmcnt(0)')
            a.e('s_sub_u32 s50, s50, 1')
            a.e('s_cmp_lg_u32 s50, 0')
            a.e('s_cbranch_scc1 KM_P2')
            a.label('KM_P2R')
            a.e('s_mov_b64 exec, -1')
            a.label('KM_P2W')
        if ks == 10:
            a.wait_lg0()
        a.e('s_barrier')
        stamp(f'k{ks}')
        if ks == XBCHK - 1:
            a.e('s_cmp_lg_u32 s10, 4')
            a.e('s_cbranch_scc1 KM_P2A')
            a.e('s_and_b32 s64, s2, 15')
            a.e('s_lshl_b32 s64, s64, 7')
            a.e(f's_add_u32 s64, s64, {XBR}')
            a.e('v_mov_b32 v20, 0')
            a.e('s_mov_b64 exec, 1')
            a.e('buffer_load_dword v21, v20, s[24:27], s64 offen sc1')
            a.e('s_mov_b64 exec, -1')
            a.label('KM_P2A')
            mark = a.nvm
        for st in ISSUE.get(ks, ()):
            dma(st)
        if ks == 4:
            side()
            utp_loads()
        if ks == 8:
            a.wait_vm('utp')
            for step in (8, 4, 2, 1):
                for k in range(step):
                    for r in range(4):
                        a.e(f'v_add_f32 v{UP+4*k+r}, v{UP+4*k+r}, v{UP+4*(k+step)+r}')
            a.e('s_lshl_b32 s36, s15, 9')
            a.e(f's_add_u32 s36, s36, {UTL}')
            a.e('v_add_u32 v16, s36, v4')
            a.e('s_mov_b64 exec, 0xfffffff')
            a.lds(f'ds_write_b128 v16, v[{UP}:{UP+3}]')
            a.e('s_mov_b64 exec, -1')
        if ks in WDR:
            a.e('s_cmp_lg_u32 s10, 4')
            a.e(f's_cbranch_scc1 KM_WR{ks}')
            sv, sn = list(a.vm), a.nvm
            for _ in range(WDR[ks]):
                wd_reg(nreg)
                nreg += 1
            a.vm, a.nvm = sv, sn
            a.label(f'KM_WR{ks}')
        for it in {10: (0,), 12: (1, 2), 14: (3, 4), 15: (5,)}.get(ks, ()):
            wd_lds(it)
    assert nreg == 20
    stamp('lend')
    a.e('s_branch K2_JOIN')

    a.label('KM_COMPUTE')
    a.vm, a.lg = [], []
    mlp_setup()
    BF, ONES, ACC, S, Q, MR = 32, 16, 48, 160, 168, 28
    a.e('v_bfe_u32 v16, v1, 2, 2')
    a.e('v_and_b32 v17, 3, v1')
    a.e('v_and_b32 v18, 1, v2')
    a.e('v_lshl_add_u32 v18, v18, 2, v16')
    a.e('v_lshl_add_u32 v16, v2, 3, v16')
    a.e('v_lshlrev_b32 v16, 8, v16')
    a.e('v_lshl_add_u32 v16, v17, 3, v16')
    a.e(f'v_add_u32 v16, {B_OFF}, v16')
    a.e('s_lshl_b32 s22, s15, 1')
    for t, vb in ((0, VB0), (1, VB1)):
        a.e(f's_add_u32 s23, s22, {t}')
        a.e('v_xor_b32 v17, s23, v18')
        a.e(f'v_lshl_add_u32 v{vb}, v17, 5, v16')
        for k in (1, 2):
            a.e(f'v_add_u32 v{vb+k}, {2 * SLOT * k}, v{vb}')
    for k in range(4):
        a.e(f'v_mov_b32 v{ONES+k}, 0x3f803f80')
    a.e('v_lshlrev_b32 v14, 4, v2')
    a.e(f'v_add_u32 v14, {UTL}, v14')
    a.e('s_lshl_b32 s23, s13, 2')
    a.e('s_add_u32 s23, s23, s15')
    a.e('s_lshl_b32 s23, s23, 4')
    a.e('s_add_u32 s23, s23, s14')
    a.e('s_mul_i32 s23, s23, 7168')
    a.e(f's_add_u32 s48, s23, {WS_HF}')
    a.e('s_add_u32 s49, s48, 4096')
    a.e('s_barrier')
    stamp('B5')
    a.e('s_waitcnt vmcnt(0)')
    lds_arrive('s64')
    a.e('s_cmp_lg_u32 s64, 7')
    a.e('s_cbranch_scc1 KM_S2')
    arrive1(XBC)
    a.e('s_mov_b64 exec, -1')
    arrive2(XBR, 'KM_S2')
    a.e('s_mov_b64 exec, -1')
    for k in range(4):
        a.e(f'v_mov_b32 v{ONES+k}, 0x3f803f80')

    RING = 20

    def rd_b(ks):
        slot = ks % NSLOT
        k, o = slot >> 1, (slot & 1) * SLOT
        return [(lambda r=BF + 8 * (ks & 1) + 4 * t + 2 * half, vb=vb, half=half:
                 a.lds(f'ds_read_b64_tr_b16 v[{r}:{r+1}], v{vb+k} offset:{o + half * 1024}', f'B{ks}'))
                for t, vb in ((0, VB0), (1, VB1)) for half in range(2)]

    def stats_ops():
        L = []

        def e(x):
            L.append(lambda x=x: a.e(x))

        def rnd2(lo, hi, tmp):
            e(f'v_cvt_pk_bf16_f32 v{tmp}, v{lo}, v{hi}')
            e(f'v_lshlrev_b32 v{lo}, 16, v{tmp}')
            e(f'v_and_b32 v{hi}, 0xffff0000, v{tmp}')
        e('v_and_b32 v24, 3, v3')
        e('v_lshrrev_b32 v25, 2, v3')
        for t in range(2):
            e(f'v_mov_b32 v{MR+2*t+1}, v{Q+4*t}')
        for k in range(1, 4):
            e(f'v_cmp_eq_u32 vcc, {k}, v24')
            for t in range(2):
                e(f'v_cndmask_b32 v{MR+2*t+1}, v{MR+2*t+1}, v{Q+4*t+k}, vcc')
        e('v_cmp_eq_u32 vcc, v25, v2')
        for t in range(2):
            e(f'v_cndmask_b32 v{MR+2*t+1}, 0, v{MR+2*t+1}, vcc')
        for step in ('v_permlane32_swap_b32', 'v_permlane16_swap_b32'):
            for t in range(2):
                e(f'v_mov_b32 v{26+t}, v{MR+2*t+1}')
            for t in range(2):
                e(f'{step} v{MR+2*t+1}, v{26+t}')
            for t in range(2):
                e(f'v_add_f32 v{MR+2*t+1}, v{MR+2*t+1}, v{26+t}')
        for t in range(2):
            e(f'v_mul_f32 v{MR+2*t}, 0x3b000000, v{S+4*t}')
            e(f'v_mul_f32 v{MR+2*t+1}, 0x3b000000, v{MR+2*t+1}')
        for t in range(2):
            e(f'v_fma_f32 v{MR+2*t+1}, -v{MR+2*t}, v{MR+2*t}, v{MR+2*t+1}')
        for t in range(2):
            e(f'v_max_f32 v{MR+2*t+1}, 0, v{MR+2*t+1}')
        rnd2(MR + 1, MR + 3, 26)
        rnd2(MR + 0, MR + 2, 27)
        for t in range(2):
            e(f'v_add_f32 v{MR+2*t+1}, 0x3727c5ac, v{MR+2*t+1}')
        rnd2(MR + 1, MR + 3, 26)
        for t in range(2):
            e(f'v_sqrt_f32 v{MR+2*t+1}, v{MR+2*t+1}')
        rnd2(MR + 1, MR + 3, 26)
        for t in range(2):
            e(f'v_rcp_f32 v{26+t}, v{MR+2*t+1}')
        for t in range(2):
            e(f'v_fma_f32 v{MR+2*t+1}, -v{MR+2*t+1}, v{26+t}, 1.0')
        for t in range(2):
            e(f'v_fma_f32 v{MR+2*t+1}, v{MR+2*t+1}, v{26+t}, v{26+t}')
        for t in range(2):
            e(f'v_mul_f32 v{MR+2*t}, -v{MR+2*t}, v{MR+2*t+1}')
        return L

    morder = [x for fl in range(7) for x in (fl, 7 + fl)]
    a.e('s_barrier')
    stamp('B0')
    for f in rd_b(0):
        f()
    for j in range(14):
        a.lds(f'ds_read_b128 a[{4*j}:{4*j+3}], v{VA} offset:{morder[j] * 1024}', f'A{j}')

    def rd(n):
        ks, j = divmod(n, 14)
        slot = ks % NSLOT
        k, o = slot >> 1, (slot & 1) * SLOT
        r = 4 * (n % RING)
        a.lds(f'ds_read_b128 a[{r}:{r+3}], v{VA+k} offset:{o + morder[j] * 1024}', f'A{n}')
    for ks in range(16):
        if ks in BARS:
            a.wait_lg0()
            a.e('s_barrier')
            stamp(f'k{ks}')
        pend = []
        if ks + 1 < 16:
            pend = rd_b(ks + 1) + [(lambda n=14 * (ks + 1) + j: rd(n)) for j in range(6)]
        if f'B{ks}' in a.lg:
            a.wait_lg(f'B{ks}')
        st_ops = stats_ops() if ks == 15 else []
        for t in range(2):
            br = BF + 8 * (ks & 1) + 4 * t
            for d, A in ((S + 4 * t, f'v[{ONES}:{ONES+3}]'), (Q + 4 * t, f'v[{br}:{br+3}]')):
                c = '0' if ks == 0 else f'v[{d}:{d+3}]'
                a.e(f'v_mfma_f32_16x16x32_bf16 v[{d}:{d+3}], {A}, v[{br}:{br+3}], {c}')
                if pend:
                    pend.pop(0)()
        for j in range(14):
            n = 14 * ks + j
            if f'A{n}' in a.lg:
                a.wait_lg(f'A{n}')
            ar = 4 * (n % RING)
            for t in range(2):
                br = BF + 8 * (ks & 1) + 4 * t
                d = ACC + 56 * t + 4 * morder[j]
                c = '0' if ks == 0 else f'v[{d}:{d+3}]'
                a.e(f'v_mfma_f32_16x16x32_bf16 v[{d}:{d+3}], a[{ar}:{ar+3}], v[{br}:{br+3}], {c}')
                if pend:
                    pend.pop(0)()
                elif j >= 2:
                    for _ in range(2):
                        if st_ops:
                            st_ops.pop(0)()
            if ks + 1 < 16 and j < 8:
                pend.append(lambda n2=n + RING: rd(n2))
        while pend:
            pend.pop(0)()
        while st_ops:
            st_ops.pop(0)()
    stamp('lend')
    UTR, T, OUT = 32, 16, 160

    def utread(fl):
        for arr in range(4):
            a.lds(f'ds_read_b128 v[{UTR+4*arr}:{UTR+4*arr+3}], v14 offset:{arr * 512 + fl * 64}', f'ut{fl}')
    utread(0)
    for n in range(20):
        wd_reg(n)
    for i in range(7):
        a.wait_lg0()
        for t in range(2):
            mu = MR + 2 * t
            for mat in range(2):
                for p in range(2):
                    tt = UTR + 8 * mat + 4 + 2 * p
                    ac = ACC + 56 * t + 4 * (mat * 7 + i) + 2 * p
                    a.e(f'v_pk_fma_f32 v[{ac}:{ac+1}], v[{mu}:{mu+1}], v[{ac}:{ac+1}], v[{tt}:{tt+1}] op_sel:[1,0,0] op_sel_hi:[1,1,1]')
        for t in range(2):
            mu = MR + 2 * t
            for mat in range(2):
                for p in range(2):
                    u = UTR + 8 * mat + 2 * p
                    ac = ACC + 56 * t + 4 * (mat * 7 + i) + 2 * p
                    a.e(f'v_pk_fma_f32 v[{ac}:{ac+1}], v[{mu}:{mu+1}], v[{u}:{u+1}], v[{ac}:{ac+1}] op_sel_hi:[0,1,1]')
        if i + 1 < 7:
            utread(i + 1)
        for t in range(2):
            for p in range(2):
                g = ACC + 56 * t + 4 * i + 2 * p
                u = ACC + 56 * t + 4 * (7 + i) + 2 * p
                q = T + 3 * (2 * t + p)
                a.e(f'v_cvt_pk_bf16_f32 v{q}, v{g}, v{g+1}')
                a.e(f'v_cvt_pk_bf16_f32 v{q+1}, v{u}, 0')
                a.e(f'v_cvt_pk_bf16_f32 v{q+2}, 0, v{u+1}')
        for t in range(2):
            for p in range(2):
                q = T + 3 * (2 * t + p)
                a.e(f'v_pk_max_i16 v{q}, v{q}, 0')
        for t in range(2):
            for p in range(2):
                g = ACC + 56 * t + 4 * i + 2 * p
                q = T + 3 * (2 * t + p)
                a.e(f'v_dot2_f32_bf16 v{g}, v{q}, v{q+1}, 0')
                a.e(f'v_dot2_f32_bf16 v{g+1}, v{q}, v{q+2}, 0')
        last = (i == 6)
        O = OUT + 8 * ((i >> 1) & 1)
        for t in range(2):
            for p in range(2):
                g = ACC + 56 * t + 4 * i + 2 * p
                o = (O + 2 * t + p) if last else (O + 4 * t + 2 * (i & 1) + p)
                a.e(f'v_cvt_pk_bf16_f32 v{o}, v{g}, v{g+1}')
        if last:
            a.vmem(f'buffer_store_dwordx4 v[{O}:{O+3}], v4, s[24:27], s49 offen offset:{6 * 1024 - 4096} sc1', 'hs')
        elif i & 1:
            kbp = i >> 1
            for t in range(2):
                sl = 3 * t + kbp
                sreg, off = ('s48', sl * 1024) if sl < 4 else ('s49', sl * 1024 - 4096)
                a.vmem(f'buffer_store_dwordx4 v[{O+4*t}:{O+4*t+3}], v4, s[24:27], {sreg} offen offset:{off} sc1', 'hs')
    a.label('K2_JOIN')
    stamp('join')
    a.wait_vm0()
    a.e('s_barrier')
    stamp('drain')
    a.e('s_cmp_lg_u32 s10, 0')
    a.e('s_cbranch_scc1 K2_WAIT')
    a.e('s_lshl_b32 s23, s13, 7')
    a.e(f's_add_u32 s36, s23, {HMG}')
    a.e(f's_add_u32 s23, s23, {HMC}')
    a.e('v_mov_b32 v16, 0')
    a.e('v_mov_b32 v17, 1')
    a.e('v_mov_b32 v18, 1')
    a.e('s_mov_b64 exec, 1')
    a.e('buffer_atomic_add v18, v16, s[24:27], s23 offen sc0 sc1')
    a.e('s_waitcnt vmcnt(0)')
    a.e('v_readfirstlane_b32 s45, v18')
    a.e('s_cmp_lg_u32 s45, 15')
    a.e('s_cbranch_scc1 K2_NL')
    a.e('buffer_store_dword v17, v16, s[24:27], s36 offen sc1')
    a.e('s_branch K2_READY')
    a.label('K2_NL')
    a.e(f's_mov_b32 s50, {SPIN}')
    a.label('K2_POLL')
    a.e('buffer_load_dword v18, v16, s[24:27], s36 offen sc1')
    a.e('s_waitcnt vmcnt(0)')
    a.e('v_readfirstlane_b32 s45, v18')
    a.e('s_cmp_lg_u32 s45, 0')
    a.e('s_cbranch_scc1 K2_READY')
    a.e('s_sub_u32 s50, s50, 1')
    a.e('s_cmp_lg_u32 s50, 0')
    a.e('s_cbranch_scc1 K2_POLL')
    a.label('K2_READY')
    a.e('s_mov_b64 exec, -1')
    a.label('K2_WAIT')
    a.e('s_lshl_b32 s23, s32, 2')
    a.e('s_lshl_b32 s36, s35, 1')
    a.e('s_add_u32 s23, s23, s36')
    a.e('s_lshr_b32 s33, s10, 2')
    a.e('s_add_u32 s23, s23, s33')
    a.e('s_lshl_b32 s23, s23, 4')
    a.e('s_lshl_b32 s36, s15, 2')
    a.e('s_add_u32 s23, s23, s36')
    a.e('s_mul_i32 s23, s23, 7168')
    a.e(f's_add_u32 s48, s23, {WS_HF}')
    a.e('s_lshl_b32 s23, s15, 10')
    for k in range(3):
        a.e(f'v_add_u32 v{VA+k}, s23, v{VA+k}')
    a.e('s_barrier')
    stamp('hoff')
    a.vm, a.lg = [], []
    BREG = [f'v{r}' for r in range(16, 112, 4)]
    ACC3, AT = 112, 144

    def bload(n):
        if n % 4 == 0:
            a.e(f's_add_u32 s49, s48, {n * 1024}')
        a.vmem(f'buffer_load_dwordx4 {quad(BREG[n % 24])}, v4, s[24:27], s49 offen offset:{1024 * (n % 4)} sc1', f'H{n}')
    for n in range(24):
        bload(n)
    steps = [(c, kb) for c in range(4) for kb in range(4)]

    def afrags(c, kb):
        return [14 * c + 4 * kb + tau for tau in range(4)] if kb < 3 else [14 * c + 12, 14 * c + 13]

    def aread(si):
        c, kb = steps[si]
        for i, fr in enumerate(afrags(c, kb)):
            if fr < 36:
                slot = (10 + fr // 6) % NSLOT
                k, o = slot >> 1, (slot & 1) * SLOT + 4096 * (fr % 6)
                r = AT + 16 * (si & 1) + 4 * i
                a.lds(f'ds_read_b128 v[{r}:{r+3}], v{VA+k} offset:{o}', f'A{si}')

    def areg(si, i):
        c, kb = steps[si]
        fr = afrags(c, kb)[i]
        if fr < 36:
            return ('v', AT + 16 * (si & 1) + 4 * i)
        return (WREG[fr - 36][0], int(WREG[fr - 36][1:]))
    aread(0)
    for si, (c, kb) in enumerate(steps):
        if si + 1 < len(steps):
            aread(si + 1)
        if f'A{si}' in a.lg:
            a.wait_lg(f'A{si}')
        first = (si == 0)
        if kb < 3:
            for t in range(2):
                n = 7 * c + 3 * t + kb
                if f'H{n}' in a.vm:
                    a.wait_vm(f'H{n}')
                for tau in range(4):
                    k, r = areg(si, tau)
                    d = ACC3 + 16 * t + 4 * tau
                    cc = '0' if first else f'v[{d}:{d+3}]'
                    a.e(f'v_mfma_f32_16x16x32_bf16 v[{d}:{d+3}], {k}[{r}:{r+3}], {quad(BREG[n % 24])}, {cc}')
        else:
            n = 7 * c + 6
            if f'H{n}' in a.vm:
                a.wait_vm(f'H{n}')
            bk, br = BREG[n % 24][0], int(BREG[n % 24][1:])
            for t in range(2):
                for tau in range(4):
                    k, r = areg(si, tau >> 1)
                    r += 2 * (tau & 1)
                    d = ACC3 + 16 * t + 4 * tau
                    a.e(f'v_mfma_f32_16x16x16_bf16 v[{d}:{d+3}], {k}[{r}:{r+1}], {bk}[{br+2*t}:{br+2*t+1}], v[{d}:{d+3}]')
            if c == 0:
                for n2 in range(24, 28):
                    bload(n2)
                a.e('v_lshlrev_b32 v14, 5, v2')
                a.e('s_lshl_b32 s23, s34, 8')
                a.e('s_and_b32 s36, s15, 1')
                a.e('s_lshl_b32 s36, s36, 7')
                a.e('s_add_u32 s23, s23, s36')
                a.e(f's_add_u32 s23, s23, {WS_MOD + 5 * 2048}')
                a.vmem('buffer_load_dwordx4 v[8:11], v14, s[24:27], s23 offen', 'gb')
                a.vmem('buffer_load_dwordx4 v[12:15], v14, s[24:27], s23 offen offset:16', 'gb')
    stamp('down')
    a.e('s_mul_i32 s23, s33, 24576')
    a.e('v_add_u32 v5, s23, v4')
    a.e('v_bfe_u32 v6, v1, 2, 2')
    a.e('v_lshl_add_u32 v6, v2, 3, v6')
    a.e('v_lshlrev_b32 v6, 7, v6')
    a.e('v_and_b32 v7, 3, v1')
    a.e('v_lshl_add_u32 v6, v7, 3, v6')
    a.e('s_and_b32 s36, s15, 1')
    a.e('s_lshl_b32 s36, s36, 12')
    a.e('s_lshl_b32 s23, s33, 6')
    a.e('s_add_u32 s36, s36, s23')
    a.e('s_lshr_b32 s23, s15, 1')
    a.e('s_lshl_b32 s23, s23, 5')
    a.e('s_add_u32 s36, s36, s23')
    a.e(f's_add_u32 s36, s36, {X1L}')
    a.e('v_add_u32 v6, s36, v6')
    X = 16
    a.lds(f'ds_read_b64_tr_b16 v[{X}:{X+1}], v6', 'x')
    a.lds(f'ds_read_b64_tr_b16 v[{X+2}:{X+3}], v6 offset:512', 'x')
    a.e('v_lshlrev_b32 v7, 10, v3')
    a.e('v_lshl_add_u32 v7, v2, 4, v7')
    a.e('s_lshl_b32 s23, s32, 3')
    a.e('s_lshl_b32 s36, s35, 2')
    a.e('s_add_u32 s23, s23, s36')
    a.e('s_lshl_b32 s36, s33, 1')
    a.e('s_add_u32 s23, s23, s36')
    a.e('s_lshr_b32 s36, s15, 1')
    a.e('s_add_u32 s23, s23, s36')
    a.e('s_lshl_b32 s23, s23, 14')
    a.e('s_lshl_b32 s36, s34, 7')
    a.e('s_add_u32 s23, s23, s36')
    a.e('s_and_b32 s36, s15, 1')
    a.e('s_lshl_b32 s36, s36, 6')
    a.e('s_add_u32 s51, s23, s36')
    a.e('s_barrier')
    for kq in range(4):
        a.e(f's_cmp_eq_u32 s15, {kq}')
        a.e(f's_cbranch_scc0 K3_W{kq}')
        for j in range(4):
            if j == kq:
                continue
            idx = kq if kq < j else kq - 1
            for h in range(2):
                d = ACC3 + 8 * j + 4 * h
                a.e(f'ds_write_b128 v5, v[{d}:{d+3}] offset:{(j * 3 + idx) * 2048 + h * 1024}')
        if kq != 0:
            for r in range(8):
                a.e(f'v_mov_b32 v{ACC3+r}, v{ACC3+8*kq+r}')
        a.label(f'K3_W{kq}')
    a.e('s_mul_i32 s23, s15, 6144')
    a.e('v_add_u32 v5, s23, v5')
    a.wait_lg0()
    a.e('s_barrier')
    RD3 = 144
    for j in range(3):
        for h in range(2):
            a.lds(f'ds_read_b128 v[{RD3+8*j+4*h}:{RD3+8*j+4*h+3}], v5 offset:{j * 2048 + h * 1024}', f'r{j}')
    for r in range(0, 8, 2):
        a.unpack(24 + r, 25 + r, X + r // 2)
    for j in range(3):
        a.wait_lg(f'r{j}')
        for r in range(0, 8, 2):
            a.e(f'v_pk_add_f32 v[{ACC3+r}:{ACC3+r+1}], v[{ACC3+r}:{ACC3+r+1}], v[{RD3+8*j+r}:{RD3+8*j+r+1}]')
    a.wait_vm('gb')
    T = 32
    for r in range(0, 8, 2):
        a.rnd2(ACC3 + r, ACC3 + r + 1, ACC3 + r, ACC3 + r + 1, T + r // 2)
    for r in range(0, 8, 2):
        a.e(f'v_pk_mul_f32 v[{ACC3+r}:{ACC3+r+1}], v[{ACC3+r}:{ACC3+r+1}], v[{8+r}:{9+r}]')
    for r in range(0, 8, 2):
        a.rnd2(ACC3 + r, ACC3 + r + 1, ACC3 + r, ACC3 + r + 1, T + r // 2)
    for r in range(0, 8, 2):
        a.e(f'v_pk_add_f32 v[{ACC3+r}:{ACC3+r+1}], v[{ACC3+r}:{ACC3+r+1}], v[{24+r}:{25+r}]')
    for r in range(0, 8, 2):
        a.e(f'v_cvt_pk_bf16_f32 v{T + r // 2}, v{ACC3+r}, v{ACC3+r+1}')
    a.vmem(f'buffer_store_dwordx4 v[{T}:{T+3}], v7, s[28:31], s51 offen', 'o')
    stamp('end')
    if STAMPS:
        a.e('s_waitcnt vmcnt(0)')
    a.stamp_out(2, 24, 14, wshift=9)
    a.label('KM_END')
    a.e('s_endpgm')
    a.end_kernel(name, 256, 72, NV)
    return f'; @launch kernel={name} grid=({KM_WG},1,1) block=(512,1,1) lds={KM_LDS}'
```

```python
import sys, os
import gen
from km import gen_km
ks = [gen.gen_k0, gen_km]
if os.environ.get('DIAG'):
    from diag import gen_diag
    ks.append(gen_diag(os.environ['DIAG']))
out = sys.argv[1] if len(sys.argv) > 1 else 'cur.s'
st = ({'k1_main_kernel': ('KM', 8), 'k0_prep_kernel': ('K0', 0)}, 's[68:69]', not os.environ.get('NOALIGN'))
open(out, 'w').write(gen.build(ks, stubs=st if gen.PAGE else None))
```

```python
import sys, re

NAME = 'adaLN_cond__ssm_conv_h3__glu_gated_reglu__prompt'

MB = 1 << 20
WS_KVT = 0 * MB
WS_QT = 2 * MB
WS_X1T = 4 * MB
WS_X1R = 6 * MB
WS_WF = 8 * MB
WS_WDF = 12 * MB
WS_HF = 16 * MB
WS_NM = 24 * MB
WS_RS = 24 * MB + 8192
WS_MOD = 24 * MB + 65536
WS_UT = 24 * MB + 131072
WS_CNT = 24 * MB + 196608
WS_SIZE = 0x10000000
WS_DBG = 32 * MB
import os
STAMPS = bool(os.environ.get('STAMPS'))
PAGE = bool(os.environ.get('PAGE'))

KA_Q, KA_K, KA_V, KA_SHIFT, KA_SSMK, KA_SSMD, KA_BX, KA_WG, KA_WU, KA_WD, KA_C, KA_WMOD, KA_OUT, KA_DBG, KA_WS = [8 * i for i in range(15)]


def _regs(tok):
    tok = tok.strip()
    m = re.match(r'^-?\|?([vas])\[(\d+):(\d+)\]\|?$', tok)
    if m:
        return [f'{m.group(1)}{i}' for i in range(int(m.group(2)), int(m.group(3)) + 1)]
    m = re.match(r'^-?\|?([vas])(\d+)\|?$', tok)
    if m:
        return [f'{m.group(1)}{m.group(2)}']
    if tok in ('vcc', 'exec', 'm0'):
        return [tok]
    return []


TRANS = ('v_exp_f32', 'v_log_f32', 'v_rcp_f32', 'v_rsq_f32', 'v_sqrt_f32', 'v_sin_f32', 'v_cos_f32')


class Hazards:
    def __init__(self):
        self.pos = 0
        self.wr = {}
        self.crd = {}
        self.st = {}

    def flush(self, a):
        need = 0
        for r, (p, k, op) in self.wr.items():
            lim = {'mfma': 8, 'dot': 3, 'trans': 2, 'valu': 5 if r[0] in 's' or r in ('vcc', 'exec') else 2, 'salu_m0': 1}.get(k, 0)
            need = max(need, lim - (self.pos - p - 1))
        for r, p in self.crd.items():
            need = max(need, 3 - (self.pos - p - 1))
        for r, p in self.st.items():
            need = max(need, 2 - (self.pos - p - 1))
        self.nop(a, need)
        self.wr, self.crd, self.st = {}, {}, {}

    def nop(self, a, n):
        while n > 0:
            k = min(n, 16)
            a.lines.append(f'    s_nop {k - 1}')
            self.pos += k
            n -= k

    def emit(self, a, l):
        code = l.split(';')[0].strip()
        parts = code.split(None, 1)
        op = parts[0]
        ops = []
        if len(parts) > 1:
            for t in parts[1].split(','):
                ops.append(t.strip().split(' ')[0])
        if op.startswith(('s_cbranch', 's_branch')):
            self.flush(a)
        is_mfma = op.startswith('v_mfma')
        is_valu = op.startswith('v_') and not is_mfma
        is_ds = op.startswith('ds_')
        is_vmem = op.startswith('buffer_') or op.startswith('global_')
        is_dpp = is_valu and ('_dpp' in op or 'quad_perm' in code or 'row_' in code)
        dst, src, srcC, data = [], [], [], []
        if is_mfma:
            dst = _regs(ops[0]); src = _regs(ops[1]) + _regs(ops[2]); srcC = _regs(ops[3])
        elif is_valu:
            if op.startswith('v_permlane') and 'swap' in op:
                dst = _regs(ops[0]) + _regs(ops[1]); src = list(dst)
            elif op.startswith('v_swap'):
                dst = _regs(ops[0]) + _regs(ops[1]); src = list(dst)
            elif op.startswith('v_cmpx'):
                dst = ['exec']; src = sum((_regs(o) for o in ops), [])
            elif op in ('v_add_co_u32', 'v_sub_co_u32', 'v_addc_co_u32', 'v_subb_co_u32'):
                dst = _regs(ops[0]) + _regs(ops[1]); src = sum((_regs(o) for o in ops[2:]), [])
            else:
                dst = _regs(ops[0]); src = sum((_regs(o) for o in ops[1:]), [])
                if op.startswith(('v_fmac', 'v_dot2c', 'v_pk_fmac', 'v_mac')) or is_dpp or op.startswith('v_writelane'):
                    src += dst
                if op.startswith('v_cndmask') and len(ops) == 3:
                    src += ['vcc']
            if op.startswith('v_dot'):
                srcC = _regs(ops[3]) if len(ops) > 3 else list(dst)
        elif is_ds:
            if op.startswith('ds_read') or op.startswith('ds_bpermute') or op.startswith('ds_permute'):
                dst = _regs(ops[0]); src = sum((_regs(o) for o in ops[1:]), [])
            else:
                src = sum((_regs(o) for o in ops), [])
        elif is_vmem:
            if '_load' in op and ' lds' not in code:
                dst = _regs(ops[0]); src = sum((_regs(o) for o in ops[1:]), [])
            elif '_load' in op:
                src = sum((_regs(o) for o in ops), []) + ['m0']
            else:
                src = sum((_regs(o) for o in ops), [])
                if 'x3' in op or 'x4' in op:
                    data = _regs(ops[0] if op.startswith('buffer_') else ops[1])
        elif op.startswith('s_') and ops:
            if not op.startswith(('s_cmp', 's_cbranch', 's_branch', 's_waitcnt', 's_nop', 's_barrier', 's_setprio', 's_endpgm')):
                dst = _regs(ops[0]); src = sum((_regs(o) for o in ops[1:]), [])
                if 'saveexec' in op:
                    dst = dst + ['exec']
        need = 0

        def req(p, n):
            nonlocal need
            need = max(need, n - (self.pos - p - 1))
        for r in set(src + srcC):
            if r not in self.wr:
                continue
            p, k, pop = self.wr[r]
            if k == 'mfma':
                if is_mfma:
                    if r in src:
                        req(p, 8)
                    elif ops[3] != pop:
                        req(p, 6)
                elif is_valu or is_ds or is_vmem:
                    req(p, 8)
            elif k == 'dot':
                if op == pop and r in srcC and r not in _regs(ops[1]) + _regs(ops[2]):
                    pass
                elif is_valu or is_mfma or is_ds or is_vmem:
                    req(p, 3)
            elif k in ('valu', 'trans'):
                if r[0] == 'v' and r != 'vcc' or r[0] == 'a':
                    if is_mfma:
                        req(p, 2)
                    if is_dpp or op.startswith('v_permlane'):
                        req(p, 2)
                    if op.startswith(('v_readlane', 'v_readfirstlane')):
                        req(p, 1)
                    if k == 'trans' and is_valu and op not in TRANS:
                        req(p, 1)
                else:
                    if is_vmem:
                        req(p, 5)
                    if is_valu:
                        req(p, 4 if op.startswith(('v_readlane', 'v_writelane')) else 2)
            elif k == 'salu_m0':
                req(p, 1)
        if 'exec' in self.wr and self.wr['exec'][1] == 'valu':
            p = self.wr['exec'][0]
            if is_mfma or op.startswith(('v_readlane', 'v_readfirstlane', 'v_writelane', 'v_permlane')):
                req(p, 4)
            if is_dpp:
                req(p, 5)
        for r in dst:
            if r in self.wr:
                p, k, pop = self.wr[r]
                if k == 'mfma' and not is_mfma:
                    req(p, 8)
                if k == 'mfma' and is_mfma and ops[0] != pop:
                    req(p, 8)
                if k == 'dot' and op != pop:
                    req(p, 3)
            if is_valu and r in self.crd:
                req(self.crd[r], 3)
            if r in self.st:
                req(self.st[r], 2 if is_valu else 1)
        self.nop(a, need)
        a.lines.append('    ' + l)
        here = self.pos
        if op == 's_nop':
            self.pos += int(ops[0]) + 1
        else:
            self.pos += 1
        for r in dst:
            if is_mfma:
                self.wr[r] = (here, 'mfma', ops[0])
            elif op.startswith('v_dot'):
                self.wr[r] = (here, 'dot', op)
            elif op in TRANS:
                self.wr[r] = (here, 'trans', op)
            elif is_valu:
                self.wr[r] = (here, 'valu', op)
            elif r == 'm0':
                self.wr[r] = (here, 'salu_m0', op)
            else:
                self.wr.pop(r, None)
        if is_mfma:
            for r in srcC:
                self.crd[r] = here
        for r in data:
            self.st[r] = here
        if op.startswith(('s_cbranch', 's_branch')):
            pass


class Asm:
    def __init__(self):
        self.lines = []
        self.vm = []
        self.lg = []
        self.hz = Hazards()
        self.nvm = 0

    def e(self, s):
        for l in s.strip('\n').split('\n'):
            l = l.strip()
            if not l:
                continue
            self.hz.emit(self, l)

    def label(self, s):
        self.hz.flush(self)
        self.lines.append(s + ':')

    def raw(self, s):
        self.lines.append(s)

    def vmem(self, s, tag=None):
        self.e(s)
        self.vm.append(tag)
        self.nvm += 1

    def lds(self, s, tag=None):
        self.e(s)
        self.lg.append(tag)

    def wait_vm(self, tag):
        idx = max(i for i, t in enumerate(self.vm) if t == tag)
        n = len(self.vm) - 1 - idx
        assert n <= 63
        self.e(f's_waitcnt vmcnt({n})')
        self.vm = self.vm[idx + 1:]

    def wait_lg(self, tag):
        idx = max(i for i, t in enumerate(self.lg) if t == tag)
        n = len(self.lg) - 1 - idx
        if n > 15:
            n = 15
            idx = len(self.lg) - 1 - 15
            self.e(f's_waitcnt lgkmcnt({n})')
            self.lg = self.lg[idx + 1:]
            return self.wait_lg(tag) if tag in self.lg else None
        self.e(f's_waitcnt lgkmcnt({n})')
        self.lg = self.lg[idx + 1:]

    def wait_all(self):
        self.e('s_waitcnt vmcnt(0) lgkmcnt(0)')
        self.vm = []
        self.lg = []

    def wait_vm0(self):
        self.e('s_waitcnt vmcnt(0)')
        self.vm = []

    def wait_lg0(self):
        self.e('s_waitcnt lgkmcnt(0)')
        self.lg = []

    def srd(self, d, base, nbytes):
        self.e(f's_mov_b32 s{d}, s{base}')
        self.e(f's_and_b32 s{d+1}, s{base+1}, 0xffff')
        self.e(f's_mov_b32 s{d+2}, {nbytes}')
        self.e(f's_mov_b32 s{d+3}, 0x00020000')

    def rnd2(self, lo, hi, a, b, tmp):
        self.e(f'v_cvt_pk_bf16_f32 v{tmp}, v{a}, v{b}')
        self.e(f'v_lshlrev_b32 v{lo}, 16, v{tmp}')
        self.e(f'v_and_b32 v{hi}, 0xffff0000, v{tmp}')

    def unpack(self, lo, hi, src):
        self.e(f'v_lshlrev_b32 v{lo}, 16, v{src}')
        self.e(f'v_and_b32 v{hi}, 0xffff0000, v{src}')

    def stamp(self, k):
        if STAMPS:
            self.e(f's_memrealtime s[{70+2*k}:{71+2*k}]')

    def stamp_out(self, kern, srd, n, tid='v0', wshift=8):
        if not STAMPS:
            return
        self.stamp(n)
        self.e('s_mov_b64 exec, -1')
        self.e('s_waitcnt lgkmcnt(0)')
        self.e(f'v_lshrrev_b32 v1, 6, {tid}')
        self.e(f'v_and_b32 v2, 63, {tid}')
        self.e('v_lshlrev_b32 v1, 6, v1')
        self.e('v_lshl_add_u32 v1, v2, 2, v1')
        self.e('v_mov_b32 v3, 0')
        for k in range(n + 1):
            self.e(f'v_writelane_b32 v3, s{70+2*k}, {k}')
        self.e(f's_lshl_b32 s68, s2, {wshift}')
        self.e(f's_add_u32 s68, s68, {WS_DBG + kern * MB}')
        self.e('v_cmp_gt_u32 vcc, 16, v2')
        self.e('s_and_saveexec_b64 s[66:67], vcc')
        self.e(f'buffer_store_dword v3, v1, s[{srd}:{srd+3}], s68 offen')

    def touch(self, wreg, tag, targets, link='s[68:69]'):
        if not PAGE:
            return
        self.e('s_waitcnt lgkmcnt(0)')
        self.lg = []
        self.e('s_mov_b64 exec, 0')
        for w, t in enumerate(targets):
            if t is None:
                continue
            self.e(f's_cmp_lg_u32 {wreg}, {w}')
            self.e(f's_cbranch_scc1 TCH{tag}{w}')
            self.e(f's_call_b64 {link}, {t}')
            self.label(f'TCH{tag}{w}')
        self.e('s_mov_b64 exec, -1')
        lo = int(link[2:].split(':')[0])
        self.e(f'v_readfirstlane_b32 s{lo}, v0')

    def begin_kernel(self, name, page=False):
        self.raw('.text')
        self.raw(f'.globl {name}')
        if page:
            self.raw('.p2align 12')
        self.raw('.p2align 8')
        self.raw(f'.type {name},@function')
        self.hz = Hazards()
        self.label(name)
        self.vm = []
        self.lg = []

    def end_kernel(self, name, vgpr, sgpr, accum):
        self.raw('.section .rodata,"a"')
        self.raw('.p2align 6')
        self.raw(f'.amdhsa_kernel {name}')
        self.raw(f'  .amdhsa_next_free_vgpr {vgpr}')
        self.raw(f'  .amdhsa_next_free_sgpr {102 if STAMPS else sgpr}')
        self.raw(f'  .amdhsa_accum_offset {accum}')
        self.raw('  .amdhsa_group_segment_fixed_size 0')
        self.raw('  .amdhsa_kernarg_size 120')
        self.raw('  .amdhsa_user_sgpr_count 2')
        self.raw('  .amdhsa_user_sgpr_kernarg_segment_ptr 1')
        self.raw('  .amdhsa_system_sgpr_workgroup_id_x 1')
        self.raw('  .amdhsa_float_denorm_mode_32 3')
        self.raw('.end_amdhsa_kernel')

    def text(self):
        return '\n'.join(self.lines) + '\n'


def row_reduce_add(a, regs):
    for mod in ('quad_perm:[1,0,3,2]', 'quad_perm:[2,3,0,1]', 'row_half_mirror', 'row_mirror'):
        for r in regs:
            a.e(f'v_add_f32_dpp v{r}, v{r}, v{r} {mod} row_mask:0xf bank_mask:0xf')
        if len(regs) < 3:
            a.e(f's_nop {2 - len(regs)}' if len(regs) < 2 else 's_nop 0')


def wave_total(a, regs, sbase):
    a.e('s_nop 0')
    for i, r in enumerate(regs):
        for k in range(4):
            a.e(f'v_readlane_b32 s{sbase + 4 * i + k}, v{r}, {16 * k}')
    a.e('s_nop 1')
    for i, r in enumerate(regs):
        a.e(f'v_mov_b32 v{r}, s{sbase + 4 * i}')
    for k in range(1, 4):
        for i, r in enumerate(regs):
            a.e(f'v_add_f32 v{r}, s{sbase + 4 * i + k}, v{r}')


K0_TILES = 256
K0_MODWG = 96
K0_WDWG = 64
K0_LDS = 28672
K0_TW = int(os.environ.get('TW', '16')) if PAGE and not os.environ.get('NOTW') else 0


def gen_k0(a):
    name = 'k0_prep_kernel'
    a.begin_kernel(name, page=PAGE)
    a.e(f's_cmp_ge_u32 s2, {K0_TILES + K0_MODWG + K0_WDWG}')
    a.e('s_cbranch_scc1 K0_TWG')
    a.e(f's_cmp_ge_u32 s2, {K0_TILES + K0_MODWG}')
    a.e('s_cbranch_scc1 K0_WD')
    a.e(f's_cmp_ge_u32 s2, {K0_TILES}')
    a.e('s_cbranch_scc1 K0_MOD')
    a.stamp(0)
    a.e(f's_load_dwordx4 s[4:7], s[0:1], {KA_Q}')
    a.e(f's_load_dwordx4 s[8:11], s[0:1], {KA_V}')
    a.e(f's_load_dwordx2 s[12:13], s[0:1], {KA_WS}')
    a.e('s_lshr_b32 s14, s2, 3')
    a.e('s_and_b32 s15, s2, 7')
    a.e('v_and_b32 v1, 31, v0')
    a.e('v_lshrrev_b32 v2, 5, v0')
    a.e('s_lshl_b32 s16, s14, 6')
    a.e('v_lshlrev_b32 v3, 3, v2')
    a.e('v_add_u32 v3, s16, v3')
    a.e('s_lshl_b32 s17, s15, 7')
    a.e('v_lshlrev_b32 v4, 2, v1')
    a.e('v_add_u32 v4, s17, v4')
    a.e('v_lshl_add_u32 v5, v3, 10, v4')
    a.e('v_subrev_u32 v6, 3072, v5')
    a.e('v_subrev_u32 v7, 2048, v5')
    a.e('v_subrev_u32 v8, 1024, v5')
    a.e('v_add_u32 v9, 4096, v5')
    a.e('v_lshlrev_b32 v44, 2, v4')
    a.e('v_lshrrev_b32 v45, 6, v0')
    a.e('v_and_b32 v46, 63, v0')
    a.e('s_lshl_b32 s18, s2, 3')
    a.e('v_lshlrev_b32 v47, 1, v45')
    a.e('v_add_u32 v47, s18, v47')
    a.e('v_lshlrev_b32 v48, 4, v46')
    a.e('v_lshl_add_u32 v48, v47, 10, v48')
    a.e('s_waitcnt lgkmcnt(0)')
    a.srd(20, 4, 2097152)
    a.srd(24, 6, 2097152)
    a.srd(28, 8, 2097152)
    a.srd(32, 10, 4096)
    a.srd(36, 12, WS_SIZE)
    a.vmem('buffer_load_dwordx4 v[40:43], v44, s[32:35], 0 offen', 'sh')
    for i, r in enumerate((6, 7, 8)):
        a.vmem(f'buffer_load_dword v{10 + i}, v{r}, s[24:27], 0 offen', 'k')
    for i in range(8):
        a.vmem(f'buffer_load_dword v{13 + i}, v{5 if i < 4 else 9}, s[24:27], 0 offen offset:{1024 * (i & 3)}', 'k')
    for i in range(8):
        a.vmem(f'buffer_load_dword v{21 + i}, v{5 if i < 4 else 9}, s[28:31], 0 offen offset:{1024 * (i & 3)}', 'v')
    for i in range(8):
        a.vmem(f'buffer_load_dword v{29 + i}, v{5 if i < 4 else 9}, s[20:23], 0 offen offset:{1024 * (i & 3)}', 'q')
    a.vmem('buffer_load_dwordx4 v[52:55], v48, s[20:23], 0 offen', 'st')
    a.vmem('buffer_load_dwordx4 v[56:59], v48, s[20:23], 0 offen offset:1024', 'st')
    a.e('v_lshlrev_b32 v49, 11, v4')
    a.e('v_lshlrev_b32 v50, 1, v3')
    a.e('v_add_u32 v51, v49, v50')
    a.e(f'v_add_u32 v51, {WS_QT}, v51')
    a.e('v_sub_u32 v50, 4080, v50')
    a.e('v_add_u32 v49, v49, v50')
    if PAGE:
        a.e('v_readfirstlane_b32 s19, v45')
    a.touch('s19', 't', [f'@N{w}' for w in range(4)])
    a.wait_vm('sh')
    W0, W1 = 60, 64
    a.unpack(W0 + 0, W0 + 1, 40)
    a.unpack(W0 + 2, W0 + 3, 41)
    a.unpack(W1 + 0, W1 + 1, 42)
    a.unpack(W1 + 2, W1 + 3, 43)
    a.wait_vm('k')
    a.stamp(1)
    KL, KH = 70, 82
    for i in range(11):
        a.unpack(KL + i, KH + i, 10 + i)
    a.wait_vm('v')
    R = 100
    for i in range(8):
        A0, A1, P0, P1, T = 94, 95, 96, 97, 98
        a.e(f'v_mul_f32 v{P0}, v{KL + i}, v{W0 + 3}')
        a.e(f'v_mul_f32 v{P1}, v{KH + i}, v{W1 + 3}')
        a.rnd2(A0, A1, P0, P1, T)
        for t in range(1, 4):
            a.e(f'v_mul_f32 v{P0}, v{KL + i + t}, v{W0 + 3 - t}')
            a.e(f'v_mul_f32 v{P1}, v{KH + i + t}, v{W1 + 3 - t}')
            a.rnd2(P0, P1, P0, P1, T)
            a.e(f'v_add_f32 v{A0}, v{A0}, v{P0}')
            a.e(f'v_add_f32 v{A1}, v{A1}, v{P1}')
            a.rnd2(A0, A1, A0, A1, T)
        a.unpack(P0, P1, 21 + i)
        a.e(f'v_mul_f32 v{P0}, v{A0}, v{P0}')
        a.e(f'v_mul_f32 v{P1}, v{A1}, v{P1}')
        a.e(f'v_cvt_pk_bf16_f32 v{R + i}, v{P0}, v{P1}')
    a.e('s_mov_b32 s40, 0x05040100')
    a.e('s_mov_b32 s41, 0x07060302')
    O = 108
    for j in range(4):
        a.e(f'v_perm_b32 v{O + j}, v{R + 6 - 2 * j}, v{R + 7 - 2 * j}, s40')
        a.e(f'v_perm_b32 v{O + 4 + j}, v{R + 6 - 2 * j}, v{R + 7 - 2 * j}, s41')
    a.vmem(f'buffer_store_dwordx4 v[{O}:{O + 3}], v49, s[36:39], 0 offen', 'o')
    a.e('v_add_u32 v50, 4096, v49')
    a.vmem(f'buffer_store_dwordx4 v[{O + 4}:{O + 7}], v50, s[36:39], 0 offen', 'o')
    a.wait_vm('q')
    O2 = 116
    for j in range(4):
        a.e(f'v_perm_b32 v{O2 + j}, v{29 + 2 * j + 1}, v{29 + 2 * j}, s40')
        a.e(f'v_perm_b32 v{O2 + 4 + j}, v{29 + 2 * j + 1}, v{29 + 2 * j}, s41')
    a.vmem(f'buffer_store_dwordx4 v[{O2}:{O2 + 3}], v51, s[36:39], 0 offen', 'o')
    a.e('v_add_u32 v50, 4096, v51')
    a.vmem(f'buffer_store_dwordx4 v[{O2 + 4}:{O2 + 7}], v50, s[36:39], 0 offen', 'o')
    a.wait_vm('st')
    X = 70
    for r in range(2):
        for j in range(4):
            a.unpack(X + 8 * r + 2 * j, X + 8 * r + 2 * j + 1, 52 + 4 * r + j)
    S0, S1 = 90, 91
    for r, S in ((0, S0), (1, S1)):
        a.e(f'v_add_f32 v{S}, v{X + 8 * r}, v{X + 8 * r + 1}')
        for j in range(2, 8):
            a.e(f'v_add_f32 v{S}, v{S}, v{X + 8 * r + j}')
    a.e('s_nop 1')
    row_reduce_add(a, [S0, S1])
    wave_total(a, [S0, S1], 44)
    a.e(f'v_mul_f32 v{S0}, 0x3b000000, v{S0}')
    a.e(f'v_mul_f32 v{S1}, 0x3b000000, v{S1}')
    Q0, Q1 = 92, 93
    for r, S, Q in ((0, S0, Q0), (1, S1, Q1)):
        for j in range(8):
            a.e(f'v_sub_f32 v{X + 8 * r + j}, v{X + 8 * r + j}, v{S}')
        a.e(f'v_mul_f32 v{Q}, v{X + 8 * r}, v{X + 8 * r}')
        for j in range(1, 8):
            a.e(f'v_fmac_f32 v{Q}, v{X + 8 * r + j}, v{X + 8 * r + j}')
    a.e('s_nop 1')
    row_reduce_add(a, [Q0, Q1])
    wave_total(a, [Q0, Q1], 44)
    a.e(f'v_mul_f32 v{Q0}, 0x3b000000, v{Q0}')
    a.e(f'v_mul_f32 v{Q1}, 0x3b000000, v{Q1}')
    a.rnd2(Q0, Q1, Q0, Q1, 94)
    a.e(f'v_add_f32 v{Q0}, 0x3727c5ac, v{Q0}')
    a.e(f'v_add_f32 v{Q1}, 0x3727c5ac, v{Q1}')
    a.rnd2(Q0, Q1, Q0, Q1, 94)
    a.e(f'v_sqrt_f32 v{Q0}, v{Q0}')
    a.e(f'v_sqrt_f32 v{Q1}, v{Q1}')
    a.rnd2(Q0, Q1, Q0, Q1, 94)
    a.rnd2(S0, S1, S0, S1, 94)
    a.e(f'v_rcp_f32 v94, v{Q0}')
    a.e(f'v_rcp_f32 v95, v{Q1}')
    a.e(f'v_xor_b32 v{S0}, 0x80000000, v{S0}')
    a.e(f'v_xor_b32 v{S1}, 0x80000000, v{S1}')
    a.e(f'v_fma_f32 v{Q0}, -v{Q0}, v94, 1.0')
    a.e(f'v_fma_f32 v{Q1}, -v{Q1}, v95, 1.0')
    a.e(f'v_fmac_f32 v94, v{Q0}, v94')
    a.e(f'v_fmac_f32 v95, v{Q1}, v95')
    a.e('v_lshlrev_b32 v96, 2, v47')
    a.e(f'v_add_u32 v96, {WS_NM}, v96')
    a.e(f'v_add_u32 v97, {WS_RS - WS_NM}, v96')
    a.e('v_cmp_eq_u32 vcc, 0, v46')
    a.e('s_and_saveexec_b64 s[42:43], vcc')
    a.vmem(f'buffer_store_dwordx2 v[{S0}:{S1}], v96, s[36:39], 0 offen', 'o')
    a.vmem('buffer_store_dwordx2 v[94:95], v97, s[36:39], 0 offen', 'o')
    a.stamp(2)
    if STAMPS:
        a.e('s_waitcnt vmcnt(0)')
    a.stamp_out(0, 36, 3)
    a.e('s_endpgm')
    a.label('K0_MOD')
    a.vm = []
    a.e(f's_load_dwordx4 s[4:7], s[0:1], {KA_C}')
    a.e(f's_load_dwordx2 s[12:13], s[0:1], {KA_WS}')
    a.e(f's_sub_u32 s14, s2, {K0_TILES}')
    a.e('s_and_b32 s15, s14, 7')
    a.e('s_lshr_b32 s16, s14, 3')
    a.e('s_mul_i32 s15, s15, 12')
    a.e('s_add_u32 s15, s15, s16')
    a.e('s_lshl_b32 s17, s15, 6')
    a.e('v_and_b32 v1, 63, v0')
    a.e('v_lshrrev_b32 v2, 6, v0')
    a.e('v_lshrrev_b32 v3, 2, v1')
    a.e('v_and_b32 v4, 3, v1')
    a.e('v_lshl_add_u32 v5, v2, 7, v3')
    a.e('s_movk_i32 s18, 6144')
    a.e('v_mul_lo_u32 v6, v5, s18')
    a.e('v_lshl_add_u32 v6, v4, 4, v6')
    a.e('v_add_u32 v6, s17, v6')
    a.e('v_lshlrev_b32 v7, 1, v5')
    a.e('s_waitcnt lgkmcnt(0)')
    a.srd(20, 4, 1024)
    a.srd(24, 6, 3145728)
    a.srd(36, 12, WS_SIZE)
    for i in range(8):
        a.vmem(f'buffer_load_ushort v{10 + i}, v7, s[20:23], 0 offen offset:{32 * i}', 'c')
    for i in range(8):
        a.e(f's_mov_b32 s{44 + i}, {98304 * i}')
    for i in range(8):
        a.vmem(f'buffer_load_dwordx4 v[{20 + 4 * i}:{23 + 4 * i}], v6, s[24:27], s{44 + i} offen', f'w{i}')
    if PAGE:
        a.e('v_readfirstlane_b32 s19, v2')
    a.touch('s19', 'm', [f'@N{w}' for w in range(2)])
    a.wait_vm('c')
    for i in range(8):
        a.e(f'v_lshlrev_b32 v{10 + i}, 16, v{10 + i}')
        a.e(f'v_mul_f32 v{60 + i}, 0xbfb8aa3b, v{10 + i}')
    for i in range(8):
        a.e(f'v_exp_f32 v{60 + i}, v{60 + i}')
    a.e('s_nop 0')
    for i in range(8):
        a.e(f'v_add_f32 v{60 + i}, 1.0, v{60 + i}')
    for i in range(8):
        a.e(f'v_rcp_f32 v{60 + i}, v{60 + i}')
    a.e('s_nop 0')
    for i in range(8):
        a.e(f'v_mul_f32 v{60 + i}, v{10 + i}, v{60 + i}')
    for i in range(0, 8, 2):
        a.rnd2(60 + i, 61 + i, 60 + i, 61 + i, 68)
    ACC = 72
    for i in range(8):
        a.wait_vm(f'w{i}')
        for j in range(4):
            a.unpack(80, 81, 20 + 4 * i + j)
            if i == 0:
                a.e(f'v_mul_f32 v{ACC + 2 * j}, v80, v60')
                a.e(f'v_mul_f32 v{ACC + 2 * j + 1}, v81, v60')
            else:
                a.e(f'v_fmac_f32 v{ACC + 2 * j}, v80, v{60 + i}')
                a.e(f'v_fmac_f32 v{ACC + 2 * j + 1}, v81, v{60 + i}')
    a.e('s_nop 1')
    for mod in ('row_ror:4', 'row_ror:8'):
        for j in range(8):
            a.e(f'v_add_f32_dpp v{ACC + j}, v{ACC + j}, v{ACC + j} {mod} row_mask:0xf bank_mask:0xf')
    a.e('v_lshrrev_b32 v8, 4, v1')
    a.e('v_lshl_add_u32 v8, v2, 2, v8')
    a.e('v_lshl_add_u32 v8, v8, 2, v4')
    a.e('v_lshlrev_b32 v8, 5, v8')
    a.e('v_and_b32 v9, 12, v1')
    a.e('v_cmp_eq_u32 vcc, 0, v9')
    a.e('s_and_saveexec_b64 s[42:43], vcc')
    a.e(f'ds_write_b128 v8, v[{ACC}:{ACC + 3}]')
    a.e(f'ds_write_b128 v8, v[{ACC + 4}:{ACC + 7}] offset:16')
    a.e('s_mov_b64 exec, s[42:43]')
    a.e('s_waitcnt lgkmcnt(0)')
    a.e('s_barrier')
    a.e('v_cmp_gt_u32 vcc, 32, v0')
    a.e('s_and_saveexec_b64 s[42:43], vcc')
    a.e('s_cbranch_execz K0_END')
    a.e('v_lshlrev_b32 v8, 2, v0')
    for i in range(16):
        a.e(f'ds_read_b32 v{20 + i}, v8 offset:{128 * i}')
    a.e('s_waitcnt lgkmcnt(0)')
    for i in range(1, 16):
        a.e(f'v_add_f32 v20, v20, v{20 + i}')
    a.rnd2(20, 21, 20, 20, 22)
    a.e('s_lshl_b32 s17, s15, 7')
    a.e(f's_add_u32 s17, s17, {WS_MOD}')
    a.e('buffer_store_dword v20, v8, s[36:39], s17 offen')
    a.e('s_endpgm')
    a.label('K0_WD')
    a.vm, a.lg = [], []
    a.e(f's_load_dwordx2 s[4:5], s[0:1], {KA_WD}')
    a.e(f's_load_dwordx2 s[8:9], s[0:1], {KA_WS}')
    a.e(f's_sub_u32 s10, s2, {K0_TILES + K0_MODWG}')
    a.e('s_lshr_b32 s11, s10, 2')
    a.e('s_and_b32 s12, s10, 3')
    a.e('v_lshrrev_b32 v2, 6, v0')
    a.e('v_and_b32 v1, 63, v0')
    a.e('v_readfirstlane_b32 s13, v2')
    a.e('v_lshrrev_b32 v3, 4, v1')
    a.e('v_and_b32 v4, 15, v1')
    a.e('v_lshlrev_b32 v5, 4, v4')
    a.e('v_lshl_add_u32 v5, v3, 10, v5')
    a.e('v_lshlrev_b32 v18, 4, v1')
    a.e('s_mul_i32 s14, s11, 114688')
    a.e('s_lshl_b32 s15, s12, 8')
    a.e('s_add_u32 s14, s14, s15')
    a.e('s_mul_i32 s15, s13, 28672')
    a.e('s_add_u32 s14, s14, s15')
    a.e('s_mul_i32 s16, s13, 7168')
    a.e('s_waitcnt lgkmcnt(0)')
    a.srd(20, 4, 1792 * 512 * 2)
    a.srd(24, 8, WS_SIZE)
    for i in range(7):
        a.e(f's_add_u32 m0, s16, {1024 * i}')
        a.e(f's_add_u32 s17, s14, {4096 * i}')
        a.vmem('buffer_load_dwordx4 v5, s[20:23], s17 offen lds', 'w')
    a.e('s_cmp_lg_u32 s10, 0')
    a.e('s_cbranch_scc1 K0_WD1')
    a.e('v_lshlrev_b32 v6, 4, v0')
    for i in range(4):
        a.e(f'v_mov_b32 v{20+i}, 0')
    a.e(f's_mov_b32 s17, {WS_CNT}')
    for i in range(3):
        a.e(f's_mov_b32 s17, {WS_CNT + 4096 * i}')
        a.e('buffer_store_dwordx4 v[20:23], v6, s[24:27], s17 offen')
    a.label('K0_WD1')
    a.e('v_bfe_u32 v6, v1, 2, 2')
    a.e('v_and_b32 v7, 3, v1')
    a.e('v_lshl_add_u32 v6, v3, 2, v6')
    a.e('v_lshlrev_b32 v6, 8, v6')
    a.e('v_lshl_add_u32 v6, v7, 4, v6')
    a.e('s_lshr_b32 s15, s13, 1')
    a.e('s_and_b32 s16, s13, 1')
    a.e('s_lshl_b32 s17, s15, 6')
    a.e('s_lshl_b32 s18, s16, 3')
    a.e('s_add_u32 s17, s17, s18')
    a.e('v_add_u32 v8, s17, v6')
    a.e('s_lshl_b32 s17, s15, 7')
    a.e('s_lshl_b32 s18, s16, 6')
    a.e('s_add_u32 s17, s17, s18')
    a.e('v_add_u32 v9, s17, v6')
    a.e('s_lshl_b32 s17, s12, 5')
    a.e('s_add_u32 s17, s17, s11')
    a.e('s_mul_i32 s17, s17, 14336')
    a.e(f's_add_u32 s17, s17, {WS_WDF}')
    a.e('s_lshl_b32 s18, s13, 10')
    a.e('s_add_u32 s18, s18, s17')
    a.e('s_mul_i32 s19, s15, 229376')
    a.e('s_add_u32 s19, s19, s17')
    a.e('s_lshl_b32 s28, s16, 10')
    a.e('s_add_u32 s19, s19, s28')
    a.e('s_add_u32 s19, s19, 12288')
    a.touch('s13', 'w', ['@N0'])
    a.wait_vm0()
    a.e('s_barrier')
    n = 0
    for dbl in range(2):
        for kb in range(3):
            for half in range(2):
                a.lds(f'ds_read_b64_tr_b16 v[{32+4*n+2*half}:{33+4*n+2*half}], v8 offset:{(32*kb+16*half)*256 + 128*dbl}', f't{n}')
            n += 1
    for half in range(2):
        a.lds(f'ds_read_b64_tr_b16 v[{32+4*n+2*half}:{33+4*n+2*half}], v9 offset:{96*256 + 8*half}', f't{n}')
    n = 0
    for dbl in range(2):
        for kb in range(3):
            a.e(f's_add_u32 s28, s18, {dbl * 229376 + kb * 4096}')
            a.wait_lg(f't{n}')
            a.vmem(f'buffer_store_dwordx4 v[{32+4*n}:{35+4*n}], v18, s[24:27], s28 offen', 'o')
            n += 1
    a.wait_lg(f't{n}')
    a.vmem(f'buffer_store_dwordx4 v[{32+4*n}:{35+4*n}], v18, s[24:27], s19 offen', 'o')
    a.label('K0_END')
    a.e('s_endpgm')
    a.label('K0_TWG')
    if K0_TW:
        a.e(f's_cmp_ge_u32 s2, {K0_TILES + K0_MODWG + K0_WDWG + K0_TW}')
        a.e('s_cbranch_scc1 K0_END')
        a.e('v_lshrrev_b32 v2, 6, v0')
        a.e('v_readfirstlane_b32 s13, v2')
        if os.environ.get('TW2'):
            a.touch('s13', 'k', [f'KMPG{w}' for w in range(4)])
            a.touch('s13', 'l', [f'KMPG{w + 4}' for w in range(4)])
        else:
            a.e('s_lshr_b32 s10, s2, 1')
            a.e('s_and_b32 s10, s10, 4')
            a.e('s_add_u32 s13, s13, s10')
            a.touch('s13', 'k', [f'KMPG{w}' for w in range(8)])
    a.e('s_endpgm')
    a.end_kernel(name, 128, 72, 128)
    return f'; @launch kernel={name} grid=({K0_TILES + K0_MODWG + K0_WDWG + K0_TW},1,1) block=(256,1,1) lds={K0_LDS}'


HEADER = open('cdna_kernels/' + NAME + '.s.ref').read().split('; Override launch')[0]


def _sizes(text):
    import subprocess, tempfile
    body = '.amdgcn_target "amdgcn-amd-amdhsa--gfx950"\n' + text
    open('_sz.s', 'w').write(body)
    r = subprocess.run(['llvm-mc', '-triple=amdgcn-amd-amdhsa', '-mcpu=gfx950', '-show-encoding', '_sz.s'],
                       capture_output=True, text=True)
    assert r.returncode == 0, r.stderr[:2000]
    return [l.split('encoding: [')[1].count(',') + 1 for l in r.stdout.split('\n') if 'encoding: [' in l]


PROMO = ('v_mov_b32', 'v_add_f32', 'v_mul_f32', 'v_sub_f32', 'v_lshlrev_b32', 'v_lshrrev_b32', 'v_and_b32', 'v_add_u32',
         'v_sub_u32', 'v_subrev_u32', 'v_xor_b32', 'v_or_b32', 'v_max_f32', 'v_fmac_f32', 'v_exp_f32', 'v_rcp_f32', 'v_sqrt_f32',
         'v_cmp_eq_u32', 'v_cmp_gt_u32', 'v_cndmask_b32')


def layout(lines, kernels, link, align=True):
    names = set()
    for l in lines:
        m = re.search(r'(@N\d+|[A-Z0-9]+PG\d+)\b', l)
        if m and l.startswith('    '):
            names.add(m.group(1))
    tmp = [re.sub(r'@N(\d+)', r'XXN\1', l) for l in lines] + ['.text'] + [n.replace('@N', 'XXN') + ':' for n in names]
    sz = _sizes('\n'.join(tmp) + '\n')
    ins = [i for i, l in enumerate(lines) if l.startswith('    ')]
    assert len(ins) == len(sz)
    size = dict(zip(ins, sz))
    out = []
    cur, off, nstub, unsafe = None, 0, 0, False
    run = []
    nst = {}

    def close():
        pre, stride = kernels[cur]
        nst[cur] = nstub
        out.append(['.text', 0])
        for k in range(nstub, 64):
            out.append([f'{pre}PG{k}:', 0])
        out.append([f'{pre}RET:', 0])
        out.append([f'    s_setpc_b64 {link}', 4])
    for i, l in enumerate(lines):
        if l[:-1] in kernels and l.endswith(':'):
            cur, off, nstub, unsafe, run = l[:-1], 0, 0, False, []
            out.append([l, 0])
            continue
        if l.startswith('.section') and cur:
            close()
            cur = None
        if not l.startswith('    ') or cur is None:
            out.append([l, 0])
            continue
        pre, stride = kernels[cur]
        op = l.split()[0]
        s_ = size[i]
        if off >= 1024 * nstub + (8 if nstub == 0 else 0) and not unsafe:
            nxt = f'{pre}PG{nstub + stride}' if stride else f'{pre}RET'
            out.append([f'{pre}PG{nstub}:', 0])
            out.append([f'    s_cbranch_execz {nxt}', 4])
            run.append((len(out) - 1, off, False))
            off += 4
            nstub += 1
        if s_ == 8 and off % 8 == 4 and align:
            cand = [r for r in run if r[2] and r[1] % 8 == 0]
            if cand:
                j = cand[-1][0]
                t = out[j][0]
                o = t.split()[0]
                out[j][0] = t.replace(o, o + '_e64', 1)
                off += 4
            else:
                n, k = 0, i
                while k < len(lines) and (not lines[k].startswith('    ') or size[k] == 8):
                    n += lines[k].startswith('    v_')
                    if 'v_mfma' in lines[k]:
                        n = -100
                    k += 1
                if n >= 4:
                    out.append(['    s_nop 0', 4])
                    off += 4
        l2 = re.sub(r'@N(\d+)', lambda m: f'{pre}PG{off // 1024 + 1 + int(m.group(1))}', l)
        out.append([l2, s_])
        if s_ == 4:
            promo = op in PROMO and 'dpp' not in l and 'sdwa' not in l
            run.append((len(out) - 1, off, promo))
        else:
            run = []
        off += s_
        wex = op.startswith('s_') and len(l.split()) > 1 and l.split()[1].startswith('exec')
        if 'saveexec' in op or (wex and not re.search(r'exec, (-1|0x[0-9a-f]+|[1-9][0-9]*|s\[(36:37|42:43|46:47|64:65)\])$', l.strip())):
            unsafe = True
        elif wex:
            unsafe = False
        if op == 's_endpgm':
            unsafe = False
    return [o[0] for o in out], nst


def build(kernels, stubs=None):
    a = Asm()
    launches = [k(a) for k in kernels]
    if stubs:
        a.lines, nst = layout(a.lines, *stubs)
        print('stubs', nst)
    return HEADER + '\n'.join(launches) + '\n.amdgcn_target "amdgcn-amd-amdhsa--gfx950"\n' + a.text()


if __name__ == '__main__':
    ks = [gen_k0]
    out = sys.argv[1] if len(sys.argv) > 1 else 'cur.s'
    open(out, 'w').write(build(ks))
```

```python
import sys, re

NAME = 'adaLN_cond__ssm_conv_h3__glu_gated_reglu__prompt'

MB = 1 << 20
WS_KVT = 0 * MB
WS_QT = 2 * MB
WS_X1T = 4 * MB
WS_X1R = 6 * MB
WS_WF = 8 * MB
WS_WDF = 12 * MB
WS_HF = 16 * MB
WS_NM = 24 * MB
WS_RS = 24 * MB + 8192
WS_MOD = 24 * MB + 65536
WS_UT = 24 * MB + 131072
WS_CNT = 24 * MB + 196608
WS_SIZE = 0x10000000
WS_DBG = 32 * MB
import os
STAMPS = bool(os.environ.get('STAMPS'))
PAGE = bool(os.environ.get('PAGE'))
NEWWD = bool(os.environ.get('NEWWD'))
PF = int(os.environ.get('PF', '0'))
K0ST = os.environ.get('K0ST', '')

KA_Q, KA_K, KA_V, KA_SHIFT, KA_SSMK, KA_SSMD, KA_BX, KA_WG, KA_WU, KA_WD, KA_C, KA_WMOD, KA_OUT, KA_DBG, KA_WS = [8 * i for i in range(15)]


def _regs(tok):
    tok = tok.strip()
    m = re.match(r'^-?\|?([vas])\[(\d+):(\d+)\]\|?$', tok)
    if m:
        return [f'{m.group(1)}{i}' for i in range(int(m.group(2)), int(m.group(3)) + 1)]
    m = re.match(r'^-?\|?([vas])(\d+)\|?$', tok)
    if m:
        return [f'{m.group(1)}{m.group(2)}']
    if tok in ('vcc', 'exec', 'm0'):
        return [tok]
    return []


TRANS = ('v_exp_f32', 'v_log_f32', 'v_rcp_f32', 'v_rsq_f32', 'v_sqrt_f32', 'v_sin_f32', 'v_cos_f32')


class Hazards:
    def __init__(self):
        self.pos = 0
        self.wr = {}
        self.crd = {}
        self.st = {}
        self.noflush = False

    def flush(self, a):
        need = 0
        for r, (p, k, op) in self.wr.items():
            lim = {'mfma': 8, 'dot': 3, 'trans': 2, 'valu': 5 if r[0] in 's' or r in ('vcc', 'exec') else 2, 'salu_m0': 1}.get(k, 0)
            need = max(need, lim - (self.pos - p - 1))
        for r, p in self.crd.items():
            need = max(need, 3 - (self.pos - p - 1))
        for r, p in self.st.items():
            need = max(need, 2 - (self.pos - p - 1))
        self.nop(a, need)
        self.wr, self.crd, self.st = {}, {}, {}

    def nop(self, a, n):
        while n > 0:
            k = min(n, 16)
            a.lines.append(f'    s_nop {k - 1}')
            self.pos += k
            n -= k

    def emit(self, a, l):
        code = l.split(';')[0].strip()
        parts = code.split(None, 1)
        op = parts[0]
        ops = []
        if len(parts) > 1:
            for t in parts[1].split(','):
                ops.append(t.strip().split(' ')[0])
        if op.startswith(('s_cbranch', 's_branch')) and not self.noflush:
            self.flush(a)
        is_mfma = op.startswith('v_mfma')
        is_valu = op.startswith('v_') and not is_mfma
        is_ds = op.startswith('ds_')
        is_vmem = op.startswith('buffer_') or op.startswith('global_')
        is_dpp = is_valu and ('_dpp' in op or 'quad_perm' in code or 'row_' in code)
        dst, src, srcC, data = [], [], [], []
        if is_mfma:
            dst = _regs(ops[0]); src = _regs(ops[1]) + _regs(ops[2]); srcC = _regs(ops[3])
        elif is_valu:
            if op.startswith('v_permlane') and 'swap' in op:
                dst = _regs(ops[0]) + _regs(ops[1]); src = list(dst)
            elif op.startswith('v_swap'):
                dst = _regs(ops[0]) + _regs(ops[1]); src = list(dst)
            elif op.startswith('v_cmpx'):
                dst = ['exec']; src = sum((_regs(o) for o in ops), [])
            elif op in ('v_add_co_u32', 'v_sub_co_u32', 'v_addc_co_u32', 'v_subb_co_u32'):
                dst = _regs(ops[0]) + _regs(ops[1]); src = sum((_regs(o) for o in ops[2:]), [])
            else:
                dst = _regs(ops[0]); src = sum((_regs(o) for o in ops[1:]), [])
                if op.startswith(('v_fmac', 'v_dot2c', 'v_pk_fmac', 'v_mac')) or is_dpp or op.startswith('v_writelane'):
                    src += dst
                if op.startswith('v_cndmask') and len(ops) == 3:
                    src += ['vcc']
            if op.startswith('v_dot'):
                srcC = _regs(ops[3]) if len(ops) > 3 else list(dst)
        elif is_ds:
            if op.startswith('ds_read') or op.startswith('ds_bpermute') or op.startswith('ds_permute'):
                dst = _regs(ops[0]); src = sum((_regs(o) for o in ops[1:]), [])
            else:
                src = sum((_regs(o) for o in ops), [])
        elif is_vmem:
            if '_load' in op and ' lds' not in code:
                dst = _regs(ops[0]); src = sum((_regs(o) for o in ops[1:]), [])
            elif '_load' in op:
                src = sum((_regs(o) for o in ops), []) + ['m0']
            else:
                src = sum((_regs(o) for o in ops), [])
                if 'x3' in op or 'x4' in op:
                    data = _regs(ops[0] if op.startswith('buffer_') else ops[1])
        elif op.startswith('s_') and ops:
            if not op.startswith(('s_cmp', 's_cbranch', 's_branch', 's_waitcnt', 's_nop', 's_barrier', 's_setprio', 's_endpgm')):
                dst = _regs(ops[0]); src = sum((_regs(o) for o in ops[1:]), [])
                if 'saveexec' in op:
                    dst = dst + ['exec']
        need = 0

        def req(p, n):
            nonlocal need
            need = max(need, n - (self.pos - p - 1))
        for r in set(src + srcC):
            if r not in self.wr:
                continue
            p, k, pop = self.wr[r]
            if k == 'mfma':
                if is_mfma:
                    if r in src:
                        req(p, 8)
                    elif ops[3] != pop:
                        req(p, 6)
                elif is_valu or is_ds or is_vmem:
                    req(p, 8)
            elif k == 'dot':
                if op == pop and r in srcC and r not in _regs(ops[1]) + _regs(ops[2]):
                    pass
                elif is_valu or is_mfma or is_ds or is_vmem:
                    req(p, 3)
            elif k in ('valu', 'trans'):
                if r[0] == 'v' and r != 'vcc' or r[0] == 'a':
                    if is_mfma:
                        req(p, 2)
                    if is_dpp or op.startswith('v_permlane'):
                        req(p, 2)
                    if op.startswith(('v_readlane', 'v_readfirstlane')):
                        req(p, 1)
                    if k == 'trans' and is_valu and op not in TRANS:
                        req(p, 1)
                else:
                    if is_vmem:
                        req(p, 5)
                    if is_valu:
                        req(p, 4 if op.startswith(('v_readlane', 'v_writelane')) else 2)
            elif k == 'salu_m0':
                req(p, 1)
        if 'exec' in self.wr and self.wr['exec'][1] == 'valu':
            p = self.wr['exec'][0]
            if is_mfma or op.startswith(('v_readlane', 'v_readfirstlane', 'v_writelane', 'v_permlane')):
                req(p, 4)
            if is_dpp:
                req(p, 5)
        for r in dst:
            if r in self.wr:
                p, k, pop = self.wr[r]
                if k == 'mfma' and not is_mfma:
                    req(p, 8)
                if k == 'mfma' and is_mfma and ops[0] != pop:
                    req(p, 8)
                if k == 'dot' and op != pop:
                    req(p, 3)
            if is_valu and r in self.crd:
                req(self.crd[r], 3)
            if r in self.st:
                req(self.st[r], 2 if is_valu else 1)
        self.nop(a, need)
        a.lines.append('    ' + l)
        here = self.pos
        if op == 's_nop':
            self.pos += int(ops[0]) + 1
        else:
            self.pos += 1
        for r in dst:
            if is_mfma:
                self.wr[r] = (here, 'mfma', ops[0])
            elif op.startswith('v_dot'):
                self.wr[r] = (here, 'dot', op)
            elif op in TRANS:
                self.wr[r] = (here, 'trans', op)
            elif is_valu:
                self.wr[r] = (here, 'valu', op)
            elif r == 'm0':
                self.wr[r] = (here, 'salu_m0', op)
            else:
                self.wr.pop(r, None)
        if is_mfma:
            for r in srcC:
                self.crd[r] = here
        for r in data:
            self.st[r] = here
        if op.startswith(('s_cbranch', 's_branch')):
            pass


class Asm:
    def __init__(self):
        self.lines = []
        self.vm = []
        self.lg = []
        self.hz = Hazards()
        self.nvm = 0

    def e(self, s):
        for l in s.strip('\n').split('\n'):
            l = l.strip()
            if not l:
                continue
            self.hz.emit(self, l)

    def label(self, s, flush=True):
        if flush:
            self.hz.flush(self)
        self.lines.append(s + ':')

    def br(self, s):
        self.hz.noflush = True
        self.e(s)
        self.hz.noflush = False

    def raw(self, s):
        self.lines.append(s)

    def vmem(self, s, tag=None):
        self.e(s)
        self.vm.append(tag)
        self.nvm += 1

    def lds(self, s, tag=None):
        self.e(s)
        self.lg.append(tag)

    def wait_vm(self, tag):
        idx = max(i for i, t in enumerate(self.vm) if t == tag)
        n = len(self.vm) - 1 - idx
        assert n <= 63
        self.e(f's_waitcnt vmcnt({n})')
        self.vm = self.vm[idx + 1:]

    def wait_lg(self, tag):
        idx = max(i for i, t in enumerate(self.lg) if t == tag)
        n = len(self.lg) - 1 - idx
        if n > 15:
            n = 15
            idx = len(self.lg) - 1 - 15
            self.e(f's_waitcnt lgkmcnt({n})')
            self.lg = self.lg[idx + 1:]
            return self.wait_lg(tag) if tag in self.lg else None
        self.e(f's_waitcnt lgkmcnt({n})')
        self.lg = self.lg[idx + 1:]

    def wait_all(self):
        self.e('s_waitcnt vmcnt(0) lgkmcnt(0)')
        self.vm = []
        self.lg = []

    def wait_vm0(self):
        self.e('s_waitcnt vmcnt(0)')
        self.vm = []

    def wait_lg0(self):
        self.e('s_waitcnt lgkmcnt(0)')
        self.lg = []

    def srd(self, d, base, nbytes):
        self.e(f's_mov_b32 s{d}, s{base}')
        self.e(f's_and_b32 s{d+1}, s{base+1}, 0xffff')
        self.e(f's_mov_b32 s{d+2}, {nbytes}')
        self.e(f's_mov_b32 s{d+3}, 0x00020000')

    def rnd2(self, lo, hi, a, b, tmp):
        self.e(f'v_cvt_pk_bf16_f32 v{tmp}, v{a}, v{b}')
        self.e(f'v_lshlrev_b32 v{lo}, 16, v{tmp}')
        self.e(f'v_and_b32 v{hi}, 0xffff0000, v{tmp}')

    def unpack(self, lo, hi, src):
        self.e(f'v_lshlrev_b32 v{lo}, 16, v{src}')
        self.e(f'v_and_b32 v{hi}, 0xffff0000, v{src}')

    def stamp(self, k):
        if STAMPS:
            self.e(f's_memrealtime s[{70+2*k}:{71+2*k}]')

    def stamp_out(self, kern, srd, n, tid='v0', wshift=8):
        if not STAMPS:
            return
        self.stamp(n)
        self.e('s_mov_b64 exec, -1')
        self.e('s_waitcnt lgkmcnt(0)')
        self.e(f'v_lshrrev_b32 v1, 6, {tid}')
        self.e(f'v_and_b32 v2, 63, {tid}')
        self.e('v_lshlrev_b32 v1, 6, v1')
        self.e('v_lshl_add_u32 v1, v2, 2, v1')
        self.e('v_mov_b32 v3, 0')
        for k in range(n + 1):
            self.e(f'v_writelane_b32 v3, s{70+2*k}, {k}')
        self.e(f's_lshl_b32 s68, s2, {wshift}')
        self.e(f's_add_u32 s68, s68, {WS_DBG + kern * MB}')
        self.e('v_cmp_gt_u32 vcc, 16, v2')
        self.e('s_and_saveexec_b64 s[66:67], vcc')
        self.e(f'buffer_store_dword v3, v1, s[{srd}:{srd+3}], s68 offen')

    def touch(self, wreg, tag, targets, link='s[68:69]'):
        if not PAGE:
            return
        self.e('s_waitcnt lgkmcnt(0)')
        self.lg = []
        self.e('s_mov_b64 exec, 0')
        for w, t in enumerate(targets):
            if t is None:
                continue
            self.e(f's_cmp_lg_u32 {wreg}, {w}')
            self.e(f's_cbranch_scc1 TCH{tag}{w}')
            self.e(f's_call_b64 {link}, {t}')
            self.label(f'TCH{tag}{w}')
        self.e('s_mov_b64 exec, -1')
        lo = int(link[2:].split(':')[0])
        self.e(f'v_readfirstlane_b32 s{lo}, v0')

    def begin_kernel(self, name, page=False):
        self.raw('.text')
        self.raw(f'.globl {name}')
        if page:
            self.raw('.p2align 12')
        self.raw('.p2align 8')
        self.raw(f'.type {name},@function')
        self.hz = Hazards()
        self.label(name)
        self.vm = []
        self.lg = []

    def end_kernel(self, name, vgpr, sgpr, accum):
        self.raw('.section .rodata,"a"')
        self.raw('.p2align 6')
        self.raw(f'.amdhsa_kernel {name}')
        self.raw(f'  .amdhsa_next_free_vgpr {vgpr}')
        self.raw(f'  .amdhsa_next_free_sgpr {102 if STAMPS else sgpr}')
        self.raw(f'  .amdhsa_accum_offset {accum}')
        self.raw('  .amdhsa_group_segment_fixed_size 0')
        self.raw('  .amdhsa_kernarg_size 120')
        self.raw('  .amdhsa_user_sgpr_count 2')
        self.raw('  .amdhsa_user_sgpr_kernarg_segment_ptr 1')
        self.raw('  .amdhsa_system_sgpr_workgroup_id_x 1')
        self.raw('  .amdhsa_float_denorm_mode_32 3')
        self.raw('.end_amdhsa_kernel')

    def text(self):
        return '\n'.join(self.lines) + '\n'


def row_reduce_add(a, regs):
    for mod in ('quad_perm:[1,0,3,2]', 'quad_perm:[2,3,0,1]', 'row_half_mirror', 'row_mirror'):
        for r in regs:
            a.e(f'v_add_f32_dpp v{r}, v{r}, v{r} {mod} row_mask:0xf bank_mask:0xf')
        if len(regs) < 3:
            a.e(f's_nop {2 - len(regs)}' if len(regs) < 2 else 's_nop 0')


def wave_total(a, regs, sbase):
    a.e('s_nop 0')
    for i, r in enumerate(regs):
        for k in range(4):
            a.e(f'v_readlane_b32 s{sbase + 4 * i + k}, v{r}, {16 * k}')
    a.e('s_nop 1')
    for i, r in enumerate(regs):
        a.e(f'v_mov_b32 v{r}, s{sbase + 4 * i}')
    for k in range(1, 4):
        for i, r in enumerate(regs):
            a.e(f'v_add_f32 v{r}, s{sbase + 4 * i + k}, v{r}')


K0_TILES = 256
K0_MODWG = 96
K0_WDWG = 64
K0_LDS = 28672
K0_TW = int(os.environ.get('TW', '16')) if PAGE and not os.environ.get('NOTW') else 0


def gen_k0(a):
    name = 'k0_prep_kernel'
    a.begin_kernel(name, page=PAGE)
    a.e(f's_cmp_ge_u32 s2, {K0_TILES + K0_MODWG + K0_WDWG}')
    a.e('s_cbranch_scc1 K0_TWG')
    a.e(f's_cmp_ge_u32 s2, {K0_TILES + K0_MODWG}')
    a.e('s_cbranch_scc1 K0_WD')
    a.e(f's_cmp_ge_u32 s2, {K0_TILES}')
    a.e('s_cbranch_scc1 K0_MOD')
    a.stamp(0)
    a.e(f's_load_dwordx4 s[4:7], s[0:1], {KA_Q}')
    a.e(f's_load_dwordx4 s[8:11], s[0:1], {KA_V}')
    a.e(f's_load_dwordx2 s[12:13], s[0:1], {KA_WS}')
    a.e('s_lshr_b32 s14, s2, 3')
    a.e('s_and_b32 s15, s2, 7')
    a.e('v_and_b32 v1, 31, v0')
    a.e('v_lshrrev_b32 v2, 5, v0')
    a.e('s_lshl_b32 s16, s14, 6')
    a.e('v_lshlrev_b32 v3, 3, v2')
    a.e('v_add_u32 v3, s16, v3')
    a.e('s_lshl_b32 s17, s15, 7')
    a.e('v_lshlrev_b32 v4, 2, v1')
    a.e('v_add_u32 v4, s17, v4')
    a.e('v_lshl_add_u32 v5, v3, 10, v4')
    a.e('v_subrev_u32 v6, 3072, v5')
    a.e('v_subrev_u32 v7, 2048, v5')
    a.e('v_subrev_u32 v8, 1024, v5')
    a.e('v_add_u32 v9, 4096, v5')
    a.e('v_lshlrev_b32 v44, 2, v4')
    a.e('v_lshrrev_b32 v45, 6, v0')
    a.e('v_and_b32 v46, 63, v0')
    a.e('s_lshl_b32 s18, s2, 3')
    a.e('v_lshlrev_b32 v47, 1, v45')
    a.e('v_add_u32 v47, s18, v47')
    a.e('v_lshlrev_b32 v48, 4, v46')
    a.e('v_lshl_add_u32 v48, v47, 10, v48')
    a.e('s_waitcnt lgkmcnt(0)')
    a.srd(20, 4, 2097152)
    a.srd(24, 6, 2097152)
    a.srd(28, 8, 2097152)
    a.srd(32, 10, 4096)
    a.srd(36, 12, WS_SIZE)
    a.vmem('buffer_load_dwordx4 v[40:43], v44, s[32:35], 0 offen', 'sh')
    for i, r in enumerate((6, 7, 8)):
        a.vmem(f'buffer_load_dword v{10 + i}, v{r}, s[24:27], 0 offen', 'k')
    for i in range(8):
        a.vmem(f'buffer_load_dword v{13 + i}, v{5 if i < 4 else 9}, s[24:27], 0 offen offset:{1024 * (i & 3)}', 'k')
    for i in range(8):
        a.vmem(f'buffer_load_dword v{21 + i}, v{5 if i < 4 else 9}, s[28:31], 0 offen offset:{1024 * (i & 3)}', 'v')
    for i in range(8):
        a.vmem(f'buffer_load_dword v{29 + i}, v{5 if i < 4 else 9}, s[20:23], 0 offen offset:{1024 * (i & 3)}', 'q')
    a.vmem('buffer_load_dwordx4 v[52:55], v48, s[20:23], 0 offen', 'st')
    a.vmem('buffer_load_dwordx4 v[56:59], v48, s[20:23], 0 offen offset:1024', 'st')
    a.e('v_lshlrev_b32 v49, 11, v4')
    a.e('v_lshlrev_b32 v50, 1, v3')
    a.e('v_add_u32 v51, v49, v50')
    a.e(f'v_add_u32 v51, {WS_QT}, v51')
    a.e('v_sub_u32 v50, 4080, v50')
    a.e('v_add_u32 v49, v49, v50')
    if PAGE:
        a.e('v_readfirstlane_b32 s19, v45')
    a.touch('s19', 't', [f'@N{w}' for w in range(4)])
    a.wait_vm('sh')
    W0, W1 = 60, 64
    a.unpack(W0 + 0, W0 + 1, 40)
    a.unpack(W0 + 2, W0 + 3, 41)
    a.unpack(W1 + 0, W1 + 1, 42)
    a.unpack(W1 + 2, W1 + 3, 43)
    a.wait_vm('k')
    a.stamp(1)
    KL, KH = 70, 82
    for i in range(11):
        a.unpack(KL + i, KH + i, 10 + i)
    a.wait_vm('v')
    R = 100
    for i in range(8):
        A0, A1, P0, P1, T = 94, 95, 96, 97, 98
        a.e(f'v_mul_f32 v{P0}, v{KL + i}, v{W0 + 3}')
        a.e(f'v_mul_f32 v{P1}, v{KH + i}, v{W1 + 3}')
        a.rnd2(A0, A1, P0, P1, T)
        for t in range(1, 4):
            a.e(f'v_mul_f32 v{P0}, v{KL + i + t}, v{W0 + 3 - t}')
            a.e(f'v_mul_f32 v{P1}, v{KH + i + t}, v{W1 + 3 - t}')
            a.rnd2(P0, P1, P0, P1, T)
            a.e(f'v_add_f32 v{A0}, v{A0}, v{P0}')
            a.e(f'v_add_f32 v{A1}, v{A1}, v{P1}')
            a.rnd2(A0, A1, A0, A1, T)
        a.unpack(P0, P1, 21 + i)
        a.e(f'v_mul_f32 v{P0}, v{A0}, v{P0}')
        a.e(f'v_mul_f32 v{P1}, v{A1}, v{P1}')
        a.e(f'v_cvt_pk_bf16_f32 v{R + i}, v{P0}, v{P1}')
    a.e('s_mov_b32 s40, 0x05040100')
    a.e('s_mov_b32 s41, 0x07060302')
    O = 108
    for j in range(4):
        a.e(f'v_perm_b32 v{O + j}, v{R + 6 - 2 * j}, v{R + 7 - 2 * j}, s40')
        a.e(f'v_perm_b32 v{O + 4 + j}, v{R + 6 - 2 * j}, v{R + 7 - 2 * j}, s41')
    a.vmem(f'buffer_store_dwordx4 v[{O}:{O + 3}], v49, s[36:39], 0 offen', 'o')
    a.e('v_add_u32 v50, 4096, v49')
    a.vmem(f'buffer_store_dwordx4 v[{O + 4}:{O + 7}], v50, s[36:39], 0 offen', 'o')
    a.wait_vm('q')
    O2 = 116
    for j in range(4):
        a.e(f'v_perm_b32 v{O2 + j}, v{29 + 2 * j + 1}, v{29 + 2 * j}, s40')
        a.e(f'v_perm_b32 v{O2 + 4 + j}, v{29 + 2 * j + 1}, v{29 + 2 * j}, s41')
    a.vmem(f'buffer_store_dwordx4 v[{O2}:{O2 + 3}], v51, s[36:39], 0 offen', 'o')
    a.e('v_add_u32 v50, 4096, v51')
    a.vmem(f'buffer_store_dwordx4 v[{O2 + 4}:{O2 + 7}], v50, s[36:39], 0 offen', 'o')
    a.wait_vm('st')
    X = 70
    for r in range(2):
        for j in range(4):
            a.unpack(X + 8 * r + 2 * j, X + 8 * r + 2 * j + 1, 52 + 4 * r + j)
    S0, S1 = 90, 91
    for r, S in ((0, S0), (1, S1)):
        a.e(f'v_add_f32 v{S}, v{X + 8 * r}, v{X + 8 * r + 1}')
        for j in range(2, 8):
            a.e(f'v_add_f32 v{S}, v{S}, v{X + 8 * r + j}')
    a.e('s_nop 1')
    row_reduce_add(a, [S0, S1])
    wave_total(a, [S0, S1], 44)
    a.e(f'v_mul_f32 v{S0}, 0x3b000000, v{S0}')
    a.e(f'v_mul_f32 v{S1}, 0x3b000000, v{S1}')
    Q0, Q1 = 92, 93
    for r, S, Q in ((0, S0, Q0), (1, S1, Q1)):
        for j in range(8):
            a.e(f'v_sub_f32 v{X + 8 * r + j}, v{X + 8 * r + j}, v{S}')
        a.e(f'v_mul_f32 v{Q}, v{X + 8 * r}, v{X + 8 * r}')
        for j in range(1, 8):
            a.e(f'v_fmac_f32 v{Q}, v{X + 8 * r + j}, v{X + 8 * r + j}')
    a.e('s_nop 1')
    row_reduce_add(a, [Q0, Q1])
    wave_total(a, [Q0, Q1], 44)
    a.e(f'v_mul_f32 v{Q0}, 0x3b000000, v{Q0}')
    a.e(f'v_mul_f32 v{Q1}, 0x3b000000, v{Q1}')
    a.rnd2(Q0, Q1, Q0, Q1, 94)
    a.e(f'v_add_f32 v{Q0}, 0x3727c5ac, v{Q0}')
    a.e(f'v_add_f32 v{Q1}, 0x3727c5ac, v{Q1}')
    a.rnd2(Q0, Q1, Q0, Q1, 94)
    a.e(f'v_sqrt_f32 v{Q0}, v{Q0}')
    a.e(f'v_sqrt_f32 v{Q1}, v{Q1}')
    a.rnd2(Q0, Q1, Q0, Q1, 94)
    a.rnd2(S0, S1, S0, S1, 94)
    a.e(f'v_rcp_f32 v94, v{Q0}')
    a.e(f'v_rcp_f32 v95, v{Q1}')
    a.e(f'v_xor_b32 v{S0}, 0x80000000, v{S0}')
    a.e(f'v_xor_b32 v{S1}, 0x80000000, v{S1}')
    a.e(f'v_fma_f32 v{Q0}, -v{Q0}, v94, 1.0')
    a.e(f'v_fma_f32 v{Q1}, -v{Q1}, v95, 1.0')
    a.e(f'v_fmac_f32 v94, v{Q0}, v94')
    a.e(f'v_fmac_f32 v95, v{Q1}, v95')
    a.e('v_lshlrev_b32 v96, 2, v47')
    a.e(f'v_add_u32 v96, {WS_NM}, v96')
    a.e(f'v_add_u32 v97, {WS_RS - WS_NM}, v96')
    a.e('v_cmp_eq_u32 vcc, 0, v46')
    a.e('s_and_saveexec_b64 s[42:43], vcc')
    a.vmem(f'buffer_store_dwordx2 v[{S0}:{S1}], v96, s[36:39], 0 offen', 'o')
    a.vmem('buffer_store_dwordx2 v[94:95], v97, s[36:39], 0 offen', 'o')
    a.stamp(2)
    if STAMPS:
        a.e('s_waitcnt vmcnt(0)')
    a.stamp_out(0, 36, 3)
    a.e('s_endpgm')
    a.label('K0_MOD')
    a.vm = []
    a.e(f's_load_dwordx4 s[4:7], s[0:1], {KA_C}')
    a.e(f's_load_dwordx2 s[12:13], s[0:1], {KA_WS}')
    a.e(f's_sub_u32 s14, s2, {K0_TILES}')
    a.e('s_and_b32 s15, s14, 7')
    a.e('s_lshr_b32 s16, s14, 3')
    a.e('s_mul_i32 s15, s15, 12')
    a.e('s_add_u32 s15, s15, s16')
    a.e('s_lshl_b32 s17, s15, 6')
    a.e('v_and_b32 v1, 63, v0')
    a.e('v_lshrrev_b32 v2, 6, v0')
    a.e('v_lshrrev_b32 v3, 2, v1')
    a.e('v_and_b32 v4, 3, v1')
    a.e('v_lshl_add_u32 v5, v2, 7, v3')
    a.e('s_movk_i32 s18, 6144')
    a.e('v_mul_lo_u32 v6, v5, s18')
    a.e('v_lshl_add_u32 v6, v4, 4, v6')
    a.e('v_add_u32 v6, s17, v6')
    a.e('v_lshlrev_b32 v7, 1, v5')
    a.e('s_waitcnt lgkmcnt(0)')
    a.srd(20, 4, 1024)
    a.srd(24, 6, 3145728)
    a.srd(36, 12, WS_SIZE)
    for i in range(8):
        a.vmem(f'buffer_load_ushort v{10 + i}, v7, s[20:23], 0 offen offset:{32 * i}', 'c')
    for i in range(8):
        a.e(f's_mov_b32 s{44 + i}, {98304 * i}')
    for i in range(8):
        a.vmem(f'buffer_load_dwordx4 v[{20 + 4 * i}:{23 + 4 * i}], v6, s[24:27], s{44 + i} offen', f'w{i}')
    if PAGE:
        a.e('v_readfirstlane_b32 s19, v2')
    a.touch('s19', 'm', [f'@N{w}' for w in range(2)])
    a.wait_vm('c')
    for i in range(8):
        a.e(f'v_lshlrev_b32 v{10 + i}, 16, v{10 + i}')
        a.e(f'v_mul_f32 v{60 + i}, 0xbfb8aa3b, v{10 + i}')
    for i in range(8):
        a.e(f'v_exp_f32 v{60 + i}, v{60 + i}')
    a.e('s_nop 0')
    for i in range(8):
        a.e(f'v_add_f32 v{60 + i}, 1.0, v{60 + i}')
    for i in range(8):
        a.e(f'v_rcp_f32 v{60 + i}, v{60 + i}')
    a.e('s_nop 0')
    for i in range(8):
        a.e(f'v_mul_f32 v{60 + i}, v{10 + i}, v{60 + i}')
    for i in range(0, 8, 2):
        a.rnd2(60 + i, 61 + i, 60 + i, 61 + i, 68)
    ACC = 72
    for i in range(8):
        a.wait_vm(f'w{i}')
        for j in range(4):
            a.unpack(80, 81, 20 + 4 * i + j)
            if i == 0:
                a.e(f'v_mul_f32 v{ACC + 2 * j}, v80, v60')
                a.e(f'v_mul_f32 v{ACC + 2 * j + 1}, v81, v60')
            else:
                a.e(f'v_fmac_f32 v{ACC + 2 * j}, v80, v{60 + i}')
                a.e(f'v_fmac_f32 v{ACC + 2 * j + 1}, v81, v{60 + i}')
    a.e('s_nop 1')
    for mod in ('row_ror:4', 'row_ror:8'):
        for j in range(8):
            a.e(f'v_add_f32_dpp v{ACC + j}, v{ACC + j}, v{ACC + j} {mod} row_mask:0xf bank_mask:0xf')
    a.e('v_lshrrev_b32 v8, 4, v1')
    a.e('v_lshl_add_u32 v8, v2, 2, v8')
    a.e('v_lshl_add_u32 v8, v8, 2, v4')
    a.e('v_lshlrev_b32 v8, 5, v8')
    a.e('v_and_b32 v9, 12, v1')
    a.e('v_cmp_eq_u32 vcc, 0, v9')
    a.e('s_and_saveexec_b64 s[42:43], vcc')
    a.e(f'ds_write_b128 v8, v[{ACC}:{ACC + 3}]')
    a.e(f'ds_write_b128 v8, v[{ACC + 4}:{ACC + 7}] offset:16')
    a.e('s_mov_b64 exec, s[42:43]')
    a.e('s_waitcnt lgkmcnt(0)')
    a.e('s_barrier')
    a.e('v_cmp_gt_u32 vcc, 32, v0')
    a.e('s_and_saveexec_b64 s[42:43], vcc')
    a.e('s_cbranch_execz K0_END')
    a.e('v_lshlrev_b32 v8, 2, v0')
    for i in range(16):
        a.e(f'ds_read_b32 v{20 + i}, v8 offset:{128 * i}')
    a.e('s_waitcnt lgkmcnt(0)')
    for i in range(1, 16):
        a.e(f'v_add_f32 v20, v20, v{20 + i}')
    a.rnd2(20, 21, 20, 20, 22)
    a.e('s_lshl_b32 s17, s15, 7')
    a.e(f's_add_u32 s17, s17, {WS_MOD}')
    a.e('buffer_store_dword v20, v8, s[36:39], s17 offen')
    a.e('s_endpgm')
    a.label('K0_WD')
    a.vm, a.lg = [], []
    a.e(f's_load_dwordx2 s[4:5], s[0:1], {KA_WD}')
    a.e(f's_load_dwordx2 s[8:9], s[0:1], {KA_WS}')
    a.e(f's_sub_u32 s10, s2, {K0_TILES + K0_MODWG}')
    a.e('s_lshr_b32 s11, s10, 2')
    a.e('s_and_b32 s12, s10, 3')
    a.e('v_lshrrev_b32 v2, 6, v0')
    a.e('v_and_b32 v1, 63, v0')
    a.e('v_readfirstlane_b32 s13, v2')
    a.e('v_lshrrev_b32 v3, 4, v1')
    a.e('v_and_b32 v4, 15, v1')
    a.e('v_lshlrev_b32 v5, 4, v4')
    a.e('v_lshl_add_u32 v5, v3, 10, v5')
    a.e('v_lshlrev_b32 v18, 4, v1')
    a.e('s_mul_i32 s14, s11, 114688')
    a.e('s_lshl_b32 s15, s12, 8')
    a.e('s_add_u32 s14, s14, s15')
    a.e('s_mul_i32 s15, s13, 28672')
    a.e('s_add_u32 s14, s14, s15')
    a.e('s_mul_i32 s16, s13, 7168')
    a.e('s_waitcnt lgkmcnt(0)')
    a.srd(20, 4, 1792 * 512 * 2)
    a.srd(24, 8, WS_SIZE)
    for i in range(7):
        a.e(f's_add_u32 m0, s16, {1024 * i}')
        a.e(f's_add_u32 s17, s14, {4096 * i}')
        a.vmem('buffer_load_dwordx4 v5, s[20:23], s17 offen lds', 'w')
    a.e('s_cmp_lg_u32 s10, 0')
    a.e('s_cbranch_scc1 K0_WD1')
    a.e('v_lshlrev_b32 v6, 4, v0')
    for i in range(4):
        a.e(f'v_mov_b32 v{20+i}, 0')
    for i in range(5 if NEWWD else 3):
        a.e(f's_mov_b32 s17, {WS_CNT + 4096 * i}')
        a.e('buffer_store_dwordx4 v[20:23], v6, s[24:27], s17 offen')
    a.label('K0_WD1')
    a.e('v_bfe_u32 v6, v1, 2, 2')
    a.e('v_and_b32 v7, 3, v1')
    a.e('v_lshl_add_u32 v6, v3, 2, v6')
    a.e('v_lshlrev_b32 v6, 8, v6')
    a.e('v_lshl_add_u32 v6, v7, 4, v6')
    a.e('s_lshr_b32 s15, s13, 1')
    a.e('s_and_b32 s16, s13, 1')
    a.e('s_lshl_b32 s17, s15, 6')
    a.e('s_lshl_b32 s18, s16, 3')
    a.e('s_add_u32 s17, s17, s18')
    a.e('v_add_u32 v8, s17, v6')
    if NEWWD:
        a.e('s_mul_i32 s17, s12, 458752')
        a.e(f's_add_u32 s17, s17, {WS_WDF}')
        a.e('s_lshl_b32 s18, s13, 10')
        a.e('s_add_u32 s17, s17, s18')
        a.e('s_lshl_b32 s18, s11, 13')
        a.e('s_add_u32 s18, s18, s17')
        a.e('s_lshr_b32 s19, s11, 1')
        a.e('s_mul_i32 s19, s19, 12288')
        a.e('s_add_u32 s19, s19, s17')
        a.e('s_add_u32 s19, s19, 131072')
        a.e('s_and_b32 s28, s11, 1')
        a.e('s_lshl_b32 s29, s28, 3')
        a.e('s_add_u32 s29, s29, s19')
        a.e('s_add_u32 s29, s29, 8192')
        a.e('s_lshl_b32 s28, s28, 12')
        a.e('s_add_u32 s19, s19, s28')
        a.e('v_lshlrev_b32 v18, 4, v1')
        a.touch('s13', 'w', ['@N0'])
        a.wait_vm0()
        a.e('s_barrier')
        n = 0
        for dbl in range(2):
            for kb in range(3):
                for half in range(2):
                    a.lds(f'ds_read_b64_tr_b16 v[{32+4*n+2*half}:{33+4*n+2*half}], v8 offset:{(32*kb+16*half)*256 + 128*dbl}', f't{n}')
                n += 1
        for dbl in range(2):
            a.lds(f'ds_read_b64_tr_b16 v[{32+4*n+2*dbl}:{33+4*n+2*dbl}], v8 offset:{96*256 + 128*dbl}', f't{n}')
        n = 0
        for dbl in range(2):
            for kb in range(3):
                if kb < 2:
                    a.e(f's_add_u32 s28, s18, {dbl * 229376 + kb * 4096}')
                else:
                    a.e(f's_add_u32 s28, s19, {dbl * 229376}')
                a.wait_lg(f't{n}')
                a.vmem(f'buffer_store_dwordx4 v[{32+4*n}:{35+4*n}], v18, s[24:27], s28 offen', 'o')
                n += 1
        a.wait_lg(f't{n}')
        for dbl in range(2):
            a.e(f's_add_u32 s28, s29, {dbl * 229376}')
            a.vmem(f'buffer_store_dwordx2 v[{32+4*n+2*dbl}:{33+4*n+2*dbl}], v18, s[24:27], s28 offen', 'o')
    else:
        a.e('s_lshl_b32 s17, s15, 7')
        a.e('s_lshl_b32 s18, s16, 6')
        a.e('s_add_u32 s17, s17, s18')
        a.e('v_add_u32 v9, s17, v6')
        a.e('s_lshl_b32 s17, s12, 5')
        a.e('s_add_u32 s17, s17, s11')
        a.e('s_mul_i32 s17, s17, 14336')
        a.e(f's_add_u32 s17, s17, {WS_WDF}')
        a.e('s_lshl_b32 s18, s13, 10')
        a.e('s_add_u32 s18, s18, s17')
        a.e('s_mul_i32 s19, s15, 229376')
        a.e('s_add_u32 s19, s19, s17')
        a.e('s_lshl_b32 s28, s16, 10')
        a.e('s_add_u32 s19, s19, s28')
        a.e('s_add_u32 s19, s19, 12288')
        a.touch('s13', 'w', ['@N0'])
        a.wait_vm0()
        a.e('s_barrier')
        n = 0
        for dbl in range(2):
            for kb in range(3):
                for half in range(2):
                    a.lds(f'ds_read_b64_tr_b16 v[{32+4*n+2*half}:{33+4*n+2*half}], v8 offset:{(32*kb+16*half)*256 + 128*dbl}', f't{n}')
                n += 1
        for half in range(2):
            a.lds(f'ds_read_b64_tr_b16 v[{32+4*n+2*half}:{33+4*n+2*half}], v9 offset:{96*256 + 8*half}', f't{n}')
        n = 0
        for dbl in range(2):
            for kb in range(3):
                a.e(f's_add_u32 s28, s18, {dbl * 229376 + kb * 4096}')
                a.wait_lg(f't{n}')
                a.vmem(f'buffer_store_dwordx4 v[{32+4*n}:{35+4*n}], v18, s[24:27], s28 offen', 'o')
                n += 1
        a.wait_lg(f't{n}')
        a.vmem(f'buffer_store_dwordx4 v[{32+4*n}:{35+4*n}], v18, s[24:27], s19 offen', 'o')
    a.label('K0_END')
    a.e('s_endpgm')
    a.label('K0_TWG')
    if K0_TW:
        a.e(f's_cmp_ge_u32 s2, {K0_TILES + K0_MODWG + K0_WDWG + K0_TW}')
        a.e('s_cbranch_scc1 K0_END')
        a.e('v_lshrrev_b32 v2, 6, v0')
        a.e('v_readfirstlane_b32 s13, v2')
        if os.environ.get('TW2'):
            a.touch('s13', 'k', [f'KMPG{w}' for w in range(4)])
            a.touch('s13', 'l', [f'KMPG{w + 4}' for w in range(4)])
        else:
            a.e('s_lshr_b32 s10, s2, 1')
            a.e('s_and_b32 s10, s10, 4')
            a.e('s_add_u32 s13, s13, s10')
            if PF:
                a.e(f's_load_dwordx2 s[4:5], s[0:1], {KA_SSMK}')
                a.e(f's_load_dwordx4 s[24:27], s[0:1], {KA_WG}')
            a.touch('s13', 'k', [f'KMPG{w}' for w in range(8)])
            if PF:
                a.e(f's_sub_u32 s10, s2, {K0_TILES + K0_MODWG + K0_WDWG}')
                if PF & 4:
                    a.e('s_add_u32 s10, s10, 3')
                    a.e('s_and_b32 s10, s10, 511')
                a.srd(16, 4, 2097152)
                a.srd(28, 24, 512 * 1792 * 2)
                a.srd(32, 26, 512 * 1792 * 2)
                a.e('v_lshlrev_b32 v1, 4, v0')
                a.e('s_lshl_b32 s11, s10, 12')
                if PF & 1:
                    a.e('buffer_load_dwordx4 v[4:7], v1, s[16:19], s11 offen')
                if PF & 2:
                    a.e('s_and_b32 s11, s10, 7')
                    a.e('s_lshr_b32 s12, s10, 3')
                    a.e('s_lshr_b32 s14, s11, 1')
                    a.e('s_lshl_b32 s14, s14, 6')
                    a.e('s_add_u32 s14, s14, s12')
                    a.e('s_mul_i32 s14, s14, 7168')
                    a.e('s_and_b32 s11, s11, 1')
                    a.e('s_mul_i32 s11, s11, 1792')
                    a.e('s_add_u32 s14, s14, s11')
                    a.e('v_add_u32 v2, 1792, v1')
                    a.e('v_cmp_gt_u32 vcc, 112, v0')
                    a.e('v_cndmask_b32 v1, v2, v1, vcc')
                    a.e('v_cmp_gt_u32 vcc, 224, v0')
                    a.e('s_and_saveexec_b64 s[36:37], vcc')
                    a.e('buffer_load_dwordx4 v[8:11], v1, s[28:31], s14 offen')
                    a.e('buffer_load_dwordx4 v[12:15], v1, s[32:35], s14 offen')
                a.e('s_waitcnt vmcnt(0)')
    a.e('s_endpgm')
    a.end_kernel(name, 128, 72, 128)
    return f'; @launch kernel={name} grid=({K0_TILES + K0_MODWG + K0_WDWG + K0_TW},1,1) block=(256,1,1) lds={K0_LDS}'


HEADER = open('cdna_kernels/' + NAME + '.s.ref').read().split('; Override launch')[0]


def _sizes(text):
    import subprocess, tempfile
    body = '.amdgcn_target "amdgcn-amd-amdhsa--gfx950"\n' + text
    open('_sz.s', 'w').write(body)
    r = subprocess.run(['llvm-mc', '-triple=amdgcn-amd-amdhsa', '-mcpu=gfx950', '-show-encoding', '_sz.s'],
                       capture_output=True, text=True)
    assert r.returncode == 0, r.stderr[:2000]
    return [l.split('encoding: [')[1].count(',') + 1 for l in r.stdout.split('\n') if 'encoding: [' in l]


PROMO = ('v_mov_b32', 'v_add_f32', 'v_mul_f32', 'v_sub_f32', 'v_lshlrev_b32', 'v_lshrrev_b32', 'v_and_b32', 'v_add_u32',
         'v_sub_u32', 'v_subrev_u32', 'v_xor_b32', 'v_or_b32', 'v_max_f32', 'v_fmac_f32', 'v_exp_f32', 'v_rcp_f32', 'v_sqrt_f32',
         'v_cmp_eq_u32', 'v_cmp_gt_u32', 'v_cndmask_b32')


def layout(lines, kernels, link, align=True):
    names = set()
    for l in lines:
        m = re.search(r'(@N\d+|[A-Z0-9]+PG\d+)\b', l)
        if m and l.startswith('    '):
            names.add(m.group(1))
    tmp = [re.sub(r'@N(\d+)', r'XXN\1', l) for l in lines] + ['.text'] + [n.replace('@N', 'XXN') + ':' for n in names]
    sz = _sizes('\n'.join(tmp) + '\n')
    ins = [i for i, l in enumerate(lines) if l.startswith('    ')]
    assert len(ins) == len(sz)
    size = dict(zip(ins, sz))
    out = []
    cur, off, nstub, unsafe = None, 0, 0, False
    run = []
    nst = {}

    def close():
        pre, stride = kernels[cur]
        nst[cur] = nstub
        out.append(['.text', 0])
        for k in range(nstub, nstub + 16):
            out.append([f'{pre}PG{k}:', 0])
        out.append([f'{pre}RET:', 0])
        out.append([f'    s_setpc_b64 {link}', 4])
    for i, l in enumerate(lines):
        if l[:-1] in kernels and l.endswith(':'):
            cur, off, nstub, unsafe, run = l[:-1], 0, 0, False, []
            out.append([l, 0])
            continue
        if l.startswith('.section') and cur:
            close()
            cur = None
        if not l.startswith('    ') or cur is None:
            out.append([l, 0])
            continue
        pre, stride = kernels[cur]
        op = l.split()[0]
        s_ = size[i]
        if off >= 1024 * nstub + (8 if nstub == 0 else 0) and not unsafe:
            nxt = f'{pre}PG{nstub + stride}' if stride else f'{pre}RET'
            out.append([f'{pre}PG{nstub}:', 0])
            out.append([f'    s_cbranch_execz {nxt}', 4])
            run.append((len(out) - 1, off, False))
            off += 4
            nstub += 1
        if s_ == 8 and off % 8 == 4 and align:
            cand = [r for r in run if r[2] and r[1] % 8 == 0]
            if cand:
                j = cand[-1][0]
                t = out[j][0]
                o = t.split()[0]
                out[j][0] = t.replace(o, o + '_e64', 1)
                off += 4
            else:
                n, k = 0, i
                while k < len(lines) and (not lines[k].startswith('    ') or size[k] == 8):
                    n += lines[k].startswith('    v_')
                    if 'v_mfma' in lines[k]:
                        n = -100
                    k += 1
                if n >= 4:
                    out.append(['    s_nop 0', 4])
                    off += 4
        l2 = re.sub(r'@N(\d+)', lambda m: f'{pre}PG{off // 1024 + 1 + int(m.group(1))}', l)
        out.append([l2, s_])
        if s_ == 4:
            promo = op in PROMO and 'dpp' not in l and 'sdwa' not in l
            run.append((len(out) - 1, off, promo))
        else:
            run = []
        off += s_
        wex = op.startswith('s_') and len(l.split()) > 1 and l.split()[1].startswith('exec')
        if 'saveexec' in op or (wex and not re.search(r'exec, (-1|0x[0-9a-f]+|[1-9][0-9]*|s\[(36:37|42:43|46:47|64:65)\])$', l.strip())):
            unsafe = True
        elif wex:
            unsafe = False
        if op == 's_endpgm':
            unsafe = False
    return [o[0] for o in out], nst


def build(kernels, stubs=None):
    a = Asm()
    launches = [k(a) for k in kernels]
    if stubs:
        a.lines, nst = layout(a.lines, *stubs)
        print('stubs', nst)
    return HEADER + '\n'.join(launches) + '\n.amdgcn_target "amdgcn-amd-amdhsa--gfx950"\n' + a.text()


if __name__ == '__main__':
    ks = [gen_k0]
    out = sys.argv[1] if len(sys.argv) > 1 else 'cur.s'
    open(out, 'w').write(build(ks))
```

```python
from gen import *
import os

def gen_diag(spec, mult=8):
    kA, iA, oA, kB, iB, oB = spec.split(',')

    def g(a):
        name = 'k9_diag_kernel'
        a.begin_kernel(name)
        a.e('s_cmp_ge_u32 s2, 1')
        a.e('s_cbranch_scc1 K9_END')
        a.e(f's_load_dwordx2 s[8:9], s[0:1], {KA_WS}')
        a.e('v_mov_b32 v10, 0')
        a.e('v_mov_b32 v11, -1')
        a.e('v_mov_b32 v12, 0')
        a.e('ds_write_b32 v10, v11')
        a.e('ds_write_b32 v10, v12 offset:4')
        a.e('ds_write_b32 v10, v11 offset:8')
        a.e('ds_write_b32 v10, v12 offset:12')
        a.e('ds_write_b32 v10, v12 offset:16')
        a.e('s_waitcnt lgkmcnt(0)')
        a.srd(24, 8, WS_SIZE)
        a.e('s_barrier')

        def load(k, i, base):
            k = int(k)
            if k == 0:
                waves, sh = range(4), 8
            else:
                waves = range(4) if i[-1] == 'a' else range(4, 8)
                sh = 9
                i = i[:-1]
            i = int(i)
            a.e(f'v_lshlrev_b32 v1, {sh}, v0')
            a.e(f's_mov_b32 s10, {WS_DBG + k * MB}')
            for n, w in enumerate(waves):
                a.e(f'buffer_load_dword v{base + n}, v1, s[24:27], s10 offen offset:{64 * w + 4 * i}')
        load(kA, iA, 20)
        load(kB, iB, 24)
        a.e('s_waitcnt vmcnt(0)')
        for n in range(4):
            a.e(f'ds_min_u32 v10, v{20 + n}')
            a.e(f'ds_max_u32 v10, v{20 + n} offset:4')
            a.e(f'ds_min_u32 v10, v{24 + n} offset:8')
            a.e(f'ds_max_u32 v10, v{24 + n} offset:12')
        a.e('s_waitcnt lgkmcnt(0)')
        a.e('s_barrier')
        a.e(f'ds_read_b32 v2, v10 offset:{0 if oA == "min" else 4}')
        a.e(f'ds_read_b32 v3, v10 offset:{8 if oB == "min" else 12}')
        a.e('s_waitcnt lgkmcnt(0)')
        if oB == 'avg':
            for n in range(4):
                a.e(f'v_sub_u32 v{24 + n}, v{24 + n}, v2')
                a.e(f'ds_add_u32 v10, v{24 + n} offset:16')
            a.e('s_waitcnt lgkmcnt(0)')
            a.e('s_barrier')
            a.e('ds_read_b32 v3, v10 offset:16')
            a.e('s_waitcnt lgkmcnt(0)')
            a.e('v_lshrrev_b32 v3, 10, v3')
        else:
            a.e('v_sub_u32 v3, v3, v2')
        a.e('v_min_u32 v3, 4000, v3')
        a.e('v_readfirstlane_b32 s12, v3')
        a.e(f's_mul_i32 s12, s12, {mult}')
        a.e('s_memrealtime s[14:15]')
        a.e('s_waitcnt lgkmcnt(0)')
        a.label('K9_L')
        a.e('s_memrealtime s[16:17]')
        a.e('s_waitcnt lgkmcnt(0)')
        a.e('s_sub_u32 s18, s16, s14')
        a.e('s_cmp_lt_u32 s18, s12')
        a.e('s_cbranch_scc1 K9_L')
        a.label('K9_END')
        a.e('s_endpgm')
        a.end_kernel(name, 32, 40, 32)
        return f'; @launch kernel={name} grid=(1,1,1) block=(256,1,1) lds=64'
    return g
```
